```python
import torch

def _softmax(x, axis=-1):
    return torch.softmax(x, dim=axis)
def _gelu(x):
    return torch.nn.functional.gelu(x, approximate="tanh")
def _silu(x):
    return torch.nn.functional.silu(x)
def _sigmoid(x):
    return torch.sigmoid(x)
def _layernorm(x, axis=-1, eps=1e-5):
    m = x.mean(dim=axis, keepdim=True)
    v = x.var(dim=axis, keepdim=True, unbiased=False)
    return (x - m) / torch.sqrt(v + eps)
def _scatter_add(tgt, idx, src, axis=0):
    return tgt.clone().index_add_(axis, idx, src)
def _segment_sum(src, seg, n):
    out = torch.zeros((n,) + src.shape[1:], dtype=src.dtype)
    return out.index_add_(0, seg, src)
def _pad(x, pw):
    flat = tuple(v for pair in reversed(pw) for v in pair)
    return torch.nn.functional.pad(x, flat)

kernel_name = 'concat_heads__gqa_block_cached__gqa_block_cached__near_ridge'

def setup_inputs():

    _w = (lambda a: (lambda t: t.to(torch.bfloat16) if t.is_floating_point() else t)(torch.as_tensor(a)))
    def _A_setup():
        B, Sq, D = 8, 160, 576
        Hq, Hkv, Sk, Dh = 32, 16, 1024, 128
        assert Hq % Hkv == 0, (Hq, Hkv)
        return {
            "x": _w((lambda *s: torch.randn(*s, dtype=torch.bfloat16) * 0.8)(B, Sq, D)),
            "k_cache": _w((lambda *s: torch.randn(*s, dtype=torch.bfloat16) * 0.8)(B, Hkv, Sk, Dh)),
            "v_cache": _w((lambda *s: torch.randn(*s, dtype=torch.bfloat16) * 0.05)(B, Hkv, Sk, Dh)),
            "wq": _w((lambda *s: torch.randn(*s, dtype=torch.bfloat16) * 0.8)(D, Hq * Dh) * (D ** -0.5)),
            "wo": _w((lambda *s: torch.randn(*s, dtype=torch.bfloat16) * 0.05)(Hq * Dh, D) * ((Hq * Dh) ** -0.5)),
        }
    _A_in = _A_setup()

    def _B_setup():
        B, Sq, D = 8, 160, 576
        Hq, Hkv, Sk, Dh = 32, 16, 1024, 128
        assert Hq % Hkv == 0, (Hq, Hkv)
        return {
            "x": _w((lambda *s: torch.randn(*s, dtype=torch.bfloat16) * 0.8)(B, Sq, D)),
            "k_cache": _w((lambda *s: torch.randn(*s, dtype=torch.bfloat16) * 0.8)(B, Hkv, Sk, Dh)),
            "v_cache": _w((lambda *s: torch.randn(*s, dtype=torch.bfloat16) * 0.05)(B, Hkv, Sk, Dh)),
            "wq": _w((lambda *s: torch.randn(*s, dtype=torch.bfloat16) * 0.8)(D, Hq * Dh) * (D ** -0.5)),
            "wo": _w((lambda *s: torch.randn(*s, dtype=torch.bfloat16) * 0.05)(Hq * Dh, D) * ((Hq * Dh) ** -0.5)),
        }
    _B_in = _B_setup()

    return {
        "A_x": _A_in["x"],
        "A_k_cache": _A_in["k_cache"],
        "A_v_cache": _A_in["v_cache"],
        "A_wq": _A_in["wq"],
        "A_wo": _A_in["wo"],
        "B_x": _B_in["x"],
        "B_k_cache": _B_in["k_cache"],
        "B_v_cache": _B_in["v_cache"],
        "B_wq": _B_in["wq"],
        "B_wo": _B_in["wo"],
    }

def reference(A_x, A_k_cache, A_v_cache, A_wq, A_wo, B_x, B_k_cache, B_v_cache, B_wq, B_wo):
    def _A_ref(x, k_cache, v_cache, wq, wo):
        B, Sq, D = x.shape
        Hq, Dh = 32, 128
        Hkv = k_cache.shape[1]
        rep = Hq // Hkv
        q = (lambda x, *d: x.permute(*d))((x @ wq).reshape(B, Sq, Hq, Dh), 0, 2, 1, 3)
        k = (lambda x, n, axis: torch.repeat_interleave(x, n, dim=axis))(k_cache, rep, axis=1)
        v = (lambda x, n, axis: torch.repeat_interleave(x, n, dim=axis))(v_cache, rep, axis=1)
        scores = torch.einsum("bhqd,bhkd->bhqk", q, k) * (Dh ** -0.5)
        p = _softmax(scores, axis=-1)
        o = torch.einsum("bhqk,bhkd->bhqd", p, v)
        return (lambda x, *d: x.permute(*d))(o, 0, 2, 1, 3).reshape(B, Sq, Hq * Dh) @ wo

    def _B_ref(x, k_cache, v_cache, wq, wo):
        B, Sq, D = x.shape
        Hq, Dh = 32, 128
        Hkv = k_cache.shape[1]
        rep = Hq // Hkv
        q = (lambda x, *d: x.permute(*d))((x @ wq).reshape(B, Sq, Hq, Dh), 0, 2, 1, 3)
        k = (lambda x, n, axis: torch.repeat_interleave(x, n, dim=axis))(k_cache, rep, axis=1)
        v = (lambda x, n, axis: torch.repeat_interleave(x, n, dim=axis))(v_cache, rep, axis=1)
        scores = torch.einsum("bhqd,bhkd->bhqk", q, k) * (Dh ** -0.5)
        p = _softmax(scores, axis=-1)
        o = torch.einsum("bhqk,bhkd->bhqd", p, v)
        return (lambda x, *d: x.permute(*d))(o, 0, 2, 1, 3).reshape(B, Sq, Hq * Dh) @ wo

    a = _A_ref(A_x, A_k_cache, A_v_cache, A_wq, A_wo)
    b = _B_ref(B_x, B_k_cache, B_v_cache, B_wq, B_wo)
    return torch.concatenate([a, b], axis=-1)
```

```python
import re

class Asm:
    def __init__(self):
        self.lines = []
    def __call__(self, s):
        for l in s.split("\n"):
            self.lines.append(l)
    def c(self, s):
        self.lines.append("; " + s)
    def label(self, s):
        self.lines.append(s + ":")
    def text(self):
        out = []
        for l in self.lines:
            t = l.strip()
            if not t:
                continue
            if t.endswith(":") or t.startswith(".") or t.startswith(";"):
                out.append(t)
            else:
                out.append("    " + t)
        return "\n".join(out) + "\n"

def vr(b, n=1):
    return f"v{b}" if n == 1 else f"v[{b}:{b+n-1}]"
def ar(b, n=1):
    return f"a{b}" if n == 1 else f"a[{b}:{b+n-1}]"
def sr(b, n=1):
    return f"s{b}" if n == 1 else f"s[{b}:{b+n-1}]"

_reg_re = re.compile(r"^-?\|?([vas])(?:(\d+)|\[(\d+):(\d+)\])\|?$")
def regs_of(tok):
    tok = tok.strip()
    m = _reg_re.match(tok)
    if not m:
        if tok == "vcc": return {("s", 106), ("s", 107)}
        if tok == "m0": return {("s", 124)}
        if tok == "exec": return {("s", 126), ("s", 127)}
        return set()
    f = m.group(1)
    if m.group(2) is not None:
        return {(f, int(m.group(2)))}
    return {(f, i) for i in range(int(m.group(3)), int(m.group(4)) + 1)}

TRANS = ("v_exp_f32", "v_log_f32", "v_rcp_f32", "v_rsq_f32", "v_sqrt_f32", "v_sin_f32", "v_cos_f32")

def parse(line):
    t = line.split(";")[0].strip()
    if not t or t.endswith(":") or t.startswith("."):
        return None
    parts = t.split(None, 1)
    mn = parts[0]
    ops = []
    if len(parts) > 1:
        ops = [o.strip() for o in re.split(r",(?![^\[]*\])", parts[1])]
        if ops:
            last = ops[-1].split()
            ops[-1] = last[0] if last else ""
    d = dict(mn=mn, dst=set(), src=set(), text=t)
    base = re.sub(r"_e32$|_e64$", "", mn)
    d["base"] = base
    if base.startswith("v_mfma"):
        d["kind"] = "mfma"
        d["dst"] = regs_of(ops[0]); d["A"] = regs_of(ops[1]); d["B"] = regs_of(ops[2]); d["C"] = regs_of(ops[3])
        d["src"] = d["A"] | d["B"] | d["C"]
        d["passes"] = 4 if "16x16x32" in base else 8
    elif base.startswith("v_cmp"):
        d["kind"] = "valu"; d["dst"] = regs_of(ops[0]); d["src"] = set().union(*[regs_of(o) for o in ops[1:]])
    elif base in ("v_permlane32_swap_b32", "v_permlane16_swap_b32"):
        d["kind"] = "valu"; d["perm"] = True
        d["dst"] = regs_of(ops[0]) | regs_of(ops[1]); d["src"] = set(d["dst"])
    elif base in ("v_readfirstlane_b32", "v_readlane_b32"):
        d["kind"] = "valu"; d["rfl"] = True
        d["dst"] = regs_of(ops[0]); d["src"] = set().union(*[regs_of(o) for o in ops[1:]])
    elif base.startswith("v_"):
        d["kind"] = "valu"
        d["dst"] = regs_of(ops[0])
        srcs = ops[1:]
        d["src"] = set().union(*[regs_of(o) for o in srcs]) if srcs else set()
        if base in ("v_fmac_f32", "v_dot2c_f32_bf16", "v_pk_fmac_f16"):
            d["src"] |= d["dst"]
        if base in ("v_add_co_u32", "v_addc_co_u32", "v_sub_co_u32"):
            d["dst"] |= regs_of(ops[1])
        if base == "v_cndmask_b32" and len(ops) == 3:
            d["src"] |= regs_of("vcc")
        if "dpp" in t or "row_" in t or "quad_perm" in t:
            d["dpp"] = True
        d["trans"] = base in TRANS
    elif base.startswith("ds_"):
        d["kind"] = "ds"
        if base.startswith("ds_read") or base.startswith("ds_bpermute") or base.startswith("ds_swizzle"):
            d["dst"] = regs_of(ops[0]); d["src"] = set().union(*[regs_of(o) for o in ops[1:]])
        else:
            d["src"] = set().union(*[regs_of(o) for o in ops])
    elif base.startswith("buffer_") or base.startswith("global_"):
        d["kind"] = "vmem"
        islds = (" lds" in t) or ("_lds_" in base)
        if base in ("buffer_wbl2", "buffer_inv"):
            pass
        elif "load" in base and not islds:
            d["dst"] = regs_of(ops[0]); d["src"] = set().union(*[regs_of(o) for o in ops[1:]])
        elif islds:
            d["src"] = set().union(*[regs_of(o) for o in ops]) | {("s", 124)}
            d["lds_dma"] = True
        else:
            d["src"] = set().union(*[regs_of(o) for o in ops])
            if "store" in base:
                d["store_data"] = regs_of(ops[0]) if base.startswith("buffer_") else regs_of(ops[1])
                d["wide"] = ("x3" in base or "x4" in base)
    elif base.startswith("s_"):
        d["kind"] = "salu"
        if base in ("s_nop",):
            d["nop"] = int(ops[0], 0) + 1
        elif base.startswith("s_cmp") or base.startswith("s_cbranch") or base in ("s_branch", "s_barrier", "s_waitcnt", "s_endpgm", "s_setprio", "s_sleep", "s_bitcmp1_b32", "s_bitcmp0_b32"):
            d["src"] = set().union(*[regs_of(o) for o in ops]) if ops else set()
        else:
            d["dst"] = regs_of(ops[0]) if ops else set()
            d["src"] = set().union(*[regs_of(o) for o in ops[1:]]) if len(ops) > 1 else set()
    else:
        d["kind"] = "other"
    return d

def check_hazards(lines, name=""):
    ins = []
    for ln, l in enumerate(lines):
        p = parse(l)
        if p:
            p["ln"] = ln
            ins.append(p)
    errs = []
    pos = []
    cur = 0
    for p in ins:
        pos.append(cur)
        cur += p.get("nop", 1)
    n = len(ins)
    W = 24
    for i, p in enumerate(ins):
        for j in range(i - 1, max(-1, i - W), -1):
            q = ins[j]
            dist = pos[i] - pos[j] - q.get("nop", 1)
            if dist >= 20:
                break
            def need(k, why):
                if dist < k:
                    errs.append(f"{name} line {p['ln']}: [{p['text']}] after [{q['text']}] needs {k} wait states, has {dist}: {why}")
            qk, pk = q["kind"], p["kind"]
            vq = {r for r in q["dst"] if r[0] in "va"}
            if qk == "valu" and pk == "mfma" and (vq & p["src"]):
                need(2, "VALU write -> MFMA read")
            if qk == "mfma":
                ps = q["passes"]
                D = q["dst"]
                if pk == "mfma":
                    if D & (p["A"] | p["B"]):
                        need({4: 8, 8: 12}[ps], "MFMA D -> MFMA A/B")
                    if D & p["C"]:
                        if not (D == p["C"] and p["passes"] == ps):
                            need({4: 6, 8: 10}[ps], "MFMA D -> MFMA C partial overlap")
                    if (D & p["dst"]) and not (D & p["C"]):
                        pass
                elif pk in ("valu",):
                    if D & (p["src"] | p["dst"]):
                        need({4: 8, 8: 12}[ps], "MFMA D -> VALU read/write")
                    if q["C"] & p["dst"]:
                        need({4: 3, 8: 7}[ps], "MFMA SrcC read -> VALU write (WAR)")
                elif pk in ("ds", "vmem"):
                    if D & (p["src"] | p["dst"]):
                        need({4: 8, 8: 12}[ps], "MFMA D -> mem read / load overwrite")
            if qk == "valu":
                if q.get("trans") and pk == "valu" and not p.get("trans") and (q["dst"] & p["src"]):
                    need(1, "trans -> non-trans VALU")
                if q.get("trans") and pk == "valu" and p.get("trans") and (q["dst"] & p["src"]):
                    pass
                if p.get("perm") and (vq & p["src"]):
                    need(2, "VALU write -> permlane")
                if p.get("rfl") and (vq & p["src"]):
                    need(1, "VALU write -> readlane")
                if p.get("dpp") and (vq & p["src"]):
                    need(2, "VALU write -> DPP")
                sq = {r for r in q["dst"] if r[0] == "s"}
                if sq:
                    if pk == "vmem" and (sq & p["src"]):
                        need(5, "VALU writes SGPR -> VMEM")
                    if pk == "valu" and (sq & p["src"]):
                        need(2, "VALU writes SGPR -> VALU read")
                    if pk == "salu" and (sq & p["src"]):
                        need(1, "VALU writes SGPR -> SALU read (conservative)")
            if qk == "salu" and (("s", 124) in q["dst"]) and p.get("lds_dma"):
                need(1, "M0 write -> LDS DMA")
            if qk == "vmem" and q.get("wide") and pk == "valu" and (q.get("store_data", set()) & p["dst"]):
                need(2, "wide store data WAR")
            if qk == "vmem" and q.get("wide") and pk in ("ds", "vmem") and (q.get("store_data", set()) & p["dst"]):
                need(1, "wide store data WAR (load)")
    return errs
```

```python
from asmlib import *
from sched import window_schedule

BLK = 1056
TILE = 16 * BLK
KRING = 0
VRING = 4 * TILE
SPARE = 8 * TILE
LDS_TOTAL = 163840
STAGE = [SPARE, VRING + 2 * TILE, KRING + 2 * TILE]
XOFF = 0
WOFF = 10240
WBLK = 1088
BIAS = 2400

V_TID, V_LANE = 0, 1
V_XDMA, V_WDMA = 2, 3
V_KDMA = 6
V_VDMA = 10
V_KLANE, V_VLANE = 14, 15
V_Q = 16
V_S = [96, 136]
V_CI = 176
V_L = 196
V_T = 201
V_KAD, V_VAD = 216, 217
V_QACC = 96
V_XF = [16, 36]
V_XRD = 56
V_WRD = 59
A_O = 0
A_KF = 160
A_VF = 192
A_WF = [160, 192]

S_X, S_WQ, S_K, S_V, S_O = 16, 20, 24, 28, 32
S_W, S_BR, S_B, S_H = 36, 37, 38, 39
S_XSO, S_XM0, S_WSO, S_WM0 = 40, 41, 42, 43
S_T0, S_T1, S_T2 = 44, 45, 46
S_KM0W = 47
S_KSLOT, S_VSLOT = 48, 49
S_KDSLOT, S_VDSLOT = 50, 51
S_KSOFF, S_VSOFF = 52, 53
S_LOOP = 54
S_SCALE = 55
S_FLAG = 56

def mfma(d, a, b, c):
    return f"v_mfma_f32_16x16x32_bf16 {d}, {a}, {b}, {c}"

class K1:
    def __init__(self, opts=None):
        self.o = opts or {}
        self.A = Asm()
        self.vm = []
    def vm_issue(self, tag, n=1):
        self.vm += [tag] * n
    def vm_wait_n(self, tags):
        last = max(i for i, t in enumerate(self.vm) if t in tags)
        return len(self.vm) - 1 - last

    def setup(self):
        A = self.A
        A("s_cmp_ge_u32 s2, 256")
        A("s_cbranch_scc1 K1_END")
        A("s_and_b32 s3, s2, 7")
        A("s_lshr_b32 s14, s2, 3")
        A(f"s_lshr_b32 s{S_BR}, s3, 2")
        A("s_and_b32 s3, s3, 3")
        A("s_lshl_b32 s3, s3, 2")
        A(f"s_and_b32 s{S_H}, s14, 3")
        A(f"s_add_u32 s{S_H}, s{S_H}, s3")
        A(f"s_lshr_b32 s{S_B}, s14, 2")
        A(f"s_mul_i32 s3, s{S_BR}, 40")
        A("s_add_u32 s14, s0, s3")
        A("s_addc_u32 s15, s1, 0")
        A("s_load_dwordx8 s[4:11], s[14:15], 0")
        A("s_load_dwordx2 s[12:13], s[0:1], 96")
        A(f"v_and_b32 v{V_LANE}, 63, v0")
        A(f"v_lshrrev_b32 v{V_T}, 6, v0")
        A("s_nop 0")
        A(f"v_readfirstlane_b32 s{S_W}, v{V_T}")
        L = V_LANE
        t0, t1, t2 = V_T, V_T + 1, V_T + 2
        A(f"v_lshrrev_b32 v{t0}, 2, v{L}")
        A(f"v_mul_u32_u24 v{t0}, 1152, v{t0}")
        A(f"v_lshrrev_b32 v{t1}, 4, v{L}")
        A(f"v_sub_u32 v{t1}, 0, v{t1}")
        A(f"v_and_b32 v{t1}, 3, v{t1}")
        A(f"v_and_b32 v{t2}, 3, v{L}")
        A(f"v_xor_b32 v{t1}, v{t1}, v{t2}")
        A(f"v_lshl_add_u32 v{V_XDMA}, v{t1}, 4, v{t0}")
        A(f"v_lshrrev_b32 v{t0}, 5, v{L}")
        A(f"v_lshlrev_b32 v{t0}, 16, v{t0}")
        A(f"v_and_b32 v{t1}, 31, v{L}")
        A(f"v_lshl_add_u32 v{V_WDMA}, v{t1}, 4, v{t0}")
        A("s_waitcnt lgkmcnt(0)")
        w, b, h, br = S_W, S_B, S_H, S_BR
        A(f"s_mul_i32 s3, s{b}, 184320")
        A(f"s_add_u32 s{S_X}, s4, s3\ns_addc_u32 s{S_X+1}, s5, 0\ns_mov_b32 s{S_X+2}, 184320\ns_mov_b32 s{S_X+3}, 0x20000")
        A(f"s_lshl_b32 s3, s{h}, 9")
        A(f"s_add_u32 s{S_WQ}, s10, s3\ns_addc_u32 s{S_WQ+1}, s11, 0")
        A(f"s_sub_u32 s{S_WQ+2}, {576*8192}, s3\ns_mov_b32 s{S_WQ+3}, 0x20000")
        A(f"s_lshl_b32 s3, s{b}, 4\ns_add_u32 s3, s3, s{h}")
        A("s_lshr_b32 s14, s3, 14\ns_lshl_b32 s3, s3, 18")
        for (srd, lo) in ((S_K, 6), (S_V, 8)):
            A(f"s_add_u32 s{srd}, s{lo}, s3\ns_addc_u32 s{srd+1}, s{lo+1}, s14")
            A(f"s_sub_u32 s{srd}, s{srd}, {BIAS}\ns_subb_u32 s{srd+1}, s{srd+1}, 0")
            A(f"s_mov_b32 s{srd+2}, {262144+BIAS}\ns_mov_b32 s{srd+3}, 0x20000")
        A(f"s_lshl_b32 s3, s{br}, 3\ns_add_u32 s3, s3, s{b}")
        A(f"s_mul_i32 s3, s3, {10*128*1024}")
        A(f"s_lshl_b32 s14, s{h}, 1\ns_lshr_b32 s15, s{w}, 1\ns_add_u32 s14, s14, s15")
        A("s_lshl_b32 s14, s14, 12")
        A("s_add_u32 s3, s3, s14")
        A(f"s_and_b32 s15, s{w}, 1\ns_mul_i32 s15, s15, {5*128*1024}")
        A("s_add_u32 s3, s3, s15")
        A(f"s_add_u32 s{S_O}, s12, s3\ns_addc_u32 s{S_O+1}, s13, 0")
        A(f"s_mov_b32 s{S_O+2}, {4*128*1024+4096}\ns_mov_b32 s{S_O+3}, 0x20000")
        A(f"s_mul_i32 s3, s{w}, 3\ns_lshl_b32 s14, s{w}, 1\ns_add_u32 s14, s14, 2")
        A(f"s_cmp_lt_u32 s{w}, 2\ns_cselect_b32 s3, s3, s14")
        A(f"s_mul_i32 s{S_XSO}, s3, 18432\ns_lshl_b32 s{S_XM0}, s3, 10")
        A(f"s_and_b32 s3, s{w}, 1\ns_lshl_b32 s3, s3, 2\ns_lshr_b32 s14, s{w}, 1\ns_lshl_b32 s14, s14, 4\ns_add_u32 s3, s3, s14")
        A(f"s_lshl_b32 s{S_WSO}, s3, 13")
        A(f"s_mul_i32 s{S_WM0}, s{w}, {4*WBLK}\ns_add_u32 s{S_WM0}, s{S_WM0}, {WOFF}")
        A(f"s_mul_i32 s{S_KM0W}, s{w}, {4*BLK}")

    def dma_chunk(self, cc, inter=None):
        st = STAGE[cc % 3]
        G = []
        for i in range(3):
            g = [f"s_add_u32 s{S_T0}, s{S_XSO}, {i*18432 + cc*64}",
                 f"s_add_u32 m0, s{S_XM0}, {st + XOFF + i*1024}",
                 "s_nop 0",
                 f"buffer_load_dwordx4 v{V_XDMA}, s[{S_X}:{S_X+3}], s{S_T0} offen lds"]
            G.append(("x", i, g))
        for i in range(4):
            g = [f"s_add_u32 s{S_T1}, s{S_WSO}, {(32*cc + i)*8192}",
                 f"s_add_u32 m0, s{S_WM0}, {st + i*WBLK}",
                 "s_nop 0",
                 f"buffer_load_dwordx4 v{V_WDMA}, s[{S_WQ}:{S_WQ+3}], s{S_T1} offen lds"]
            G.append(("w", i, g))
        return G

    def emit_chunk_dma_group(self, kind, i, g, cc, uid):
        A = self.A
        if kind == "x" and i == 2:
            A(f"s_cmp_ge_u32 s{S_W}, 2")
            A(f"s_cbranch_scc1 K1_SKX_{uid}")
            for l in g: A(l)
            A(f"K1_SKX_{uid}:")
        else:
            for l in g: A(l)
            self.vm_issue(("c", cc))

    def kv_dma(self, kind, tile_imm=None, slot_imm=None):
        nt = " nt" if self.o.get("nt", True) else ""
        srd = S_K if kind == "K" else S_V
        vd = V_KDMA if kind == "K" else V_VDMA
        ring = KRING if kind == "K" else VRING
        L = []
        L.append(f"s_add_u32 m0, s{S_KM0W}, {ring + slot_imm*TILE}")
        L.append(f"s_mov_b32 s{S_T2}, {tile_imm*16384}")
        for i in range(4):
            L.append(f"buffer_load_dwordx4 v{vd+i}, s[{srd}:{srd+3}], s{S_T2} offen offset:{i*BLK}{nt} lds")
        return L

    def setup2(self):
        A = self.A
        L = V_LANE
        t0, t1, t2, t3 = V_T, V_T + 1, V_T + 2, V_T + 3
        w = S_W
        A(f"v_and_b32 v{t0}, 15, v{L}")
        A(f"v_lshrrev_b32 v{t1}, 2, v{t0}")
        A(f"v_sub_u32 v{t1}, 0, v{t1}")
        A(f"v_and_b32 v{t1}, 3, v{t1}")
        A(f"v_lshrrev_b32 v{t2}, 4, v{L}")
        A(f"v_xor_b32 v{t1}, v{t1}, v{t2}")
        A(f"v_lshlrev_b32 v{t1}, 4, v{t1}")
        A(f"v_lshl_add_u32 v{t1}, v{t0}, 6, v{t1}")
        A(f"s_and_b32 s3, s{w}, 1\ns_mul_i32 s3, s3, 5120")
        A(f"v_add_u32 v{t1}, s3, v{t1}")
        for s in range(3):
            A(f"v_add_u32 v{V_XRD+s}, {STAGE[s]+XOFF}, v{t1}")
        A(f"v_lshrrev_b32 v{t0}, 2, v{L}\nv_and_b32 v{t0}, 3, v{t0}")
        A(f"v_lshrrev_b32 v{t1}, 5, v{L}")
        A(f"v_lshl_add_u32 v{t0}, v{t1}, 3, v{t0}")
        A(f"v_mul_u32_u24 v{t0}, {WBLK}, v{t0}")
        A(f"v_lshrrev_b32 v{t1}, 4, v{L}\nv_and_b32 v{t1}, 1, v{t1}")
        A(f"v_lshl_add_u32 v{t0}, v{t1}, 9, v{t0}")
        A(f"v_and_b32 v{t1}, 3, v{L}")
        A(f"v_lshl_add_u32 v{t0}, v{t1}, 4, v{t0}")
        A(f"s_lshr_b32 s3, s{w}, 1\ns_lshl_b32 s3, s3, 8")
        A(f"v_add_u32 v{t0}, s3, v{t0}")
        for s in range(3):
            A(f"v_add_u32 v{V_WRD+s}, {STAGE[s]+WOFF}, v{t0}")
        A(f"v_lshrrev_b32 v{t0}, 4, v{L}\nv_and_b32 v{t1}, 15, v{L}\nv_lshlrev_b32 v{t1}, 4, v{t1}")
        A(f"v_lshl_add_u32 v{t2}, v{t0}, 12, v{t1}")
        A(f"s_lshl_b32 s3, s{w}, 10")
        A(f"v_add_u32 v{t2}, s3, v{t2}")
        for i in range(4):
            A(f"v_add_u32 v{V_KDMA+i}, {BIAS - 800*i}, v{t2}")
        A(f"v_lshl_add_u32 v{t2}, v{t0}, 11, v{t1}")
        A(f"s_lshr_b32 s3, s{w}, 1\ns_lshl_b32 s3, s3, 13\ns_and_b32 s14, s{w}, 1\ns_lshl_b32 s14, s14, 10\ns_add_u32 s3, s3, s14")
        A(f"v_add_u32 v{t2}, s3, v{t2}")
        for i in range(4):
            A(f"v_add_u32 v{V_VDMA+i}, {BIAS - 800*i}, v{t2}")
        A(f"v_and_b32 v{t1}, 15, v{L}\nv_mul_u32_u24 v{t1}, {BLK}, v{t1}")
        A(f"v_lshl_add_u32 v{V_KLANE}, v{t0}, 4, v{t1}")
        A(f"v_lshrrev_b32 v{t1}, 2, v{L}\nv_and_b32 v{t1}, 7, v{t1}")
        A(f"v_mul_u32_u24 v{t1}, {BLK}, v{t1}")
        A(f"v_lshrrev_b32 v{t2}, 5, v{L}")
        A(f"v_lshl_add_u32 v{t1}, v{t2}, 8, v{t1}")
        A(f"v_and_b32 v{t2}, 3, v{L}")
        A(f"v_lshl_add_u32 v{V_VLANE}, v{t2}, 3, v{t1}")

    def frag_reads(self, cc):
        st = cc % 3
        buf = cc & 1
        R = []
        for t in range(5):
            R.append(f"ds_read_b128 {vr(V_XF[buf]+4*t,4)}, v{V_XRD+st} offset:{t*1024}")
        for T in range(8):
            for hh in range(2):
                off = hh * 4 * WBLK + 64 * (T >> 1) + 8 * (T & 1)
                R.append(f"ds_read_b64_tr_b16 {ar(A_WF[buf]+4*T+2*hh,2)}, v{V_WRD+st} offset:{off}")
        return R

    def qproj(self):
        A = self.A
        NC = 18
        uid = 0
        for cc in range(3):
            for (kind, i, g) in self.dma_chunk(cc):
                self.emit_chunk_dma_group(kind, i, g, cc, uid); uid += 1
        self.setup2()
        A(f"s_waitcnt vmcnt({self.vm_wait_n({('c',0)})})")
        A("s_barrier")
        for r in self.frag_reads(0): A(r)
        kv_plan = {9: ("K", 0, 0), 10: ("K", 1, 1), 11: ("V", 0, 0)}
        zero_o = [f"v_accvgpr_write_b32 a{A_O+i}, 0" for i in range(160)]
        zi = 0
        for c in range(NC):
            A.c(f"---- Q-proj chunk {c}")
            if c + 1 < NC:
                A(f"s_waitcnt vmcnt({self.vm_wait_n({('c',c+1)})}) lgkmcnt(0)")
            else:
                A("s_waitcnt lgkmcnt(0)")
            A("s_barrier")
            buf = c & 1
            M = []
            for T in range(8):
                for t in range(5):
                    d = vr(V_QACC + (T*5 + t)*4, 4)
                    M.append(mfma(d, ar(A_WF[buf]+4*T, 4), vr(V_XF[buf]+4*t, 4), d if c > 0 else "0"))
            fill = [[] for _ in range(40)]
            if c + 1 < NC:
                R = self.frag_reads(c + 1)
                for i, r in enumerate(R):
                    fill[1 + (i * 34) // len(R)].append(("ds", r))
            dmas = []
            if c + 3 < NC:
                dmas = self.dma_chunk(c + 3)
            extra = []
            if c in kv_plan:
                k, tile, slot = kv_plan[c]
                extra.append((k, tile, slot))
            if c == NC - 1:
                extra += [("K", 2, 2), ("V", 1, 1), ("K", 3, 3), ("V", 2, 2)]
            gi = 0
            pos = [2, 7, 12, 17, 22, 27, 32]
            for n, (kind, i, g) in enumerate(dmas):
                fill[pos[n]].append(("dma", kind, i, g, c + 3))
            for n, (k, tile, slot) in enumerate(extra):
                fill[36 if len(extra) == 1 else 4 + 9*n].append(("kv", k, tile, slot))
            for m in range(40):
                A(M[m])
                for it in fill[m]:
                    if it[0] == "ds": A(it[1])
                    elif it[0] == "dma":
                        self.emit_chunk_dma_group(it[1], it[2], it[3], it[4], uid); uid += 1
                    elif it[0] == "kv":
                        for l in self.kv_dma(it[1], it[2], it[3]): A(l)
                        self.vm_issue((it[1], it[2]), 4)
                if not fill[m] and zi < len(zero_o):
                    A(zero_o[zi]); zi += 1
                    if zi < len(zero_o): A(zero_o[zi]); zi += 1
        assert zi == len(zero_o), zi

    def qconvert(self):
        A = self.A
        A(f"s_mov_b32 s{S_SCALE}, 0x3e0293ee")
        A("s_nop 7")
        for t in range(5):
            for s in range(4):
                for half in range(2):
                    T = 2*s + half
                    src = V_QACC + (T*5 + t)*4
                    for r in range(4):
                        A(f"v_mul_f32 v{src+r}, s{S_SCALE}, v{src+r}")
                    dst = V_Q + 16*t + 4*s + 2*half
                    A(f"v_cvt_pk_bf16_f32 v{dst}, v{src}, v{src+1}")
                    A(f"v_cvt_pk_bf16_f32 v{dst+1}, v{src+2}, v{src+3}")

    def k_read(self, n, half):
        kt = 2*half + (n >> 2); s = n & 3
        return f"ds_read_b128 {ar(A_KF+4*n,4)}, v{V_KAD} offset:{kt*256 + s*64}"
    def v_read(self, n, mb):
        dt = n >> 1; hh = n & 1
        return f"ds_read_b64_tr_b16 {ar(A_VF+4*dt+2*hh,2)}, v{V_VAD} offset:{mb*8*BLK + hh*512 + dt*32}"
    def qk_mfmas(self, sb, first_c=None):
        M = []
        for ktl in range(2):
            for s in range(4):
                for t in range(5):
                    d = vr(sb + 8*t + 4*ktl, 4)
                    if s == 0:
                        c = vr(V_CI + 4*t, 4) if first_c is None else first_c
                    else:
                        c = d
                    M.append(mfma(d, ar(A_KF + 4*(ktl*4+s), 4), vr(V_Q + 16*t + 4*s, 4), c))
        return M
    def pv_mfmas(self, sb):
        M = []
        for dt in range(8):
            for t in range(5):
                d = ar(A_O + (dt*5 + t)*4, 4)
                M.append(mfma(d, ar(A_VF + 4*dt, 4), vr(sb + 8*t, 4), d))
        return M
    def item(self, it, sb, khalf, vmb, dma):
        k = it[0]
        if k == 'exp':
            r = sb + 8*it[1] + it[2]
            return [f"v_exp_f32 v{r}, v{r}"]
        if k == 'add':
            r = sb + 8*it[1] + it[2]
            return [f"v_add_f32 v{V_L+it[1]}, v{V_L+it[1]}, v{r}"]
        if k == 'cvt':
            r = sb + 8*it[1]
            p = it[2]
            return [f"v_cvt_pk_bf16_f32 v{r+p}, v{r+2*p}, v{r+2*p+1}"]
        if k == 'K':
            return [self.k_read(it[1], khalf)] if khalf is not None else []
        if k == 'V':
            return [self.v_read(it[1], vmb)] if vmb is not None else []
        if k == 'DMA':
            return dma or []
    def phase(self, M, gaps, sb, khalf=None, vmb=None, dma=None, pre=None, head=None):
        A = self.A
        for i in range(40):
            if M is not None:
                A(M[i])
            else:
                A("s_nop 0")
            if head and i in head:
                for l in head[i]: A(l)
            if gaps is not None:
                for it in gaps[i]:
                    for l in self.item(it, sb, khalf, vmb, dma): A(l)

    def loop_dma(self, kind):
        nt = " nt" if self.o.get("nt", True) else ""
        srd = S_K if kind == "K" else S_V
        vd = V_KDMA if kind == "K" else V_VDMA
        so = S_KSOFF if kind == "K" else S_VSOFF
        return [f"buffer_load_dwordx4 v{vd+i}, s[{srd}:{srd+3}], s{so} offen offset:{i*BLK}{nt} lds" for i in range(4)]

    def slot_adv(self, s, base):
        return [f"s_add_u32 s{s}, s{s}, {TILE}",
                f"s_cmp_ge_u32 s{s}, s{S_T0}" if False else None]

    def attention(self):
        A = self.A
        W = window_schedule(exp_end=66, ds_end_a=24, ds_end_b=64)
        GA, GB = W[:40], W[40:]
        S0, S1 = V_S
        A.c("---- attention prologue")
        A(f"s_waitcnt vmcnt({self.vm_wait_n({('K',0)})})")
        A("s_barrier")
        A(f"v_mov_b32 v{V_KAD}, v{V_KLANE}")
        A(f"v_add_u32 v{V_VAD}, {VRING}, v{V_VLANE}")
        for n in range(8): A(self.k_read(n, 0))
        for t in range(5): A(f"v_mov_b32 v{V_L+t}, 0")
        A("s_waitcnt lgkmcnt(0)")
        for m in self.qk_mfmas(S0, first_c="0"): A(m)
        for n in range(8): A(self.k_read(n, 1))
        A("s_nop 7")
        T = V_T
        for t in range(5):
            r = S0 + 8*t
            A(f"v_max3_f32 v{T+t}, v{r}, v{r+1}, v{r+2}")
            A(f"v_max3_f32 v{T+t}, v{T+t}, v{r+3}, v{r+4}")
            A(f"v_max3_f32 v{T+t}, v{T+t}, v{r+5}, v{r+6}")
            A(f"v_max_f32 v{T+t}, v{T+t}, v{r+7}")
        for sw in ("v_permlane32_swap_b32", "v_permlane16_swap_b32"):
            for t in range(5): A(f"v_mov_b32 v{T+5+t}, v{T+t}")
            A("s_nop 1")
            for t in range(5): A(f"{sw} v{T+t}, v{T+5+t}")
            A("s_nop 1")
            for t in range(5): A(f"v_max_f32 v{T+t}, v{T+t}, v{T+5+t}")
        for t in range(5):
            for i in range(8):
                A(f"v_sub_f32 v{S0+8*t+i}, v{S0+8*t+i}, v{T+t}")
            for i in range(4):
                A(f"v_sub_f32 v{V_CI+4*t+i}, 0, v{T+t}")
        self.phase(None, GA, S0, khalf=None)
        A(f"s_mov_b32 s{S_KSLOT}, {KRING + TILE}")
        A(f"s_mov_b32 s{S_VSLOT}, {VRING}")
        A(f"s_add_u32 s{S_KDSLOT}, s{S_KM0W}, {KRING}")
        A(f"s_add_u32 s{S_VDSLOT}, s{S_KM0W}, {VRING + 3*TILE}")
        A(f"s_mov_b32 s{S_KSOFF}, {4*16384}")
        A(f"s_mov_b32 s{S_VSOFF}, {3*16384}")
        A(f"s_mov_b32 s{S_LOOP}, 15")
        def body(last):
            top = ["s_waitcnt vmcnt(16) lgkmcnt(0)" if not last else "s_waitcnt vmcnt(0) lgkmcnt(0)", "s_barrier"]
            for l in top: A(l)
            A(f"v_add_u32 v{V_VAD}, s{S_VSLOT}, v{V_VLANE}")
            head1 = {0: [f"s_mov_b32 m0, s{S_KDSLOT}"]}
            self.phase(self.qk_mfmas(S1), GB, S0, vmb=0, dma=None if last else self.loop_dma("K"), head=head1)
            A("s_waitcnt lgkmcnt(0)")
            A(f"v_add_u32 v{V_KAD}, s{S_KSLOT}, v{V_KLANE}")
            self.phase(self.pv_mfmas(S0), GA, S1, khalf=None if last else 0)
            A("s_waitcnt lgkmcnt(0)")
            head3 = {0: [f"s_mov_b32 m0, s{S_VDSLOT}"]}
            self.phase(None if last else self.qk_mfmas(S0), GB, S1, vmb=1, dma=None if last else self.loop_dma("V"), head=head3)
            A("s_waitcnt lgkmcnt(0)")
            if last:
                A("s_nop 1")
                self.phase(self.pv_mfmas(S1), None, S0)
            else:
                adv = []
                for (s, base, woff) in ((S_KSLOT, KRING, False), (S_VSLOT, VRING, False), (S_KDSLOT, KRING, True), (S_VDSLOT, VRING, True)):
                    adv.append([f"s_add_u32 s{s}, s{s}, {TILE}"])
                head4 = {}
                seq = []
                for (s, base, woff) in ((S_KSLOT, KRING, False), (S_VSLOT, VRING, False), (S_KDSLOT, KRING, True), (S_VDSLOT, VRING, True)):
                    seq.append([f"s_add_u32 s{s}, s{s}, {TILE}", f"s_cmp_ge_u32 s{s}, {base + 4*TILE}"])
                    seq.append([f"s_cselect_b32 s{S_T0}, {4*TILE}, 0", f"s_sub_u32 s{s}, s{s}, s{S_T0}"])
                seq.append([f"s_add_u32 s{S_KSOFF}, s{S_KSOFF}, 16384", f"s_add_u32 s{S_VSOFF}, s{S_VSOFF}, 16384"])
                for n, sq in enumerate(seq):
                    head4[24 + n] = sq
                self.phase(self.pv_mfmas(S0 if False else S1), GA, S0, khalf=1, head=head4)
        A(".p2align 6")
        A("K1_LOOP:")
        start = len(A.lines)
        body(False)
        A(f"s_sub_u32 s{S_LOOP}, s{S_LOOP}, 1")
        A(f"s_cmp_lg_u32 s{S_LOOP}, 0")
        A("s_cbranch_scc1 K1_LOOP")
        self.loop_lines = A.lines[start:]
        body(True)

    def epilogue(self):
        A = self.A
        T = V_T
        A.c("---- epilogue: normalise and store o fragments")
        for sw in ("v_permlane32_swap_b32", "v_permlane16_swap_b32"):
            for t in range(5): A(f"v_mov_b32 v{T+t}, v{V_L+t}")
            A("s_nop 1")
            for t in range(5): A(f"{sw} v{V_L+t}, v{T+t}")
            A("s_nop 1")
            for t in range(5): A(f"v_add_f32 v{V_L+t}, v{V_L+t}, v{T+t}")
        for t in range(5): A(f"v_rcp_f32 v{V_L+t}, v{V_L+t}")
        A(f"v_lshlrev_b32 v{T+10}, 4, v{V_LANE}")
        A("s_nop 7")
        n = 0
        for t in range(5):
            for s in range(4):
                b = V_S[0] + (n % 6) * 12
                for half in range(2):
                    a0 = A_O + ((2*s+half)*5 + t)*4
                    for r in range(4):
                        A(f"v_accvgpr_read_b32 v{b+4*half+r}, a{a0+r}")
                for r in range(8):
                    A(f"v_mul_f32 v{b+r}, v{V_L+t}, v{b+r}")
                for p in range(4):
                    A(f"v_cvt_pk_bf16_f32 v{b+8+p}, v{b+2*p}, v{b+2*p+1}")
                A(f"s_mov_b32 s{S_T0}, {t*128*1024 + s*1024}")
                A(f"buffer_store_dwordx4 {vr(b+8,4)}, v{T+10}, s[{S_O}:{S_O+3}], s{S_T0} offen")
                n += 1

    def build(self):
        A = self.A
        A(".p2align 8\n.type k1_kernel,@function\nk1_kernel:")
        self.setup()
        self.qproj()
        self.qconvert()
        self.attention()
        self.epilogue()
        A("K1_END:")
        A("s_endpgm")
        return A
```

```python
from asmlib import *

D = 4
WST = 6144
WAVE_LDS = D * WST
LDS_TOTAL = 4 * WAVE_LDS

V_LANE = 1
V_WD = 2
V_OB = 8
V_AE, V_AO = 9, 10
V_T = 11
V_ACC = 64
V_B = 160
A_A = [0, 24]

S_O, S_WO, S_OUT = 16, 20, 24
S_W, S_BR, S_MT, S_NT = 36, 37, 38, 39
S_KS = 40
S_OSO = 41
S_WSO = 42
S_M0B = 43
S_T0, S_T1 = 44, 45
S_LOOP = 46

def mfma(d, a, b, c):
    return f"v_mfma_f32_16x16x32_bf16 {d}, {a}, {b}, {c}"

class K2:
    def __init__(self, opts=None):
        self.o = opts or {}
        self.A = Asm()
    def loads_dma(self, st):
        L = []
        for i in range(6):
            L.append([f"s_add_u32 m0, s{S_M0B}, {st*WST + i*1024}",
                      "s_nop 0",
                      f"buffer_load_dwordx4 v{V_WD+i}, s[{S_WO}:{S_WO+3}], s{S_WSO} offen lds"])
        return L
    def loads_b(self, st):
        L = []
        for qi in range(4):
            L.append([f"s_add_u32 s{S_T0}, s{S_OSO}, {qi*131072}",
                      f"buffer_load_dwordx4 {vr(V_B+16*st+4*qi,4)}, v{V_OB}, s[{S_O}:{S_O+3}], s{S_T0} offen"])
        return L
    def adv(self):
        return [f"s_add_u32 s{S_OSO}, s{S_OSO}, 4096", f"s_add_u32 s{S_WSO}, s{S_WSO}, {4*32*1152}"]
    def a_reads(self, st, buf):
        R = []
        for nt in range(6):
            for hh in range(2):
                v = V_AE if nt % 2 == 0 else V_AO
                R.append(f"ds_read_b64_tr_b16 {ar(A_A[buf]+4*nt+2*hh,2)}, v{v} offset:{st*WST + hh*3072 + nt*32}")
        return R
    def build(self):
        A = self.A
        A(".p2align 8\n.type k2_kernel,@function\nk2_kernel:")
        A("s_cmp_ge_u32 s2, 240")
        A("s_cbranch_scc1 K2_END")
        A("s_and_b32 s3, s2, 7\ns_lshr_b32 s14, s2, 3")
        A(f"s_lshr_b32 s{S_BR}, s3, 2\ns_and_b32 s3, s3, 3")
        A("s_mul_i32 s15, s14, 43\ns_lshr_b32 s15, s15, 8")
        A(f"s_mul_i32 s{S_NT}, s15, 6\ns_sub_u32 s{S_NT}, s14, s{S_NT}")
        A(f"s_mul_i32 s{S_MT}, s3, 5\ns_add_u32 s{S_MT}, s{S_MT}, s15")
        A(f"s_mul_i32 s3, s{S_BR}, 40\ns_add_u32 s14, s0, s3\ns_addc_u32 s15, s1, 0")
        A("s_load_dwordx2 s[4:5], s[14:15], 32")
        A("s_load_dwordx2 s[6:7], s[0:1], 80")
        A("s_load_dwordx2 s[8:9], s[0:1], 96")
        L = V_LANE
        A(f"v_and_b32 v{L}, 63, v0\nv_lshrrev_b32 v{V_T}, 6, v0\ns_nop 0\nv_readfirstlane_b32 s{S_W}, v{V_T}")
        t0, t1, t2, t3 = V_T, V_T+1, V_T+2, V_T+3
        for i in range(6):
            A(f"v_add_u32 v{t0}, {64*i}, v{L}")
            A(f"v_mul_u32_u24 v{t1}, 43691, v{t0}\nv_lshrrev_b32 v{t1}, 19, v{t1}")
            A(f"v_mul_u32_u24 v{t2}, 12, v{t1}\nv_sub_u32 v{t2}, v{t0}, v{t2}")
            A(f"v_lshrrev_b32 v{t3}, 2, v{t1}\nv_and_b32 v{t3}, 1, v{t3}\nv_lshlrev_b32 v{t3}, 1, v{t3}")
            A(f"v_xor_b32 v{t2}, v{t2}, v{t3}")
            A(f"v_mul_u32_u24 v{t1}, 1152, v{t1}")
            A(f"v_lshl_add_u32 v{V_WD+i}, v{t2}, 4, v{t1}")
        A(f"v_lshlrev_b32 v{V_OB}, 4, v{L}")
        A(f"v_lshrrev_b32 v{t0}, 2, v{L}\nv_mul_u32_u24 v{t0}, 192, v{t0}")
        A(f"v_and_b32 v{t1}, 3, v{L}\nv_lshl_add_u32 v{t0}, v{t1}, 3, v{t0}")
        A(f"v_lshrrev_b32 v{t1}, 4, v{L}\nv_and_b32 v{t1}, 1, v{t1}\nv_lshlrev_b32 v{t1}, 5, v{t1}")
        A("s_waitcnt lgkmcnt(0)")
        A(f"s_mul_i32 s{S_M0B}, s{S_W}, {WAVE_LDS}")
        A(f"v_add_u32 v{t0}, s{S_M0B}, v{t0}")
        A(f"v_add_u32 v{V_AE}, v{t0}, v{t1}\nv_sub_u32 v{V_AO}, v{t0}, v{t1}")
        A(f"s_mul_i32 s3, s{S_BR}, 80\ns_lshl_b32 s14, s{S_MT}, 2\ns_add_u32 s3, s3, s14\ns_lshl_b32 s3, s3, 17")
        A(f"s_add_u32 s{S_O}, s8, s3\ns_addc_u32 s{S_O+1}, s9, 0\ns_mov_b32 s{S_O+2}, {4*131072}\ns_mov_b32 s{S_O+3}, 0x20000")
        A(f"s_mul_i32 s3, s{S_NT}, 192")
        A(f"s_add_u32 s{S_WO}, s4, s3\ns_addc_u32 s{S_WO+1}, s5, 0\ns_sub_u32 s{S_WO+2}, {4096*1152}, s3\ns_mov_b32 s{S_WO+3}, 0x20000")
        A(f"s_lshl_b32 s3, s{S_MT}, 6\ns_lshl_b32 s14, s{S_W}, 4\ns_add_u32 s3, s3, s14\ns_mul_i32 s3, s3, 2304")
        A(f"s_mul_i32 s14, s{S_BR}, 1152\ns_add_u32 s3, s3, s14\ns_mul_i32 s14, s{S_NT}, 192\ns_add_u32 s3, s3, s14")
        A(f"s_add_u32 s{S_OUT}, s6, s3\ns_addc_u32 s{S_OUT+1}, s7, 0")
        A(f"s_sub_u32 s{S_OUT+2}, {1280*2304}, s3\ns_mov_b32 s{S_OUT+3}, 0x20000")
        A(f"s_lshl_b32 s{S_OSO}, s{S_W}, 10\ns_mul_i32 s{S_WSO}, s{S_W}, {32*1152}")
        for st in range(D):
            for g in self.loads_dma(st):
                for l in g: A(l)
            for g in self.loads_b(st):
                for l in g: A(l)
            for l in self.adv(): A(l)
        A("s_waitcnt vmcnt(30)")
        for r in self.a_reads(0, 0): A(r)
        def iteration(st, it, loads, first):
            buf = it & 1
            nxt = (st + 1) % D
            M = []
            for nt in range(6):
                for qi in range(4):
                    d = vr(V_ACC + (nt*4+qi)*4, 4)
                    M.append(mfma(d, ar(A_A[buf]+4*nt, 4), vr(V_B+16*st+4*qi, 4), "0" if first else d))
            return M, buf, nxt
        total = 32
        def emit_iter(it, loads, vmn, has_next, first=False):
            st = it % D
            M, buf, nxt = iteration(st, it, loads, first)
            if has_next:
                A(f"s_waitcnt vmcnt({vmn}) lgkmcnt(0)")
            else:
                A(f"s_waitcnt vmcnt(0) lgkmcnt(0)")
            fill = [[] for _ in range(24)]
            if has_next:
                R = self.a_reads(nxt, buf ^ 1)
                for i, r in enumerate(R): fill[1 + i].append(r)
            if loads:
                G = self.loads_dma(st)
                for i, g in enumerate(G): fill[2 + 3*i] += g
            for m in range(24):
                A(M[m])
                for l in fill[m]: A(l)
            if loads:
                for g in self.loads_b(st):
                    for l in g: A(l)
                for l in self.adv(): A(l)
        for it in range(4):
            emit_iter(it, True, 20, True, first=(it == 0))
        A(f"s_mov_b32 s{S_LOOP}, 6")
        A(".p2align 6\nK2_LOOP:")
        start = len(A.lines)
        for it in range(4, 8):
            emit_iter(it, True, 20, True)
        A(f"s_sub_u32 s{S_LOOP}, s{S_LOOP}, 1\ns_cmp_lg_u32 s{S_LOOP}, 0\ns_cbranch_scc1 K2_LOOP")
        self.loop_lines = A.lines[start:]
        emit_iter(28, False, 20, True)
        emit_iter(29, False, 10, True)
        emit_iter(30, False, 0, True)
        emit_iter(31, False, 0, False)
        A("s_barrier")
        A(f"s_mul_i32 s{S_T0}, s{S_W}, 24576")
        A(f"v_lshlrev_b32 v{V_T}, 4, v{V_LANE}")
        A(f"v_add_u32 v{V_T+1}, s{S_T0}, v{V_T}")
        A("s_nop 7")
        for tl in range(24):
            A(f"ds_write_b128 v{V_T+1}, {vr(V_ACC+4*tl,4)} offset:{tl*1024}")
        A("s_waitcnt lgkmcnt(0)")
        A("s_barrier")
        A(f"s_lshl_b32 s{S_T0}, s{S_W}, 10")
        A(f"v_add_u32 v{V_T+1}, s{S_T0}, v{V_T}")
        A(f"v_add_u32 v{V_T+2}, {2*24576}, v{V_T+1}")
        for nt in range(6):
            for src in range(4):
                base = V_T+1 if src < 2 else V_T+2
                A(f"ds_read_b128 {vr(V_ACC+(nt*4+src)*4,4)}, v{base} offset:{(src & 1)*24576 + nt*4096}")
        A(f"v_and_b32 v{V_T+3}, 15, v{V_LANE}\nv_mul_u32_u24 v{V_T+3}, 2304, v{V_T+3}")
        A(f"v_lshrrev_b32 v{V_T+4}, 4, v{V_LANE}\nv_lshl_add_u32 v{V_T+3}, v{V_T+4}, 3, v{V_T+3}")
        for nt in range(6):
            A(f"s_waitcnt lgkmcnt({max(0, 15 if (5-nt)*4 > 15 else (5-nt)*4)})")
            b = V_ACC + nt*16
            for r in range(4):
                A(f"v_add_f32 v{b+r}, v{b+r}, v{b+4+r}")
                A(f"v_add_f32 v{b+8+r}, v{b+8+r}, v{b+12+r}")
            for r in range(4):
                A(f"v_add_f32 v{b+r}, v{b+r}, v{b+8+r}")
            A(f"v_cvt_pk_bf16_f32 v{b+4}, v{b}, v{b+1}")
            A(f"v_cvt_pk_bf16_f32 v{b+5}, v{b+2}, v{b+3}")
            A(f"buffer_store_dwordx2 {vr(b+4,2)}, v{V_T+3}, s[{S_OUT}:{S_OUT+3}], 0 offen offset:{nt*32}")
        A("K2_END:")
        A("s_endpgm")
        return A
```

```python
def window_schedule(NT=5, nK=8, nV=16, dma_gaps=(41,), exp_end=75, ds_end_a=32, ds_end_b=72, verbose=False, extra_first=6):
    exps = [(t, i) for i0 in (0, 4) for t in range(NT) for i in range(i0, i0 + 4)]
    exp_gap = {}
    add_gap = {}
    cvt_gap = {}
    gaps = [[] for _ in range(80)]
    ne = 0
    adds_pending = []
    cvt_done = set()
    kdone = vdone = 0
    def cvt_ready(g):
        out = []
        for t in range(NT):
            for p in range(4):
                if (t, p) in cvt_gap: continue
                if p > 0 and (t, p - 1) not in cvt_gap: break
                a, b = (t, 2 * p), (t, 2 * p + 1)
                if a in exp_gap and b in exp_gap and exp_gap[a] < g and exp_gap[b] < g:
                    if (t, p) in add_gap:
                        out.append((t, p))
                break
        return out
    for g in range(80):
        if g in dma_gaps:
            gaps[g].append(('DMA',))
            continue
        phaseA = g < 40
        if phaseA:
            ds_left = nK - kdone
            ds_target = min(nK, int((g + 1) * nK / ds_end_a + 0.999))
            ds_due = kdone < ds_target
        else:
            ds_left = nV - vdone
            ds_target = min(nV, int((g - 39) * nV / (ds_end_b - 39) + 0.999))
            ds_due = vdone < ds_target
        exp_target = min(len(exps), int((g + 1) * len(exps) / exp_end + 0.999))
        exp_avail = ne < len(exps) and (exps[ne][1] < 4 or g >= extra_first)
        ready4 = [('cvt',) + c for c in cvt_ready(g)] + [('add',) + a for a in adds_pending if exp_gap[a] < g]
        nslots_fill = len(ready4) + (1 if ds_due else 0)
        do_exp = exp_avail and (ne < exp_target or nslots_fill < 2)
        if do_exp:
            if ds_due and ((phaseA and kdone + 1 < ds_target) or ((not phaseA) and vdone + 1 < ds_target)):
                if phaseA: gaps[g].append(('K', kdone)); kdone += 1
                else: gaps[g].append(('V', vdone)); vdone += 1
            e = exps[ne]; ne += 1
            exp_gap[e] = g
            adds_pending.append(e)
            gaps[g].append(('exp',) + e)
        else:
            slots = 2
            if ds_due:
                if phaseA: gaps[g].append(('K', kdone)); kdone += 1
                else: gaps[g].append(('V', vdone)); vdone += 1
                slots -= 1
            while slots > 0:
                ready4 = [('cvt',) + c for c in cvt_ready(g)] + [('add',) + a for a in adds_pending if exp_gap[a] < g]
                if not ready4: break
                it = ready4[0]
                gaps[g].append(it)
                if it[0] == 'cvt': cvt_gap[(it[1], it[2])] = g
                else:
                    add_gap[(it[1], it[2])] = g; adds_pending.remove((it[1], it[2]))
                slots -= 1
    g = 79
    left = True
    tail_g = 76
    while True:
        ready4 = [('cvt',) + c for c in cvt_ready(80)] + [('add',) + a for a in adds_pending]
        if not ready4: break
        it = ready4[0]
        gaps[78].append(it)
        if it[0] == 'cvt': cvt_gap[(it[1], it[2])] = 78
        else:
            add_gap[(it[1], it[2])] = 78; adds_pending.remove((it[1], it[2]))
    assert ne == len(exps) and kdone == nK and vdone == nV, (ne, kdone, vdone)
    assert len(cvt_gap) == NT * 4 and len(add_gap) == NT * 8
    if verbose:
        tot = 0
        for g in range(80):
            c = gap_cost(gaps[g]); tot += c
            print(g, c, gaps[g])
        print("total", tot)
    return gaps

def gap_cost(items):
    t = 4
    vfree = 8
    cur = 4
    for it in items:
        k = it[0]
        if k in ('K', 'V'):
            vfree = max(vfree, cur + 8); mf = cur + 12; cur += 4
        elif k == 'DMA':
            return 16 + 18
        else:
            st = max(cur, vfree)
            d = 8 if k == 'exp' else 4
            vfree = st + d; cur = st + 4
    end = max(16, vfree)
    ds = [i for i, it in enumerate(items) if it[0] in ('K', 'V')]
    if ds:
        end = max(end, 4 + 4 * ds[-1] + 12)
    return end

if __name__ == "__main__":
    import itertools
    best = None
    for exp_end in range(66, 79):
        for ds_end_a in (24, 28, 32, 36):
            for ds_end_b in (64, 68, 72, 74):
                try:
                    gs = window_schedule(exp_end=exp_end, ds_end_a=ds_end_a, ds_end_b=ds_end_b)
                except AssertionError:
                    continue
                tot = sum(gap_cost(x) for x in gs)
                if best is None or tot < best[0]:
                    best = (tot, exp_end, ds_end_a, ds_end_b)
    print(best)
    window_schedule(exp_end=best[1], ds_end_a=best[2], ds_end_b=best[3], verbose=True)
```

```python
import sys
from asmlib import *
import k1, k2

HEADER = open("concat_heads__gqa_block_cached__gqa_block_cached__near_ridge.s.ref").read().split("; Override launch")[0]

def desc(name, vgpr, accum, sgpr=102):
    return f""".amdhsa_kernel {name}
  .amdhsa_next_free_vgpr {vgpr}
  .amdhsa_next_free_sgpr {sgpr}
  .amdhsa_accum_offset {accum}
  .amdhsa_group_segment_fixed_size 0
  .amdhsa_kernarg_size 104
  .amdhsa_user_sgpr_count 2
  .amdhsa_user_sgpr_kernarg_segment_ptr 1
  .amdhsa_system_sgpr_workgroup_id_x 1
.end_amdhsa_kernel
"""

def build(opts=None, only=None):
    opts = opts or {}
    a1 = k1.K1(opts); t1 = a1.build()
    a2 = k2.K2(opts); t2 = a2.build()
    errs = check_hazards(t1.lines, "k1") + check_hazards(a1.loop_lines * 2, "k1loop") + check_hazards(t2.lines, "k2") + check_hazards(a2.loop_lines * 2, "k2loop")
    for e in errs: print("HAZARD:", e, file=sys.stderr)
    s = HEADER
    s += f"; @launch kernel=k1_kernel grid=(256,1,1) block=(256,1,1) lds={k1.LDS_TOTAL}\n"
    s += f"; @launch kernel=k2_kernel grid=(240,1,1) block=(256,1,1) lds={k2.LDS_TOTAL}\n"
    s += '.amdgcn_target "amdgcn-amd-amdhsa--gfx950"\n.text\n.globl k1_kernel\n.globl k2_kernel\n'
    s += t1.text() + t2.text()
    s += '.section .rodata,"a"\n.p2align 6\n' + desc("k1_kernel", 512, 256) + ".p2align 6\n" + desc("k2_kernel", 512, 256)
    return s, errs

if __name__ == "__main__":
    out = sys.argv[1] if len(sys.argv) > 1 else "concat_heads__gqa_block_cached__gqa_block_cached__near_ridge.s"
    s, errs = build()
    open(out, "w").write(s)
    print("wrote", out, len(s), "bytes;", len(errs), "hazards")
```

```python
from asmlib import *
from sched import window_schedule

BLK = 1056
TILE = 16 * BLK
KRING = 0
VRING = 4 * TILE
SPARE = 8 * TILE
LDS_TOTAL = 163840
STAGE = [SPARE, VRING + 2 * TILE, KRING + 2 * TILE]
XOFF = 0
WOFF = 10240
WBLK = 1088
BIAS = 2400

V_TID, V_LANE = 0, 1
V_XDMA, V_WDMA = 2, 3
V_KDMA = 6
V_VDMA = 10
V_KLANE, V_VLANE = 14, 15
V_Q = 16
V_S = [96, 136]
V_CI = 176
V_L = 196
V_T = 201
V_KAD, V_VAD = 216, 217
V_QACC = 96
V_XF = [16, 36]
V_XRD = 56
V_WRD = 59
A_O = 0
A_KF = 160
A_VF = 192
A_WF = [160, 192]

S_X, S_WQ, S_K, S_V, S_O = 16, 20, 24, 28, 32
S_W, S_BR, S_B, S_H = 36, 37, 38, 39
S_XSO, S_XM0, S_WSO, S_WM0 = 40, 41, 42, 43
S_T0, S_T1, S_T2 = 44, 45, 46
S_KM0W = 47
S_KSLOT, S_VSLOT = 48, 49
S_KDSLOT, S_VDSLOT = 50, 51
S_KSOFF, S_VSOFF = 52, 53
S_LOOP = 54
S_SCALE = 55
S_FLAG = 56

def mfma(d, a, b, c):
    return f"v_mfma_f32_16x16x32_bf16 {d}, {a}, {b}, {c}"

class K1:
    def __init__(self, opts=None):
        self.o = opts or {}
        self.A = Asm()
        self.QS = 131072 + self.o.get("qpad", 0)
        self.vm = []
    def stamp(self):
        if not self.o.get("prof"): return
        i = self.nst = getattr(self, "nst", 0) + 1
        b = 60 + (i-1)*4
        self.A(f"s_memtime s[{b}:{b+1}]")
        self.A(f"s_memrealtime s[{b+2}:{b+3}]")
    def dump_stamps(self, wgs="s2"):
        if not self.o.get("prof"): return
        A = self.A
        A("s_waitcnt lgkmcnt(0) vmcnt(0)")
        A("s_load_dwordx2 s[4:5], s[0:1], 96")
        A("s_waitcnt lgkmcnt(0)")
        A(f"s_add_u32 s4, s4, {self.o.get('profoff', 128<<20)}\ns_addc_u32 s5, s5, 0\ns_mov_b32 s6, 0x100000\ns_mov_b32 s7, 0x20000")
        A(f"s_lshl_b32 s3, s2, 2\ns_add_u32 s3, s3, s{S_W}\ns_lshl_b32 s3, s3, 7")
        A("s_mov_b64 exec, 1")
        for i in range(self.nst):
            b = 60 + i*4
            A(f"v_mov_b32 v2, s{b}\nv_mov_b32 v3, s{b+2}\nv_mov_b32 v4, s3")
            A(f"buffer_store_dwordx2 v[2:3], v4, s[4:7], 0 offen offset:{i*8}")
            A("s_nop 1")
    def vm_issue(self, tag, n=1):
        self.vm += [tag] * n
    def vm_wait_n(self, tags):
        last = max(i for i, t in enumerate(self.vm) if t in tags)
        return len(self.vm) - 1 - last

    def setup(self):
        A = self.A
        A("s_cmp_ge_u32 s2, 256")
        A("s_cbranch_scc1 K1_END")
        A("s_and_b32 s3, s2, 7")
        A("s_lshr_b32 s14, s2, 3")
        A(f"s_lshr_b32 s{S_BR}, s3, 2")
        A("s_and_b32 s3, s3, 3")
        A("s_lshl_b32 s3, s3, 2")
        A(f"s_and_b32 s{S_H}, s14, 3")
        A(f"s_add_u32 s{S_H}, s{S_H}, s3")
        A(f"s_lshr_b32 s{S_B}, s14, 2")
        A(f"s_mul_i32 s3, s{S_BR}, 40")
        A("s_add_u32 s14, s0, s3")
        A("s_addc_u32 s15, s1, 0")
        A("s_load_dwordx8 s[4:11], s[14:15], 0")
        A("s_load_dwordx2 s[12:13], s[0:1], 96")
        A(f"v_and_b32 v{V_LANE}, 63, v0")
        A(f"v_lshrrev_b32 v{V_T}, 6, v0")
        A("s_nop 0")
        A(f"v_readfirstlane_b32 s{S_W}, v{V_T}")
        L = V_LANE
        t0, t1, t2 = V_T, V_T + 1, V_T + 2
        A(f"v_lshrrev_b32 v{t0}, 2, v{L}")
        A(f"v_mul_u32_u24 v{t0}, 1152, v{t0}")
        A(f"v_lshrrev_b32 v{t1}, 4, v{L}")
        A(f"v_sub_u32 v{t1}, 0, v{t1}")
        A(f"v_and_b32 v{t1}, 3, v{t1}")
        A(f"v_and_b32 v{t2}, 3, v{L}")
        A(f"v_xor_b32 v{t1}, v{t1}, v{t2}")
        A(f"v_lshl_add_u32 v{V_XDMA}, v{t1}, 4, v{t0}")
        A(f"v_lshrrev_b32 v{t0}, 5, v{L}")
        A(f"v_lshlrev_b32 v{t0}, 16, v{t0}")
        A(f"v_and_b32 v{t1}, 31, v{L}")
        A(f"v_lshl_add_u32 v{V_WDMA}, v{t1}, 4, v{t0}")
        A("s_waitcnt lgkmcnt(0)")
        w, b, h, br = S_W, S_B, S_H, S_BR
        A(f"s_mul_i32 s3, s{b}, 184320")
        A(f"s_add_u32 s{S_X}, s4, s3\ns_addc_u32 s{S_X+1}, s5, 0\ns_mov_b32 s{S_X+2}, 184320\ns_mov_b32 s{S_X+3}, 0x20000")
        A(f"s_lshl_b32 s3, s{h}, 9")
        A(f"s_add_u32 s{S_WQ}, s10, s3\ns_addc_u32 s{S_WQ+1}, s11, 0")
        A(f"s_sub_u32 s{S_WQ+2}, {576*8192}, s3\ns_mov_b32 s{S_WQ+3}, 0x20000")
        A(f"s_lshl_b32 s3, s{b}, 4\ns_add_u32 s3, s3, s{h}")
        A("s_lshr_b32 s14, s3, 14\ns_lshl_b32 s3, s3, 18")
        for (srd, lo) in ((S_K, 6), (S_V, 8)):
            A(f"s_add_u32 s{srd}, s{lo}, s3\ns_addc_u32 s{srd+1}, s{lo+1}, s14")
            A(f"s_sub_u32 s{srd}, s{srd}, {BIAS}\ns_subb_u32 s{srd+1}, s{srd+1}, 0")
            A(f"s_mov_b32 s{srd+2}, {262144+BIAS}\ns_mov_b32 s{srd+3}, 0x20000")
        A(f"s_lshl_b32 s3, s{br}, 3\ns_add_u32 s3, s3, s{b}")
        A(f"s_mul_i32 s3, s3, {10*self.QS}")
        A(f"s_lshl_b32 s14, s{h}, 1\ns_lshr_b32 s15, s{w}, 1\ns_add_u32 s14, s14, s15")
        A("s_lshl_b32 s14, s14, 12")
        A("s_add_u32 s3, s3, s14")
        A(f"s_and_b32 s15, s{w}, 1\ns_mul_i32 s15, s15, {5*self.QS}")
        A("s_add_u32 s3, s3, s15")
        A(f"s_add_u32 s{S_O}, s12, s3\ns_addc_u32 s{S_O+1}, s13, 0")
        A(f"s_mov_b32 s{S_O+2}, {4*self.QS+4096}\ns_mov_b32 s{S_O+3}, 0x20000")
        A(f"s_mul_i32 s3, s{w}, 3\ns_lshl_b32 s14, s{w}, 1\ns_add_u32 s14, s14, 1")
        A(f"s_cmp_lt_u32 s{w}, 2\ns_cselect_b32 s3, s3, s14")
        A(f"s_mul_i32 s{S_XSO}, s3, 18432\ns_lshl_b32 s{S_XM0}, s3, 10")
        A(f"s_and_b32 s3, s{w}, 1\ns_lshl_b32 s3, s3, 2\ns_lshr_b32 s14, s{w}, 1\ns_lshl_b32 s14, s14, 4\ns_add_u32 s3, s3, s14")
        A(f"s_lshl_b32 s{S_WSO}, s3, 13")
        A(f"s_mul_i32 s{S_WM0}, s{w}, {4*WBLK}\ns_add_u32 s{S_WM0}, s{S_WM0}, {WOFF}")
        A(f"s_mul_i32 s{S_KM0W}, s{w}, {4*BLK}")

    def dma_chunk(self, cc, inter=None):
        st = STAGE[cc % 3]
        G = []
        for i in range(3):
            g = [f"s_add_u32 s{S_T0}, s{S_XSO}, {i*18432 + cc*64}",
                 f"s_add_u32 m0, s{S_XM0}, {st + XOFF + i*1024}",
                 "s_nop 0",
                 f"buffer_load_dwordx4 v{V_XDMA}, s[{S_X}:{S_X+3}], s{S_T0} offen{self.o.get('ntq','')} lds"]
            G.append(("x", i, g))
        for i in range(4):
            g = [f"s_add_u32 s{S_T1}, s{S_WSO}, {(32*cc + i)*8192}",
                 f"s_add_u32 m0, s{S_WM0}, {st + i*WBLK}",
                 "s_nop 0",
                 f"buffer_load_dwordx4 v{V_WDMA}, s[{S_WQ}:{S_WQ+3}], s{S_T1} offen{self.o.get('ntq','')} lds"]
            G.append(("w", i, g))
        return G

    def emit_chunk_dma_group(self, kind, i, g, cc, uid):
        A = self.A
        if kind == "x" and i == 2:
            A(f"s_cmp_ge_u32 s{S_W}, 2")
            A(f"s_cbranch_scc1 K1_SKX_{uid}")
            for l in g: A(l)
            A(f"K1_SKX_{uid}:")
        else:
            for l in g: A(l)
            self.vm_issue(("c", cc))

    def kv_dma(self, kind, tile_imm=None, slot_imm=None):
        nt = " nt" if self.o.get("nt", True) else ""
        srd = S_K if kind == "K" else S_V
        vd = V_KDMA if kind == "K" else V_VDMA
        ring = KRING if kind == "K" else VRING
        L = []
        L.append(f"s_add_u32 m0, s{S_KM0W}, {ring + slot_imm*TILE}")
        L.append(f"s_mov_b32 s{S_T2}, {tile_imm*16384}")
        for i in range(4):
            L.append(f"buffer_load_dwordx4 v{vd+i}, s[{srd}:{srd+3}], s{S_T2} offen offset:{i*BLK}{nt} lds")
        return L

    def setup2(self):
        A = self.A
        L = V_LANE
        t0, t1, t2, t3 = V_T, V_T + 1, V_T + 2, V_T + 3
        w = S_W
        A(f"v_and_b32 v{t0}, 15, v{L}")
        A(f"v_lshrrev_b32 v{t1}, 2, v{t0}")
        A(f"v_sub_u32 v{t1}, 0, v{t1}")
        A(f"v_and_b32 v{t1}, 3, v{t1}")
        A(f"v_lshrrev_b32 v{t2}, 4, v{L}")
        A(f"v_xor_b32 v{t1}, v{t1}, v{t2}")
        A(f"v_lshlrev_b32 v{t1}, 4, v{t1}")
        A(f"v_lshl_add_u32 v{t1}, v{t0}, 6, v{t1}")
        A(f"s_and_b32 s3, s{w}, 1\ns_mul_i32 s3, s3, 5120")
        A(f"v_add_u32 v{t1}, s3, v{t1}")
        A(f"v_add_u32 v{V_XRD+1}, {XOFF}, v{t1}")
        A(f"v_lshrrev_b32 v{t0}, 2, v{L}\nv_and_b32 v{t0}, 3, v{t0}")
        A(f"v_lshrrev_b32 v{t1}, 5, v{L}")
        A(f"v_lshl_add_u32 v{t0}, v{t1}, 3, v{t0}")
        A(f"v_mul_u32_u24 v{t0}, {WBLK}, v{t0}")
        A(f"v_lshrrev_b32 v{t1}, 4, v{L}\nv_and_b32 v{t1}, 1, v{t1}")
        A(f"v_lshl_add_u32 v{t0}, v{t1}, 9, v{t0}")
        A(f"v_and_b32 v{t1}, 3, v{L}")
        A(f"v_lshl_add_u32 v{t0}, v{t1}, 4, v{t0}")
        A(f"s_lshr_b32 s3, s{w}, 1\ns_lshl_b32 s3, s3, 8")
        A(f"v_add_u32 v{t0}, s3, v{t0}")
        A(f"v_add_u32 v{V_WRD+1}, {WOFF}, v{t0}")

    def setup_kv(self):
        A = self.A
        L = V_LANE
        t0, t1, t2, t3 = V_T, V_T + 1, V_T + 2, V_T + 3
        w = S_W
        A(f"v_lshrrev_b32 v{t0}, 4, v{L}\nv_and_b32 v{t1}, 15, v{L}\nv_lshlrev_b32 v{t1}, 4, v{t1}")
        A(f"v_lshl_add_u32 v{t2}, v{t0}, 12, v{t1}")
        A(f"s_lshl_b32 s3, s{w}, 10")
        A(f"v_add_u32 v{t2}, s3, v{t2}")
        for i in range(4):
            A(f"v_add_u32 v{V_KDMA+i}, {BIAS - 800*i}, v{t2}")
        A(f"v_lshl_add_u32 v{t2}, v{t0}, 11, v{t1}")
        A(f"s_lshr_b32 s3, s{w}, 1\ns_lshl_b32 s3, s3, 13\ns_and_b32 s14, s{w}, 1\ns_lshl_b32 s14, s14, 10\ns_add_u32 s3, s3, s14")
        A(f"v_add_u32 v{t2}, s3, v{t2}")
        for i in range(4):
            A(f"v_add_u32 v{V_VDMA+i}, {BIAS - 800*i}, v{t2}")
        A(f"v_and_b32 v{t1}, 15, v{L}\nv_mul_u32_u24 v{t1}, {BLK}, v{t1}")
        A(f"v_lshl_add_u32 v{V_KLANE}, v{t0}, 4, v{t1}")
        A(f"v_lshrrev_b32 v{t1}, 2, v{L}\nv_and_b32 v{t1}, 7, v{t1}")
        A(f"v_mul_u32_u24 v{t1}, {BLK}, v{t1}")
        A(f"v_lshrrev_b32 v{t2}, 5, v{L}")
        A(f"v_lshl_add_u32 v{t1}, v{t2}, 8, v{t1}")
        A(f"v_and_b32 v{t2}, 3, v{L}")
        A(f"v_lshl_add_u32 v{V_VLANE}, v{t2}, 3, v{t1}")

    def warm(self):
        mode = self.o.get("warm", None)
        if mode is None: return
        A = self.A
        gran = self.o.get("wgran", 128)
        pol = mode
        A(f"s_mov_b32 s84, s4\ns_mov_b32 s85, s5\ns_mov_b32 s86, {8*184320}\ns_mov_b32 s87, 0x20000")
        A(f"s_and_b32 s3, s2, 3\ns_lshl_b32 s3, s3, 11")
        A(f"s_add_u32 s88, s10, s3\ns_addc_u32 s89, s11, 0\ns_sub_u32 s90, {576*8192}, s3\ns_mov_b32 s91, 0x20000")
        A(f"s_lshr_b32 s3, s2, 3\ns_lshl_b32 s3, s3, 8")
        t0, t1, t2 = 72, 73, 74
        A(f"v_add_u32 v{t0}, s3, v0")
        nx = (8*184320 // gran + 8191) // 8192
        nw = (576*2048 // gran + 8191) // 8192
        lg = {128: 7, 64: 6}[gran]
        per_row = 2048 // gran
        lgr = {16: 4, 32: 5}[per_row]
        d = 76
        for i in range(max(nx, nw)):
            if i < nw:
                A(f"v_add_u32 v{t1}, {8192*i}, v{t0}")
                A(f"v_lshrrev_b32 v{t2}, {lgr}, v{t1}\nv_lshlrev_b32 v{t2}, 13, v{t2}")
                A(f"v_and_b32 v{t1}, {per_row-1}, v{t1}\nv_lshl_add_u32 v{t1}, v{t1}, {lg}, v{t2}")
                A(f"buffer_load_dword v{d}, v{t1}, s[88:91], 0 offen{pol}"); d += 1
                self.vm_issue(("warm",))
            if i < nx:
                A(f"v_add_u32 v{t1}, {8192*i}, v{t0}\nv_lshlrev_b32 v{t1}, {lg}, v{t1}")
                A(f"buffer_load_dword v{d}, v{t1}, s[84:87], 0 offen{pol}"); d += 1
                self.vm_issue(("warm",))

    def frag_reads(self, cc):
        st = cc % 3
        buf = cc & 1
        R = []
        for t in range(5):
            R.append(f"ds_read_b128 {vr(V_XF[buf]+4*t,4)}, v{V_XRD+st} offset:{t*1024}")
        for T in range(8):
            for hh in range(2):
                off = hh * 4 * WBLK + 64 * (T >> 1) + 8 * (T & 1)
                R.append(f"ds_read_b64_tr_b16 {ar(A_WF[buf]+4*T+2*hh,2)}, v{V_WRD+st} offset:{off}")
        return R

    def qproj(self):
        A = self.A
        NC = 18
        SC, ST0, ST1, ST2, XS, WS = 92, 93, 94, 95, 96, 97
        XA, WA = V_XRD, V_WRD
        XL, WL = V_XRD + 1, V_WRD + 1
        XD = [V_XDMA, 62, 63]
        WD = [V_WDMA, 64, 65, 66]
        ntq = self.o.get('ntq', '')
        for n in (1, 2): A(f"v_add_u32 v{XD[n]}, {n*(18432-1024)}, v{V_XDMA}")
        for n in (1, 2, 3): A(f"v_add_u32 v{WD[n]}, {n*(8192-WBLK)}, v{V_WDMA}")
        def xdma(): return [f"buffer_load_dwordx4 v{XD[n]}, s[{S_X}:{S_X+3}], s{XS} offen offset:{n*1024}{ntq} lds" for n in range(3)]
        def wdma(): return [f"buffer_load_dwordx4 v{WD[n]}, s[{S_WQ}:{S_WQ+3}], s{WS} offen offset:{n*WBLK}{ntq} lds" for n in range(4)]
        RC = 98
        if self.o.get("rot", True):
            A(f"s_and_b32 s3, s{S_H}, 3\ns_mul_i32 s3, s3, 5\ns_lshl_b32 s{RC}, s{S_B}, 1\ns_add_u32 s{RC}, s{RC}, s3")
            A(f"s_cmp_ge_u32 s{RC}, 18\ns_cselect_b32 s3, 18, 0\ns_sub_u32 s{RC}, s{RC}, s3")
        else:
            A(f"s_mov_b32 s{RC}, 0")
        def adv():
            return [f"s_add_u32 s{RC}, s{RC}, 1", f"s_cmp_ge_u32 s{RC}, 18", f"s_cselect_b32 s{RC}, 0, s{RC}",
                    f"s_lshl_b32 s{XS}, s{RC}, 6", f"s_add_u32 s{XS}, s{XS}, s{S_XSO}",
                    f"s_lshl_b32 s{WS}, s{RC}, 18", f"s_add_u32 s{WS}, s{WS}, s{S_WSO}"]
        for l in adv()[3:]: A(l)
        for cc in range(3):
            A(f"s_add_u32 m0, s{S_XM0}, {STAGE[cc]+XOFF}")
            A(f"s_nop 0")
            for l in xdma(): A(l)
            A(f"s_add_u32 m0, s{S_WM0}, {STAGE[cc]}")
            A(f"s_nop 0")
            for l in wdma(): A(l)
            for l in adv(): A(l)
            self.vm_issue(("c", cc), 7)
        self.warm()
        self.setup2()
        self.setup_kv()
        z = 68
        for i in range(4): A(f"v_mov_b32 v{z+i}, 0")
        A("s_nop 1")
        for i in range(10):
            A(f"v_mfma_f32_32x32x16_bf16 {vr(V_QACC+16*i,16)}, {vr(z,4)}, {vr(z,4)}, 0")
        for i in range(10):
            A(f"v_mfma_f32_32x32x16_bf16 {ar(A_O+16*i,16)}, {vr(z,4)}, {vr(z,4)}, 0")
        for (k, tile, slot) in (("K", 0, 0), ("K", 1, 1), ("V", 0, 0)):
            for l in self.kv_dma(k, tile, slot): A(l)
            self.vm_issue((k, tile), 4)
        A(f"s_mov_b32 s{SC}, 0")
        A(f"s_mov_b32 s{ST0}, {STAGE[0]}\ns_mov_b32 s{ST1}, {STAGE[1]}\ns_mov_b32 s{ST2}, {STAGE[2]}")
        A(f"s_waitcnt vmcnt({self.vm_wait_n({('c',0)})})")
        A("s_barrier")
        self.stamp()
        A(f"v_add_u32 v{XA}, s{ST0}, v{XL}\nv_add_u32 v{WA}, s{ST0}, v{WL}")
        def reads(buf):
            R = []
            for t in range(5):
                R.append(f"ds_read_b128 {vr(V_XF[buf]+4*t,4)}, v{XA} offset:{t*1024}")
            for T in range(8):
                for hh in range(2):
                    off = hh * 4 * WBLK + 64 * (T >> 1) + 8 * (T & 1)
                    R.append(f"ds_read_b64_tr_b16 {ar(A_WF[buf]+4*T+2*hh,2)}, v{WA} offset:{off}")
            return R
        for r in reads(0): A(r)
        def chunk(par, dma, rd, top):
            buf = par
            for l in top: A(l)
            if rd:
                A(f"v_add_u32 v{XA}, s{ST1}, v{XL}\nv_add_u32 v{WA}, s{ST1}, v{WL}")
            M = []
            for T in range(8):
                for t in range(5):
                    d = vr(V_QACC + (T*5 + t)*4, 4)
                    M.append(mfma(d, ar(A_WF[buf]+4*T, 4), vr(V_XF[buf]+4*t, 4), d))
            fill = [[] for _ in range(40)]
            R = reads(buf ^ 1) if (rd and not self.o.get("qp_nods")) else []
            dpos = self.o.get("qdpos", [2, 7, 12, 17, 22, 27, 32])
            m0pos = (dpos[0] - 1, dpos[3] - 1)
            slots = [g for g in range(0, 34) if g not in dpos and g not in m0pos]
            for i, r in enumerate(R):
                fill[slots[(i * len(slots)) // len(R)]].append(r)
            if dma and not self.o.get("qp_nodma"):
                fill[m0pos[0]].append(f"s_add_u32 m0, s{S_XM0}, s{ST0}")
                xd, wd = xdma(), wdma()
                for n in range(3): fill[dpos[n]].append(xd[n])
                fill[m0pos[1]].append(f"s_add_u32 m0, s{S_WM0}, s{ST0}")
                for n in range(4): fill[dpos[3+n]].append(wd[n])
            sal = [f"s_mov_b32 s{S_T2}, s{ST0}", f"s_mov_b32 s{ST0}, s{ST1}", f"s_mov_b32 s{ST1}, s{ST2}", f"s_mov_b32 s{ST2}, s{S_T2}",
                   f"s_add_u32 s{SC}, s{SC}, 1"] + adv()
            g = 33
            for i in range(0, len(sal), 2):
                fill[g] += sal[i:i+2]; g += 1
            for m in range(40):
                A(M[m])
                for l in fill[m]: A(l)
        A(".p2align 6")
        A("K1_QLOOP:")
        start = len(A.lines)
        for par in range(2):
            top = []
            nw = 7 if not self.o.get("qp_nowait") else 63
            if par == 0 or True:
                top += [f"s_cmp_lt_u32 s{SC}, 2", f"s_cbranch_scc1 K1_QW{par}", f"s_waitcnt vmcnt({nw})", f"K1_QW{par}:"]
            top += ["s_waitcnt vmcnt(19) lgkmcnt(0)" if nw == 7 else "s_waitcnt lgkmcnt(0)"]
            if not self.o.get("qp_nobar"): top.append("s_barrier")
            chunk(par, True, True, top)
        A(f"s_cmp_lt_u32 s{SC}, 16")
        A("s_cbranch_scc1 K1_QLOOP")
        self.qloop_lines = A.lines[start:]
        if self.o.get("prof2"): self.stamp()
        chunk(0, False, True, ["s_waitcnt vmcnt(7) lgkmcnt(0)", "s_barrier"])
        chunk(1, False, False, ["s_waitcnt lgkmcnt(0)", "s_barrier"])
        if self.o.get("prof2"): self.stamp()
        for (k, tile, slot) in (("K", 2, 2), ("V", 1, 1), ("K", 3, 3), ("V", 2, 2)):
            for l in self.kv_dma(k, tile, slot): A(l)
            self.vm_issue((k, tile), 4)

    def qconvert(self):
        A = self.A
        A(f"s_mov_b32 s{S_SCALE}, 0x3e0293ee")
        A("s_nop 7")
        for t in range(5):
            for s in range(4):
                for half in range(2):
                    T = 2*s + half
                    src = V_QACC + (T*5 + t)*4
                    for r in range(4):
                        A(f"v_mul_f32 v{src+r}, s{S_SCALE}, v{src+r}")
                    dst = V_Q + 16*t + 4*s + 2*half
                    A(f"v_cvt_pk_bf16_f32 v{dst}, v{src}, v{src+1}")
                    A(f"v_cvt_pk_bf16_f32 v{dst+1}, v{src+2}, v{src+3}")

    def k_read(self, n, half):
        kt = 2*half + (n >> 2); s = n & 3
        return f"ds_read_b128 {ar(A_KF+4*n,4)}, v{V_KAD} offset:{kt*256 + s*64}"
    def v_read(self, n, mb):
        dt = n >> 1; hh = n & 1
        return f"ds_read_b64_tr_b16 {ar(A_VF+4*dt+2*hh,2)}, v{V_VAD} offset:{mb*8*BLK + hh*512 + dt*32}"
    def qk_mfmas(self, sb, first_c=None):
        M = []
        for ktl in range(2):
            for s in range(4):
                for t in range(5):
                    d = vr(sb + 8*t + 4*ktl, 4)
                    if s == 0:
                        c = vr(V_CI + 4*t, 4) if first_c is None else first_c
                    else:
                        c = d
                    M.append(mfma(d, ar(A_KF + 4*(ktl*4+s), 4), vr(V_Q + 16*t + 4*s, 4), c))
        return M
    def pv_mfmas(self, sb):
        M = []
        for dt in range(8):
            for t in range(5):
                d = ar(A_O + (dt*5 + t)*4, 4)
                M.append(mfma(d, ar(A_VF + 4*dt, 4), vr(sb + 8*t, 4), d))
        return M
    def item(self, it, sb, khalf, vmb, dma):
        k = it[0]
        if k == 'exp':
            r = sb + 8*it[1] + it[2]
            return [f"v_exp_f32 v{r}, v{r}"]
        if k == 'add':
            r = sb + 8*it[1] + it[2]
            return [f"v_add_f32 v{V_L+it[1]}, v{V_L+it[1]}, v{r}"]
        if k == 'cvt':
            r = sb + 8*it[1]
            p = it[2]
            return [f"v_cvt_pk_bf16_f32 v{r+p}, v{r+2*p}, v{r+2*p+1}"]
        if k == 'K':
            return [self.k_read(it[1], khalf)] if khalf is not None else []
        if k == 'V':
            return [self.v_read(it[1], vmb)] if vmb is not None else []
        if k == 'DMA':
            return dma or []
    def phase(self, M, gaps, sb, khalf=None, vmb=None, dma=None, pre=None, head=None):
        A = self.A
        for i in range(40):
            if M is not None:
                A(M[i])
            else:
                A("s_nop 0")
            if head and i in head:
                for l in head[i]: A(l)
            if gaps is not None:
                for it in gaps[i]:
                    for l in self.item(it, sb, khalf, vmb, dma): A(l)

    def loop_dma(self, kind):
        nt = " nt" if self.o.get("nt", True) else ""
        srd = S_K if kind == "K" else S_V
        vd = V_KDMA if kind == "K" else V_VDMA
        so = S_KSOFF if kind == "K" else S_VSOFF
        return [f"buffer_load_dwordx4 v{vd+i}, s[{srd}:{srd+3}], s{so} offen offset:{i*BLK}{nt} lds" for i in range(4)]

    def slot_adv(self, s, base):
        return [f"s_add_u32 s{s}, s{s}, {TILE}",
                f"s_cmp_ge_u32 s{s}, s{S_T0}" if False else None]

    def attention(self):
        A = self.A
        W = window_schedule(exp_end=66, ds_end_a=24, ds_end_b=64)
        GA, GB = W[:40], W[40:]
        S0, S1 = V_S
        A.c("---- attention prologue")
        A(f"s_waitcnt vmcnt({self.vm_wait_n({('K',0)})})")
        A("s_barrier")
        A(f"v_mov_b32 v{V_KAD}, v{V_KLANE}")
        A(f"v_add_u32 v{V_VAD}, {VRING}, v{V_VLANE}")
        for n in range(8): A(self.k_read(n, 0))
        for t in range(5): A(f"v_mov_b32 v{V_L+t}, 0")
        A("s_waitcnt lgkmcnt(0)")
        for m in self.qk_mfmas(S0, first_c="0"): A(m)
        for n in range(8): A(self.k_read(n, 1))
        A("s_nop 7")
        T = V_T
        for t in range(5):
            r = S0 + 8*t
            A(f"v_max3_f32 v{T+t}, v{r}, v{r+1}, v{r+2}")
            A(f"v_max3_f32 v{T+t}, v{T+t}, v{r+3}, v{r+4}")
            A(f"v_max3_f32 v{T+t}, v{T+t}, v{r+5}, v{r+6}")
            A(f"v_max_f32 v{T+t}, v{T+t}, v{r+7}")
        for sw in ("v_permlane32_swap_b32", "v_permlane16_swap_b32"):
            for t in range(5): A(f"v_mov_b32 v{T+5+t}, v{T+t}")
            A("s_nop 1")
            for t in range(5): A(f"{sw} v{T+t}, v{T+5+t}")
            A("s_nop 1")
            for t in range(5): A(f"v_max_f32 v{T+t}, v{T+t}, v{T+5+t}")
        for t in range(5):
            for i in range(8):
                A(f"v_sub_f32 v{S0+8*t+i}, v{S0+8*t+i}, v{T+t}")
            for i in range(4):
                A(f"v_sub_f32 v{V_CI+4*t+i}, 0, v{T+t}")
        self.phase(None, GA, S0, khalf=None)
        if self.o.get("warmwo") is not None:
            pol = self.o.get("warmwo")
            A(f"s_mul_i32 s3, s{S_BR}, 40\ns_add_u32 s14, s0, s3\ns_addc_u32 s15, s1, 0")
            A("s_load_dwordx2 s[84:85], s[14:15], 32")
            A(f"s_lshl_b32 s3, s{S_B}, 4\ns_add_u32 s3, s3, s{S_H}\ns_mul_i32 s3, s3, {288*128}")
            A(f"v_lshlrev_b32 v{V_T+12}, 7, v0\nv_add_u32 v{V_T+12}, s3, v{V_T+12}")
            A(f"v_add_u32 v{V_T+13}, {256*128}, v{V_T+12}")
            A("s_waitcnt lgkmcnt(0)")
            A(f"s_add_u32 s14, s3, {288*128}")
            A(f"s_mov_b32 s86, s14\ns_mov_b32 s87, 0x20000")
            A(f"buffer_load_dword v{V_T+14}, v{V_T+12}, s[84:87], 0 offen{pol}")
            A(f"buffer_load_dword v{V_T+14}, v{V_T+13}, s[84:87], 0 offen{pol}")
        A(f"s_mov_b32 s{S_KSLOT}, {KRING + TILE}")
        A(f"s_mov_b32 s{S_VSLOT}, {VRING}")
        A(f"s_add_u32 s{S_KDSLOT}, s{S_KM0W}, {KRING}")
        A(f"s_add_u32 s{S_VDSLOT}, s{S_KM0W}, {VRING + 3*TILE}")
        A(f"s_mov_b32 s{S_KSOFF}, {4*16384}")
        A(f"s_mov_b32 s{S_VSOFF}, {3*16384}")
        A(f"s_mov_b32 s{S_LOOP}, 15")
        def body(last):
            top = ["s_waitcnt vmcnt(16) lgkmcnt(0)" if not last else "s_waitcnt vmcnt(0) lgkmcnt(0)", "s_barrier"]
            for l in top: A(l)
            A(f"v_add_u32 v{V_VAD}, s{S_VSLOT}, v{V_VLANE}")
            head1 = {0: [f"s_mov_b32 m0, s{S_KDSLOT}"]}
            self.phase(self.qk_mfmas(S1), GB, S0, vmb=0, dma=None if last else self.loop_dma("K"), head=head1)
            A("s_waitcnt lgkmcnt(0)")
            A(f"v_add_u32 v{V_KAD}, s{S_KSLOT}, v{V_KLANE}")
            self.phase(self.pv_mfmas(S0), GA, S1, khalf=None if last else 0)
            A("s_waitcnt lgkmcnt(0)")
            head3 = {0: [f"s_mov_b32 m0, s{S_VDSLOT}"]}
            self.phase(None if last else self.qk_mfmas(S0), GB, S1, vmb=1, dma=None if last else self.loop_dma("V"), head=head3)
            A("s_waitcnt lgkmcnt(0)")
            if last:
                A("s_nop 1")
                self.phase(self.pv_mfmas(S1), None, S0)
            else:
                adv = []
                for (s, base, woff) in ((S_KSLOT, KRING, False), (S_VSLOT, VRING, False), (S_KDSLOT, KRING, True), (S_VDSLOT, VRING, True)):
                    adv.append([f"s_add_u32 s{s}, s{s}, {TILE}"])
                head4 = {}
                seq = []
                for (s, base, woff) in ((S_KSLOT, KRING, False), (S_VSLOT, VRING, False), (S_KDSLOT, KRING, True), (S_VDSLOT, VRING, True)):
                    seq.append([f"s_add_u32 s{s}, s{s}, {TILE}", f"s_cmp_ge_u32 s{s}, {base + 4*TILE}"])
                    seq.append([f"s_cselect_b32 s{S_T0}, {4*TILE}, 0", f"s_sub_u32 s{s}, s{s}, s{S_T0}"])
                seq.append([f"s_add_u32 s{S_KSOFF}, s{S_KSOFF}, 16384", f"s_add_u32 s{S_VSOFF}, s{S_VSOFF}, 16384"])
                for n, sq in enumerate(seq):
                    head4[24 + n] = sq
                self.phase(self.pv_mfmas(S0 if False else S1), GA, S0, khalf=1, head=head4)
        self.stamp()
        A(".p2align 6")
        A("K1_LOOP:")
        start = len(A.lines)
        body(False)
        A(f"s_sub_u32 s{S_LOOP}, s{S_LOOP}, 1")
        A(f"s_cmp_lg_u32 s{S_LOOP}, 0")
        A("s_cbranch_scc1 K1_LOOP")
        self.loop_lines = A.lines[start:]
        body(True)

    def epilogue(self):
        A = self.A
        T = V_T
        A.c("---- epilogue: normalise and store o fragments")
        for sw in ("v_permlane32_swap_b32", "v_permlane16_swap_b32"):
            for t in range(5): A(f"v_mov_b32 v{T+t}, v{V_L+t}")
            A("s_nop 1")
            for t in range(5): A(f"{sw} v{V_L+t}, v{T+t}")
            A("s_nop 1")
            for t in range(5): A(f"v_add_f32 v{V_L+t}, v{V_L+t}, v{T+t}")
        for t in range(5): A(f"v_rcp_f32 v{V_L+t}, v{V_L+t}")
        A(f"v_lshlrev_b32 v{T+10}, 4, v{V_LANE}")
        A("s_nop 7")
        n = 0
        for t in range(5):
            for s in range(4):
                b = V_S[0] + (n % 6) * 12
                for half in range(2):
                    a0 = A_O + ((2*s+half)*5 + t)*4
                    for r in range(4):
                        A(f"v_accvgpr_read_b32 v{b+4*half+r}, a{a0+r}")
                for r in range(8):
                    A(f"v_mul_f32 v{b+r}, v{V_L+t}, v{b+r}")
                for p in range(4):
                    A(f"v_cvt_pk_bf16_f32 v{b+8+p}, v{b+2*p}, v{b+2*p+1}")
                A(f"s_mov_b32 s{S_T0}, {t*self.QS + s*1024}")
                A(f"buffer_store_dwordx4 {vr(b+8,4)}, v{T+10}, s[{S_O}:{S_O+3}], s{S_T0} offen{self.o.get('nto','')}")
                n += 1

    def build(self):
        A = self.A
        A(".p2align 8\n.type k1_kernel,@function\nk1_kernel:")
        self.stamp()
        self.setup()
        self.qproj()
        self.stamp()
        self.qconvert()
        self.attention()
        self.stamp()
        self.epilogue()
        self.stamp()
        self.dump_stamps()
        A("K1_END:")
        A("s_endpgm")
        return A
```

```python
from asmlib import *

D = 4
WST = 6144
WAVE_LDS = D * WST
LDS_TOTAL = 4 * WAVE_LDS

V_LANE = 1
V_WD = 2
V_OB = 8
V_AE, V_AO = 9, 10
V_T = 11
V_ACC = 64
V_B = 160
A_A = [0, 24]

S_O, S_WO, S_OUT = 16, 20, 24
S_W, S_BR, S_MT, S_NT = 36, 37, 38, 39
S_KS = 40
S_OSO = 41
S_WSO = 42
S_M0B = 43
S_T0, S_T1 = 44, 45
S_LOOP = 46

def mfma(d, a, b, c):
    return f"v_mfma_f32_16x16x32_bf16 {d}, {a}, {b}, {c}"

class K2:
    def __init__(self, opts=None):
        self.o = opts or {}
        self.A = Asm()
        self.QS = 131072 + self.o.get("qpad", 0)
        self.D = self.o.get("D2", 4)
        self.WAVE_LDS = self.D * WST
        self.LDS = max(4 * self.WAVE_LDS, 98304)
        self.VB = 160 if self.D <= 6 else None
    def stamp(self):
        if not self.o.get("prof"): return
        i = self.nst = getattr(self, "nst", 0) + 1
        b = 60 + (i-1)*4
        self.A(f"s_memtime s[{b}:{b+1}]")
        self.A(f"s_memrealtime s[{b+2}:{b+3}]")
    def dump_stamps(self):
        if not self.o.get("prof"): return
        A = self.A
        A("s_waitcnt lgkmcnt(0) vmcnt(0)")
        A("s_load_dwordx2 s[4:5], s[0:1], 96")
        A("s_waitcnt lgkmcnt(0)")
        A(f"s_add_u32 s4, s4, {(129<<20)}\ns_addc_u32 s5, s5, 0\ns_mov_b32 s6, 0x100000\ns_mov_b32 s7, 0x20000")
        A(f"s_lshl_b32 s3, s2, 2\ns_add_u32 s3, s3, s{S_W}\ns_lshl_b32 s3, s3, 7")
        A("s_mov_b64 exec, 1")
        for i in range(self.nst):
            b = 60 + i*4
            A(f"v_mov_b32 v2, s{b}\nv_mov_b32 v3, s{b+2}\nv_mov_b32 v4, s3")
            A(f"buffer_store_dwordx2 v[2:3], v4, s[4:7], 0 offen offset:{i*8}")
            A("s_nop 1")
    def loads_dma(self, st):
        L = []
        for i in range(6):
            L.append([f"s_add_u32 m0, s{S_M0B}, {st*WST + i*1024}",
                      "s_nop 0",
                      f"buffer_load_dwordx4 v{V_WD+i}, s[{S_WO}:{S_WO+3}], s{S_WSO} offen{self.o.get('nt2w','')} lds"])
        return L
    def loads_b(self, st):
        L = []
        for qi in range(4):
            L.append([f"s_add_u32 s{S_T0}, s{S_OSO}, {qi*self.QS}",
                      f"buffer_load_dwordx4 {vr(self.VB+16*st+4*qi,4)}, v{V_OB}, s[{S_O}:{S_O+3}], s{S_T0} offen{self.o.get('nt2o','')}"])
        return L
    def adv(self):
        return [f"s_add_u32 s{S_KS}, s{S_KS}, 4", f"s_and_b32 s{S_KS}, s{S_KS}, 127",
                f"s_lshl_b32 s{S_OSO}, s{S_KS}, 10", f"s_mul_i32 s{S_WSO}, s{S_KS}, {32*1152}"]
    def a_reads(self, st, buf):
        R = []
        for nt in range(6):
            for hh in range(2):
                v = V_AE if nt % 2 == 0 else V_AO
                R.append(f"ds_read_b64_tr_b16 {ar(A_A[buf]+4*nt+2*hh,2)}, v{v} offset:{st*WST + hh*3072 + nt*32}")
        return R
    def build(self):
        A = self.A
        A(".p2align 8\n.type k2_kernel,@function\nk2_kernel:")
        A("s_cmp_ge_u32 s2, 240")
        A("s_cbranch_scc1 K2_END")
        self.stamp()
        A("s_and_b32 s3, s2, 7\ns_lshr_b32 s14, s2, 3")
        A(f"s_lshr_b32 s{S_BR}, s3, 2\ns_and_b32 s3, s3, 3")
        A("s_mul_i32 s15, s14, 43\ns_lshr_b32 s15, s15, 8")
        A(f"s_mul_i32 s{S_NT}, s15, 6\ns_sub_u32 s{S_NT}, s14, s{S_NT}")
        A(f"s_mul_i32 s{S_MT}, s3, 5\ns_add_u32 s{S_MT}, s{S_MT}, s15")
        A(f"s_mul_i32 s3, s{S_BR}, 40\ns_add_u32 s14, s0, s3\ns_addc_u32 s15, s1, 0")
        A("s_load_dwordx2 s[4:5], s[14:15], 32")
        A("s_load_dwordx2 s[6:7], s[0:1], 80")
        A("s_load_dwordx2 s[8:9], s[0:1], 96")
        L = V_LANE
        A(f"v_and_b32 v{L}, 63, v0\nv_lshrrev_b32 v{V_T}, 6, v0\ns_nop 0\nv_readfirstlane_b32 s{S_W}, v{V_T}")
        t0, t1, t2, t3 = V_T, V_T+1, V_T+2, V_T+3
        for i in range(6):
            A(f"v_add_u32 v{t0}, {64*i}, v{L}")
            A(f"v_mul_u32_u24 v{t1}, 43691, v{t0}\nv_lshrrev_b32 v{t1}, 19, v{t1}")
            A(f"v_mul_u32_u24 v{t2}, 12, v{t1}\nv_sub_u32 v{t2}, v{t0}, v{t2}")
            A(f"v_lshrrev_b32 v{t3}, 2, v{t1}\nv_and_b32 v{t3}, 1, v{t3}\nv_lshlrev_b32 v{t3}, 1, v{t3}")
            A(f"v_xor_b32 v{t2}, v{t2}, v{t3}")
            A(f"v_mul_u32_u24 v{t1}, 1152, v{t1}")
            A(f"v_lshl_add_u32 v{V_WD+i}, v{t2}, 4, v{t1}")
        A(f"v_lshlrev_b32 v{V_OB}, 4, v{L}")
        A(f"v_lshrrev_b32 v{t0}, 2, v{L}\nv_mul_u32_u24 v{t0}, 192, v{t0}")
        A(f"v_and_b32 v{t1}, 3, v{L}\nv_lshl_add_u32 v{t0}, v{t1}, 3, v{t0}")
        A(f"v_lshrrev_b32 v{t1}, 4, v{L}\nv_and_b32 v{t1}, 1, v{t1}\nv_lshlrev_b32 v{t1}, 5, v{t1}")
        A("s_waitcnt lgkmcnt(0)")
        A(f"s_mul_i32 s{S_M0B}, s{S_W}, {self.WAVE_LDS}")
        A(f"v_add_u32 v{t0}, s{S_M0B}, v{t0}")
        A(f"v_add_u32 v{V_AE}, v{t0}, v{t1}\nv_sub_u32 v{V_AO}, v{t0}, v{t1}")
        A(f"s_mul_i32 s3, s{S_BR}, 80\ns_lshl_b32 s14, s{S_MT}, 2\ns_add_u32 s3, s3, s14\ns_mul_i32 s3, s3, {self.QS}")
        A(f"s_add_u32 s{S_O}, s8, s3\ns_addc_u32 s{S_O+1}, s9, 0\ns_mov_b32 s{S_O+2}, {3*self.QS+131072}\ns_mov_b32 s{S_O+3}, 0x20000")
        A(f"s_mul_i32 s3, s{S_NT}, 192")
        A(f"s_add_u32 s{S_WO}, s4, s3\ns_addc_u32 s{S_WO+1}, s5, 0\ns_sub_u32 s{S_WO+2}, {4096*1152}, s3\ns_mov_b32 s{S_WO+3}, 0x20000")
        A(f"s_lshl_b32 s3, s{S_MT}, 6\ns_lshl_b32 s14, s{S_W}, 4\ns_add_u32 s3, s3, s14\ns_mul_i32 s3, s3, 2304")
        A(f"s_mul_i32 s14, s{S_BR}, 1152\ns_add_u32 s3, s3, s14\ns_mul_i32 s14, s{S_NT}, 192\ns_add_u32 s3, s3, s14")
        A(f"s_add_u32 s{S_OUT}, s6, s3\ns_addc_u32 s{S_OUT+1}, s7, 0")
        A(f"s_sub_u32 s{S_OUT+2}, {1280*2304}, s3\ns_mov_b32 s{S_OUT+3}, 0x20000")
        if self.o.get("rot2", True):
            mul = self.o.get("rot2mul", 1)
            A(f"s_mul_i32 s{S_KS}, s{S_MT}, 205\ns_lshr_b32 s{S_KS}, s{S_KS}, 10\ns_mul_i32 s{S_KS}, s{S_KS}, 5\ns_sub_u32 s{S_KS}, s{S_MT}, s{S_KS}")
            A(f"s_add_u32 s{S_KS}, s{S_KS}, s{S_NT}\ns_mul_i32 s{S_KS}, s{S_KS}, {4*mul}\ns_add_u32 s{S_KS}, s{S_KS}, s{S_W}")
        else:
            A(f"s_mov_b32 s{S_KS}, s{S_W}")
        A(f"s_lshl_b32 s{S_OSO}, s{S_KS}, 10\ns_mul_i32 s{S_WSO}, s{S_KS}, {32*1152}")
        D = self.D
        vm = []
        def issue_dma(stage):
            st = stage % D
            G = self.loads_dma(st)
            return G
        NIT = 32
        for stage in range(min(D, NIT)):
            for g in self.loads_dma(stage % D):
                for l in g: A(l)
            vm += [("d", stage)] * 6
            for g in self.loads_b(stage % D):
                for l in g: A(l)
            vm += [("b", stage)] * 4
            for l in self.adv(): A(l)
        def wait_n(tags):
            last = max(i for i, t in enumerate(vm) if t in tags)
            return len(vm) - 1 - last
        A(f"s_waitcnt vmcnt({wait_n({('d',0)})})")
        self.stamp()
        for r in self.a_reads(0, 0): A(r)
        start = len(A.lines)
        for it in range(NIT):
            st = it % D
            buf = it & 1
            M = []
            for nt in range(6):
                for qi in range(4):
                    d = vr(V_ACC + (nt*4+qi)*4, 4)
                    M.append(mfma(d, ar(A_A[buf]+4*nt, 4), vr(self.VB+16*st+4*qi, 4), "0" if it == 0 else d))
            tags = {("b", it)}
            if it + 1 < NIT: tags.add(("d", it + 1))
            A(f"s_waitcnt vmcnt({wait_n(tags)}) lgkmcnt(0)")
            fill = [[] for _ in range(24)]
            if it + 1 < NIT:
                R = self.a_reads((it + 1) % D, buf ^ 1)
                for i, r in enumerate(R): fill[1 + i].append(r)
            loads = it + D < NIT
            if loads:
                G = self.loads_dma(st)
                for i, g in enumerate(G): fill[2 + 3*i] += g
            for m in range(24):
                A(M[m])
                for l in fill[m]: A(l)
            if loads:
                vm += [("d", it + D)] * 6
                for g in self.loads_b(st):
                    for l in g: A(l)
                vm += [("b", it + D)] * 4
                for l in self.adv(): A(l)
        self.loop_lines = []
        self.stamp()
        A("s_barrier")
        A(f"s_mul_i32 s{S_T0}, s{S_W}, 24576")
        A(f"v_lshlrev_b32 v{V_T}, 4, v{V_LANE}")
        A(f"v_add_u32 v{V_T+1}, s{S_T0}, v{V_T}")
        A("s_nop 7")
        for tl in range(24):
            A(f"ds_write_b128 v{V_T+1}, {vr(V_ACC+4*tl,4)} offset:{tl*1024}")
        A("s_waitcnt lgkmcnt(0)")
        A("s_barrier")
        A(f"s_lshl_b32 s{S_T0}, s{S_W}, 10")
        A(f"v_add_u32 v{V_T+1}, s{S_T0}, v{V_T}")
        A(f"v_add_u32 v{V_T+2}, {2*24576}, v{V_T+1}")
        for nt in range(6):
            for src in range(4):
                base = V_T+1 if src < 2 else V_T+2
                A(f"ds_read_b128 {vr(V_ACC+(nt*4+src)*4,4)}, v{base} offset:{(src & 1)*24576 + nt*4096}")
        A(f"v_and_b32 v{V_T+3}, 15, v{V_LANE}\nv_mul_u32_u24 v{V_T+3}, 2304, v{V_T+3}")
        A(f"v_lshrrev_b32 v{V_T+4}, 4, v{V_LANE}\nv_lshl_add_u32 v{V_T+3}, v{V_T+4}, 3, v{V_T+3}")
        for nt in range(6):
            A(f"s_waitcnt lgkmcnt({max(0, 15 if (5-nt)*4 > 15 else (5-nt)*4)})")
            b = V_ACC + nt*16
            for r in range(4):
                A(f"v_add_f32 v{b+r}, v{b+r}, v{b+4+r}")
                A(f"v_add_f32 v{b+8+r}, v{b+8+r}, v{b+12+r}")
            for r in range(4):
                A(f"v_add_f32 v{b+r}, v{b+r}, v{b+8+r}")
            A(f"v_cvt_pk_bf16_f32 v{b+4}, v{b}, v{b+1}")
            A(f"v_cvt_pk_bf16_f32 v{b+5}, v{b+2}, v{b+3}")
            A(f"buffer_store_dwordx2 {vr(b+4,2)}, v{V_T+3}, s[{S_OUT}:{S_OUT+3}], 0 offen offset:{nt*32}")
        self.stamp()
        self.dump_stamps()
        A("K2_END:")
        A("s_endpgm")
        return A
```

```python
import sys
from asmlib import *
import k1, k2

HEADER = open("concat_heads__gqa_block_cached__gqa_block_cached__near_ridge.s.ref").read().split("; Override launch")[0]

def desc(name, vgpr, accum, sgpr=102):
    return f""".amdhsa_kernel {name}
  .amdhsa_next_free_vgpr {vgpr}
  .amdhsa_next_free_sgpr {sgpr}
  .amdhsa_accum_offset {accum}
  .amdhsa_group_segment_fixed_size 0
  .amdhsa_kernarg_size 104
  .amdhsa_user_sgpr_count 2
  .amdhsa_user_sgpr_kernarg_segment_ptr 1
  .amdhsa_system_sgpr_workgroup_id_x 1
.end_amdhsa_kernel
"""

def build(opts=None, only=None):
    opts = opts or {}
    a1 = k1.K1(opts); t1 = a1.build()
    a2 = k2.K2(opts); t2 = a2.build()
    errs = check_hazards(t1.lines, "k1") + check_hazards(a1.loop_lines * 2, "k1loop") + check_hazards(a1.qloop_lines * 2, "k1qloop") + check_hazards(t2.lines, "k2") + check_hazards(a2.loop_lines * 2, "k2loop")
    for e in errs: print("HAZARD:", e, file=sys.stderr)
    s = HEADER
    s += f"; @launch kernel=k1_kernel grid=(256,1,1) block=(256,1,1) lds={k1.LDS_TOTAL}\n"
    s += f"; @launch kernel=k2_kernel grid=(240,1,1) block=(256,1,1) lds={a2.LDS}\n"
    s += '.amdgcn_target "amdgcn-amd-amdhsa--gfx950"\n.text\n.globl k1_kernel\n.globl k2_kernel\n'
    s += t1.text() + t2.text()
    s += '.section .rodata,"a"\n.p2align 6\n' + desc("k1_kernel", 512, 256) + ".p2align 6\n" + desc("k2_kernel", 512, 256)
    return s, errs

if __name__ == "__main__":
    out = sys.argv[1] if len(sys.argv) > 1 else "concat_heads__gqa_block_cached__gqa_block_cached__near_ridge.s"
    opts = {}
    for a in sys.argv[2:]:
        k, v = a.split("=")
        opts[k] = eval(v)
    s, errs = build(opts)
    open(out, "w").write(s)
    print("wrote", out, len(s), "bytes;", len(errs), "hazards")
```

```python
from asmlib import *
from sched import window_schedule

BLK = 1056
TILE = 16 * BLK
KRING = 0
VRING = 4 * TILE
SPARE = 8 * TILE
LDS_TOTAL = 163840
STAGE = [SPARE, VRING + 2 * TILE, KRING + 2 * TILE]
XOFF = 0
WOFF = 10240
WBLK = 1088
BIAS = 2400

V_TID, V_LANE = 0, 1
V_XDMA, V_WDMA = 2, 3
V_KDMA = 6
V_VDMA = 10
V_KLANE, V_VLANE = 14, 15
V_Q = 16
V_S = [96, 136]
V_CI = 176
V_L = 196
V_T = 201
V_KAD, V_VAD = 216, 217
V_QACC = 96
V_XF = [16, 36]
V_XRD = 56
V_WRD = 59
A_O = 0
A_KF = 160
A_VF = 192
A_WF = [160, 192]

S_X, S_WQ, S_K, S_V, S_O = 16, 20, 24, 28, 32
S_W, S_BR, S_B, S_H = 36, 37, 38, 39
S_XSO, S_XM0, S_WSO, S_WM0 = 40, 41, 42, 43
S_T0, S_T1, S_T2 = 44, 45, 46
S_KM0W = 47
S_KSLOT, S_VSLOT = 48, 49
S_KDSLOT, S_VDSLOT = 50, 51
S_KSOFF, S_VSOFF = 52, 53
S_LOOP = 54
S_SCALE = 55
S_FLAG = 56

def mfma(d, a, b, c):
    return f"v_mfma_f32_16x16x32_bf16 {d}, {a}, {b}, {c}"

class K1:
    def __init__(self, opts=None):
        self.o = opts or {}
        self.A = Asm()
        self.QS = 131072 + self.o.get("qpad", 0)
        self.vm = []
    def stamp(self):
        if not self.o.get("prof"): return
        i = self.nst = getattr(self, "nst", 0) + 1
        b = 60 + (i-1)*4
        self.A(f"s_memtime s[{b}:{b+1}]")
        self.A(f"s_memrealtime s[{b+2}:{b+3}]")
    def dump_stamps(self, wgs="s2"):
        if not self.o.get("prof"): return
        A = self.A
        A("s_waitcnt lgkmcnt(0) vmcnt(0)")
        A("s_load_dwordx2 s[4:5], s[0:1], 96")
        A("s_waitcnt lgkmcnt(0)")
        A(f"s_add_u32 s4, s4, {self.o.get('profoff', 128<<20)}\ns_addc_u32 s5, s5, 0\ns_mov_b32 s6, 0x100000\ns_mov_b32 s7, 0x20000")
        A(f"s_lshl_b32 s3, s2, 2\ns_add_u32 s3, s3, s{S_W}\ns_lshl_b32 s3, s3, 7")
        A("s_mov_b64 exec, 1")
        for i in range(self.nst):
            b = 60 + i*4
            A(f"v_mov_b32 v2, s{b}\nv_mov_b32 v3, s{b+2}\nv_mov_b32 v4, s3")
            A(f"buffer_store_dwordx2 v[2:3], v4, s[4:7], 0 offen offset:{i*8}")
            A("s_nop 1")
    def vm_issue(self, tag, n=1):
        self.vm += [tag] * n
    def vm_wait_n(self, tags):
        last = max(i for i, t in enumerate(self.vm) if t in tags)
        return len(self.vm) - 1 - last

    def setup(self):
        A = self.A
        A("s_cmp_ge_u32 s2, 256")
        A("s_cbranch_scc1 K1_END")
        if self.o.get("badmap"):
            A("s_lshr_b32 s3, s2, 5")
            A("s_and_b32 s14, s2, 31")
        else:
            A("s_and_b32 s3, s2, 7")
            A("s_lshr_b32 s14, s2, 3")
        A(f"s_lshr_b32 s{S_BR}, s3, 2")
        A("s_and_b32 s3, s3, 3")
        A("s_lshl_b32 s3, s3, 2")
        A(f"s_and_b32 s{S_H}, s14, 3")
        A(f"s_add_u32 s{S_H}, s{S_H}, s3")
        A(f"s_lshr_b32 s{S_B}, s14, 2")
        A(f"s_mul_i32 s3, s{S_BR}, 40")
        A("s_add_u32 s14, s0, s3")
        A("s_addc_u32 s15, s1, 0")
        A("s_load_dwordx8 s[4:11], s[14:15], 0")
        A("s_load_dwordx2 s[12:13], s[0:1], 96")
        A(f"v_and_b32 v{V_LANE}, 63, v0")
        A(f"v_lshrrev_b32 v{V_T}, 6, v0")
        A("s_nop 0")
        A(f"v_readfirstlane_b32 s{S_W}, v{V_T}")
        L = V_LANE
        t0, t1, t2 = V_T, V_T + 1, V_T + 2
        A(f"v_lshrrev_b32 v{t0}, 2, v{L}")
        A(f"v_mul_u32_u24 v{t0}, 1152, v{t0}")
        A(f"v_lshrrev_b32 v{t1}, 4, v{L}")
        A(f"v_sub_u32 v{t1}, 0, v{t1}")
        A(f"v_and_b32 v{t1}, 3, v{t1}")
        A(f"v_and_b32 v{t2}, 3, v{L}")
        A(f"v_xor_b32 v{t1}, v{t1}, v{t2}")
        A(f"v_lshl_add_u32 v{V_XDMA}, v{t1}, 4, v{t0}")
        A(f"v_lshrrev_b32 v{t0}, 5, v{L}")
        A(f"v_lshlrev_b32 v{t0}, 16, v{t0}")
        A(f"v_and_b32 v{t1}, 31, v{L}")
        A(f"v_lshl_add_u32 v{V_WDMA}, v{t1}, 4, v{t0}")
        A("s_waitcnt lgkmcnt(0)")
        w, b, h, br = S_W, S_B, S_H, S_BR
        A(f"s_mul_i32 s3, s{b}, 184320")
        A(f"s_add_u32 s{S_X}, s4, s3\ns_addc_u32 s{S_X+1}, s5, 0\ns_mov_b32 s{S_X+2}, 184320\ns_mov_b32 s{S_X+3}, 0x20000")
        A(f"s_lshl_b32 s3, s{h}, 9")
        A(f"s_add_u32 s{S_WQ}, s10, s3\ns_addc_u32 s{S_WQ+1}, s11, 0")
        A(f"s_sub_u32 s{S_WQ+2}, {576*8192}, s3\ns_mov_b32 s{S_WQ+3}, 0x20000")
        A(f"s_lshl_b32 s3, s{b}, 4\ns_add_u32 s3, s3, s{h}")
        A("s_lshr_b32 s14, s3, 14\ns_lshl_b32 s3, s3, 18")
        for (srd, lo) in ((S_K, 6), (S_V, 8)):
            A(f"s_add_u32 s{srd}, s{lo}, s3\ns_addc_u32 s{srd+1}, s{lo+1}, s14")
            A(f"s_sub_u32 s{srd}, s{srd}, {BIAS}\ns_subb_u32 s{srd+1}, s{srd+1}, 0")
            A(f"s_mov_b32 s{srd+2}, {262144+BIAS}\ns_mov_b32 s{srd+3}, 0x20000")
        A(f"s_lshl_b32 s3, s{br}, 3\ns_add_u32 s3, s3, s{b}")
        A(f"s_mul_i32 s3, s3, {10*self.QS}")
        A(f"s_lshl_b32 s14, s{h}, 1\ns_lshr_b32 s15, s{w}, 1\ns_add_u32 s14, s14, s15")
        A("s_lshl_b32 s14, s14, 12")
        A("s_add_u32 s3, s3, s14")
        A(f"s_and_b32 s15, s{w}, 1\ns_mul_i32 s15, s15, {5*self.QS}")
        A("s_add_u32 s3, s3, s15")
        A(f"s_add_u32 s{S_O}, s12, s3\ns_addc_u32 s{S_O+1}, s13, 0")
        A(f"s_mov_b32 s{S_O+2}, {4*self.QS+4096}\ns_mov_b32 s{S_O+3}, 0x20000")
        A(f"s_mul_i32 s3, s{w}, 3\ns_lshl_b32 s14, s{w}, 1\ns_add_u32 s14, s14, 1")
        A(f"s_cmp_lt_u32 s{w}, 2\ns_cselect_b32 s3, s3, s14")
        A(f"s_mul_i32 s{S_XSO}, s3, 18432\ns_lshl_b32 s{S_XM0}, s3, 10")
        A(f"s_and_b32 s3, s{w}, 1\ns_lshl_b32 s3, s3, 2\ns_lshr_b32 s14, s{w}, 1\ns_lshl_b32 s14, s14, 4\ns_add_u32 s3, s3, s14")
        A(f"s_lshl_b32 s{S_WSO}, s3, 13")
        A(f"s_mul_i32 s{S_WM0}, s{w}, {4*WBLK}\ns_add_u32 s{S_WM0}, s{S_WM0}, {WOFF}")
        A(f"s_mul_i32 s{S_KM0W}, s{w}, {4*BLK}")

    def dma_chunk(self, cc, inter=None):
        st = STAGE[cc % 3]
        G = []
        for i in range(3):
            g = [f"s_add_u32 s{S_T0}, s{S_XSO}, {i*18432 + cc*64}",
                 f"s_add_u32 m0, s{S_XM0}, {st + XOFF + i*1024}",
                 "s_nop 0",
                 f"buffer_load_dwordx4 v{V_XDMA}, s[{S_X}:{S_X+3}], s{S_T0} offen{self.o.get('ntq','')} lds"]
            G.append(("x", i, g))
        for i in range(4):
            g = [f"s_add_u32 s{S_T1}, s{S_WSO}, {(32*cc + i)*8192}",
                 f"s_add_u32 m0, s{S_WM0}, {st + i*WBLK}",
                 "s_nop 0",
                 f"buffer_load_dwordx4 v{V_WDMA}, s[{S_WQ}:{S_WQ+3}], s{S_T1} offen{self.o.get('ntq','')} lds"]
            G.append(("w", i, g))
        return G

    def emit_chunk_dma_group(self, kind, i, g, cc, uid):
        A = self.A
        if kind == "x" and i == 2:
            A(f"s_cmp_ge_u32 s{S_W}, 2")
            A(f"s_cbranch_scc1 K1_SKX_{uid}")
            for l in g: A(l)
            A(f"K1_SKX_{uid}:")
        else:
            for l in g: A(l)
            self.vm_issue(("c", cc))

    def kv_dma(self, kind, tile_imm=None, slot_imm=None):
        nt = " nt" if self.o.get("nt", True) else ""
        srd = S_K if kind == "K" else S_V
        vd = V_KDMA if kind == "K" else V_VDMA
        ring = KRING if kind == "K" else VRING
        L = []
        L.append(f"s_add_u32 m0, s{S_KM0W}, {ring + slot_imm*TILE}")
        L.append(f"s_mov_b32 s{S_T2}, {tile_imm*16384}")
        for i in range(4):
            L.append(f"buffer_load_dwordx4 v{vd+i}, s[{srd}:{srd+3}], s{S_T2} offen offset:{i*BLK}{nt} lds")
        return L

    def setup2(self):
        A = self.A
        L = V_LANE
        t0, t1, t2, t3 = V_T, V_T + 1, V_T + 2, V_T + 3
        w = S_W
        A(f"v_and_b32 v{t0}, 15, v{L}")
        A(f"v_lshrrev_b32 v{t1}, 2, v{t0}")
        A(f"v_sub_u32 v{t1}, 0, v{t1}")
        A(f"v_and_b32 v{t1}, 3, v{t1}")
        A(f"v_lshrrev_b32 v{t2}, 4, v{L}")
        A(f"v_xor_b32 v{t1}, v{t1}, v{t2}")
        A(f"v_lshlrev_b32 v{t1}, 4, v{t1}")
        A(f"v_lshl_add_u32 v{t1}, v{t0}, 6, v{t1}")
        A(f"s_and_b32 s3, s{w}, 1\ns_mul_i32 s3, s3, 5120")
        A(f"v_add_u32 v{t1}, s3, v{t1}")
        A(f"v_add_u32 v{V_XRD+1}, {XOFF}, v{t1}")
        A(f"v_lshrrev_b32 v{t0}, 2, v{L}\nv_and_b32 v{t0}, 3, v{t0}")
        A(f"v_lshrrev_b32 v{t1}, 5, v{L}")
        A(f"v_lshl_add_u32 v{t0}, v{t1}, 3, v{t0}")
        A(f"v_mul_u32_u24 v{t0}, {WBLK}, v{t0}")
        A(f"v_lshrrev_b32 v{t1}, 4, v{L}\nv_and_b32 v{t1}, 1, v{t1}")
        A(f"v_lshl_add_u32 v{t0}, v{t1}, 9, v{t0}")
        A(f"v_and_b32 v{t1}, 3, v{L}")
        A(f"v_lshl_add_u32 v{t0}, v{t1}, 4, v{t0}")
        A(f"s_lshr_b32 s3, s{w}, 1\ns_lshl_b32 s3, s3, 8")
        A(f"v_add_u32 v{t0}, s3, v{t0}")
        A(f"v_add_u32 v{V_WRD+1}, {WOFF}, v{t0}")

    def setup_kv(self):
        A = self.A
        L = V_LANE
        t0, t1, t2, t3 = V_T, V_T + 1, V_T + 2, V_T + 3
        w = S_W
        A(f"v_lshrrev_b32 v{t0}, 4, v{L}\nv_and_b32 v{t1}, 15, v{L}\nv_lshlrev_b32 v{t1}, 4, v{t1}")
        A(f"v_lshl_add_u32 v{t2}, v{t0}, 12, v{t1}")
        A(f"s_lshl_b32 s3, s{w}, 10")
        A(f"v_add_u32 v{t2}, s3, v{t2}")
        for i in range(4):
            A(f"v_add_u32 v{V_KDMA+i}, {BIAS - 800*i}, v{t2}")
        A(f"v_lshl_add_u32 v{t2}, v{t0}, 11, v{t1}")
        A(f"s_lshr_b32 s3, s{w}, 1\ns_lshl_b32 s3, s3, 13\ns_and_b32 s14, s{w}, 1\ns_lshl_b32 s14, s14, 10\ns_add_u32 s3, s3, s14")
        A(f"v_add_u32 v{t2}, s3, v{t2}")
        for i in range(4):
            A(f"v_add_u32 v{V_VDMA+i}, {BIAS - 800*i}, v{t2}")
        A(f"v_and_b32 v{t1}, 15, v{L}\nv_mul_u32_u24 v{t1}, {BLK}, v{t1}")
        A(f"v_lshl_add_u32 v{V_KLANE}, v{t0}, 4, v{t1}")
        A(f"v_lshrrev_b32 v{t1}, 2, v{L}\nv_and_b32 v{t1}, 7, v{t1}")
        A(f"v_mul_u32_u24 v{t1}, {BLK}, v{t1}")
        A(f"v_lshrrev_b32 v{t2}, 5, v{L}")
        A(f"v_lshl_add_u32 v{t1}, v{t2}, 8, v{t1}")
        A(f"v_and_b32 v{t2}, 3, v{L}")
        A(f"v_lshl_add_u32 v{V_VLANE}, v{t2}, 3, v{t1}")

    def warm(self):
        mode = self.o.get("warm", None)
        if mode is None: return
        A = self.A
        gran = self.o.get("wgran", 128)
        pol = mode
        A(f"s_mov_b32 s84, s4\ns_mov_b32 s85, s5\ns_mov_b32 s86, {8*184320}\ns_mov_b32 s87, 0x20000")
        A(f"s_and_b32 s3, s2, 3\ns_lshl_b32 s3, s3, 11")
        A(f"s_add_u32 s88, s10, s3\ns_addc_u32 s89, s11, 0\ns_sub_u32 s90, {576*8192}, s3\ns_mov_b32 s91, 0x20000")
        A(f"s_lshr_b32 s3, s2, 3\ns_lshl_b32 s3, s3, 8")
        t0, t1, t2 = 72, 73, 74
        A(f"v_add_u32 v{t0}, s3, v0")
        nx = (8*184320 // gran + 8191) // 8192
        nw = (576*2048 // gran + 8191) // 8192
        lg = {128: 7, 64: 6}[gran]
        per_row = 2048 // gran
        lgr = {16: 4, 32: 5}[per_row]
        d = 76
        for i in range(max(nx, nw)):
            if i < nw:
                A(f"v_add_u32 v{t1}, {8192*i}, v{t0}")
                A(f"v_lshrrev_b32 v{t2}, {lgr}, v{t1}\nv_lshlrev_b32 v{t2}, 13, v{t2}")
                A(f"v_and_b32 v{t1}, {per_row-1}, v{t1}\nv_lshl_add_u32 v{t1}, v{t1}, {lg}, v{t2}")
                A(f"buffer_load_dword v{d}, v{t1}, s[88:91], 0 offen{pol}"); d += 1
                self.vm_issue(("warm",))
            if i < nx:
                A(f"v_add_u32 v{t1}, {8192*i}, v{t0}\nv_lshlrev_b32 v{t1}, {lg}, v{t1}")
                A(f"buffer_load_dword v{d}, v{t1}, s[84:87], 0 offen{pol}"); d += 1
                self.vm_issue(("warm",))

    def frag_reads(self, cc):
        st = cc % 3
        buf = cc & 1
        R = []
        for t in range(5):
            R.append(f"ds_read_b128 {vr(V_XF[buf]+4*t,4)}, v{V_XRD+st} offset:{t*1024}")
        for T in range(8):
            for hh in range(2):
                off = hh * 4 * WBLK + 64 * (T >> 1) + 8 * (T & 1)
                R.append(f"ds_read_b64_tr_b16 {ar(A_WF[buf]+4*T+2*hh,2)}, v{V_WRD+st} offset:{off}")
        return R

    def qproj(self):
        A = self.A
        NC = 18
        SC, ST0, ST1, ST2, XS, WS = 92, 93, 94, 95, 96, 97
        XA, WA = V_XRD, V_WRD
        XL, WL = V_XRD + 1, V_WRD + 1
        XD = [V_XDMA, 62, 63]
        WD = [V_WDMA, 64, 65, 66]
        ntq = self.o.get('ntq', '')
        for n in (1, 2): A(f"v_add_u32 v{XD[n]}, {n*(18432-1024)}, v{V_XDMA}")
        for n in (1, 2, 3): A(f"v_add_u32 v{WD[n]}, {n*(8192-WBLK)}, v{V_WDMA}")
        def xdma(): return [f"buffer_load_dwordx4 v{XD[n]}, s[{S_X}:{S_X+3}], s{XS} offen offset:{n*1024}{ntq} lds" for n in range(3)]
        def wdma(): return [f"buffer_load_dwordx4 v{WD[n]}, s[{S_WQ}:{S_WQ+3}], s{WS} offen offset:{n*WBLK}{ntq} lds" for n in range(4)]
        RC = 98
        if self.o.get("rot", True):
            A(f"s_and_b32 s3, s{S_H}, 3\ns_mul_i32 s3, s3, 5\ns_lshl_b32 s{RC}, s{S_B}, 1\ns_add_u32 s{RC}, s{RC}, s3")
            A(f"s_cmp_ge_u32 s{RC}, 18\ns_cselect_b32 s3, 18, 0\ns_sub_u32 s{RC}, s{RC}, s3")
        else:
            A(f"s_mov_b32 s{RC}, 0")
        def adv():
            return [f"s_add_u32 s{RC}, s{RC}, 1", f"s_cmp_ge_u32 s{RC}, 18", f"s_cselect_b32 s{RC}, 0, s{RC}",
                    f"s_lshl_b32 s{XS}, s{RC}, 6", f"s_add_u32 s{XS}, s{XS}, s{S_XSO}",
                    f"s_lshl_b32 s{WS}, s{RC}, 18", f"s_add_u32 s{WS}, s{WS}, s{S_WSO}"]
        for l in adv()[3:]: A(l)
        for cc in range(3):
            A(f"s_add_u32 m0, s{S_XM0}, {STAGE[cc]+XOFF}")
            A(f"s_nop 0")
            for l in xdma(): A(l)
            A(f"s_add_u32 m0, s{S_WM0}, {STAGE[cc]}")
            A(f"s_nop 0")
            for l in wdma(): A(l)
            for l in adv(): A(l)
            self.vm_issue(("c", cc), 7)
        self.warm()
        self.setup2()
        self.setup_kv()
        z = 68
        for i in range(4): A(f"v_mov_b32 v{z+i}, 0")
        A("s_nop 1")
        for i in range(10):
            A(f"v_mfma_f32_32x32x16_bf16 {vr(V_QACC+16*i,16)}, {vr(z,4)}, {vr(z,4)}, 0")
        for i in range(10):
            A(f"v_mfma_f32_32x32x16_bf16 {ar(A_O+16*i,16)}, {vr(z,4)}, {vr(z,4)}, 0")
        for (k, tile, slot) in (("K", 0, 0), ("K", 1, 1), ("V", 0, 0)):
            for l in self.kv_dma(k, tile, slot): A(l)
            self.vm_issue((k, tile), 4)
        A(f"s_mov_b32 s{SC}, 0")
        A(f"s_mov_b32 s{ST0}, {STAGE[0]}\ns_mov_b32 s{ST1}, {STAGE[1]}\ns_mov_b32 s{ST2}, {STAGE[2]}")
        A(f"s_waitcnt vmcnt({self.vm_wait_n({('c',0)})})")
        A("s_barrier")
        self.stamp()
        A(f"v_add_u32 v{XA}, s{ST0}, v{XL}\nv_add_u32 v{WA}, s{ST0}, v{WL}")
        def reads(buf):
            R = []
            for t in range(5):
                R.append(f"ds_read_b128 {vr(V_XF[buf]+4*t,4)}, v{XA} offset:{t*1024}")
            for T in range(8):
                for hh in range(2):
                    off = hh * 4 * WBLK + 64 * (T >> 1) + 8 * (T & 1)
                    R.append(f"ds_read_b64_tr_b16 {ar(A_WF[buf]+4*T+2*hh,2)}, v{WA} offset:{off}")
            return R
        for r in reads(0): A(r)
        def chunk(par, dma, rd, top):
            buf = par
            for l in top: A(l)
            if rd:
                A(f"v_add_u32 v{XA}, s{ST1}, v{XL}\nv_add_u32 v{WA}, s{ST1}, v{WL}")
            M = []
            for T in range(8):
                for t in range(5):
                    d = vr(V_QACC + (T*5 + t)*4, 4)
                    M.append(mfma(d, ar(A_WF[buf]+4*T, 4), vr(V_XF[buf]+4*t, 4), d))
            fill = [[] for _ in range(40)]
            R = reads(buf ^ 1) if (rd and not self.o.get("qp_nods")) else []
            dpos = self.o.get("qdpos", [2, 7, 12, 17, 22, 27, 32])
            m0pos = (dpos[0] - 1, dpos[3] - 1)
            slots = [g for g in range(0, 34) if g not in dpos and g not in m0pos]
            for i, r in enumerate(R):
                fill[slots[(i * len(slots)) // len(R)]].append(r)
            if dma and not self.o.get("qp_nodma"):
                fill[m0pos[0]].append(f"s_add_u32 m0, s{S_XM0}, s{ST0}")
                xd, wd = xdma(), wdma()
                for n in range(3): fill[dpos[n]].append(xd[n])
                fill[m0pos[1]].append(f"s_add_u32 m0, s{S_WM0}, s{ST0}")
                for n in range(4): fill[dpos[3+n]].append(wd[n])
            sal = [f"s_mov_b32 s{S_T2}, s{ST0}", f"s_mov_b32 s{ST0}, s{ST1}", f"s_mov_b32 s{ST1}, s{ST2}", f"s_mov_b32 s{ST2}, s{S_T2}",
                   f"s_add_u32 s{SC}, s{SC}, 1"] + adv()
            g = 33
            for i in range(0, len(sal), 2):
                fill[g] += sal[i:i+2]; g += 1
            for m in range(40):
                A(M[m])
                for l in fill[m]: A(l)
        A(".p2align 6")
        A("K1_QLOOP:")
        start = len(A.lines)
        for par in range(2):
            top = []
            nw = 7 if not self.o.get("qp_nowait") else 63
            if par == 0 or True:
                top += [f"s_cmp_lt_u32 s{SC}, 2", f"s_cbranch_scc1 K1_QW{par}", f"s_waitcnt vmcnt({nw})", f"K1_QW{par}:"]
            top += ["s_waitcnt vmcnt(19) lgkmcnt(0)" if nw == 7 else "s_waitcnt lgkmcnt(0)"]
            if not self.o.get("qp_nobar"): top.append("s_barrier")
            chunk(par, True, True, top)
        A(f"s_cmp_lt_u32 s{SC}, 16")
        A("s_cbranch_scc1 K1_QLOOP")
        self.qloop_lines = A.lines[start:]
        if self.o.get("prof2"): self.stamp()
        chunk(0, False, True, ["s_waitcnt vmcnt(7) lgkmcnt(0)", "s_barrier"])
        chunk(1, False, False, ["s_waitcnt lgkmcnt(0)", "s_barrier"])
        if self.o.get("prof2"): self.stamp()
        for (k, tile, slot) in (("K", 2, 2), ("V", 1, 1), ("K", 3, 3), ("V", 2, 2)):
            for l in self.kv_dma(k, tile, slot): A(l)
            self.vm_issue((k, tile), 4)

    def qconvert(self):
        A = self.A
        A(f"s_mov_b32 s{S_SCALE}, 0x3e0293ee")
        A("s_nop 7")
        for t in range(5):
            for s in range(4):
                for half in range(2):
                    T = 2*s + half
                    src = V_QACC + (T*5 + t)*4
                    for r in range(4):
                        A(f"v_mul_f32 v{src+r}, s{S_SCALE}, v{src+r}")
                    dst = V_Q + 16*t + 4*s + 2*half
                    A(f"v_cvt_pk_bf16_f32 v{dst}, v{src}, v{src+1}")
                    A(f"v_cvt_pk_bf16_f32 v{dst+1}, v{src+2}, v{src+3}")

    def k_read(self, n, half):
        kt = 2*half + (n >> 2); s = n & 3
        return f"ds_read_b128 {ar(A_KF+4*n,4)}, v{V_KAD} offset:{kt*256 + s*64}"
    def v_read(self, n, mb):
        dt = n >> 1; hh = n & 1
        return f"ds_read_b64_tr_b16 {ar(A_VF+4*dt+2*hh,2)}, v{V_VAD} offset:{mb*8*BLK + hh*512 + dt*32}"
    def qk_mfmas(self, sb, first_c=None):
        M = []
        for ktl in range(2):
            for s in range(4):
                for t in range(5):
                    d = vr(sb + 8*t + 4*ktl, 4)
                    if s == 0:
                        c = vr(V_CI + 4*t, 4) if first_c is None else first_c
                    else:
                        c = d
                    M.append(mfma(d, ar(A_KF + 4*(ktl*4+s), 4), vr(V_Q + 16*t + 4*s, 4), c))
        return M
    def pv_mfmas(self, sb):
        M = []
        for dt in range(8):
            for t in range(5):
                d = ar(A_O + (dt*5 + t)*4, 4)
                M.append(mfma(d, ar(A_VF + 4*dt, 4), vr(sb + 8*t, 4), d))
        return M
    def item(self, it, sb, khalf, vmb, dma):
        k = it[0]
        if k == 'exp':
            r = sb + 8*it[1] + it[2]
            return [f"v_exp_f32 v{r}, v{r}"]
        if k == 'add':
            r = sb + 8*it[1] + it[2]
            return [f"v_add_f32 v{V_L+it[1]}, v{V_L+it[1]}, v{r}"]
        if k == 'cvt':
            r = sb + 8*it[1]
            p = it[2]
            return [f"v_cvt_pk_bf16_f32 v{r+p}, v{r+2*p}, v{r+2*p+1}"]
        if k == 'K':
            return [self.k_read(it[1], khalf)] if khalf is not None else []
        if k == 'V':
            return [self.v_read(it[1], vmb)] if vmb is not None else []
        if k == 'DMA':
            return dma or []
    def phase(self, M, gaps, sb, khalf=None, vmb=None, dma=None, pre=None, head=None):
        A = self.A
        for i in range(40):
            if M is not None:
                A(M[i])
            else:
                A("s_nop 0")
            if head and i in head:
                for l in head[i]: A(l)
            if gaps is not None:
                for it in gaps[i]:
                    for l in self.item(it, sb, khalf, vmb, dma): A(l)

    def loop_dma(self, kind):
        nt = " nt" if self.o.get("nt", True) else ""
        srd = S_K if kind == "K" else S_V
        vd = V_KDMA if kind == "K" else V_VDMA
        so = S_KSOFF if kind == "K" else S_VSOFF
        return [f"buffer_load_dwordx4 v{vd+i}, s[{srd}:{srd+3}], s{so} offen offset:{i*BLK}{nt} lds" for i in range(4)]

    def slot_adv(self, s, base):
        return [f"s_add_u32 s{s}, s{s}, {TILE}",
                f"s_cmp_ge_u32 s{s}, s{S_T0}" if False else None]

    def attention(self):
        A = self.A
        W = window_schedule(exp_end=66, ds_end_a=24, ds_end_b=64)
        GA, GB = W[:40], W[40:]
        S0, S1 = V_S
        A.c("---- attention prologue")
        A(f"s_waitcnt vmcnt({self.vm_wait_n({('K',0)})})")
        A("s_barrier")
        A(f"v_mov_b32 v{V_KAD}, v{V_KLANE}")
        A(f"v_add_u32 v{V_VAD}, {VRING}, v{V_VLANE}")
        for n in range(8): A(self.k_read(n, 0))
        for t in range(5): A(f"v_mov_b32 v{V_L+t}, 0")
        A("s_waitcnt lgkmcnt(0)")
        for m in self.qk_mfmas(S0, first_c="0"): A(m)
        for n in range(8): A(self.k_read(n, 1))
        A("s_nop 7")
        T = V_T
        for t in range(5):
            r = S0 + 8*t
            A(f"v_max3_f32 v{T+t}, v{r}, v{r+1}, v{r+2}")
            A(f"v_max3_f32 v{T+t}, v{T+t}, v{r+3}, v{r+4}")
            A(f"v_max3_f32 v{T+t}, v{T+t}, v{r+5}, v{r+6}")
            A(f"v_max_f32 v{T+t}, v{T+t}, v{r+7}")
        for sw in ("v_permlane32_swap_b32", "v_permlane16_swap_b32"):
            for t in range(5): A(f"v_mov_b32 v{T+5+t}, v{T+t}")
            A("s_nop 1")
            for t in range(5): A(f"{sw} v{T+t}, v{T+5+t}")
            A("s_nop 1")
            for t in range(5): A(f"v_max_f32 v{T+t}, v{T+t}, v{T+5+t}")
        for t in range(5):
            for i in range(8):
                A(f"v_sub_f32 v{S0+8*t+i}, v{S0+8*t+i}, v{T+t}")
            for i in range(4):
                A(f"v_sub_f32 v{V_CI+4*t+i}, 0, v{T+t}")
        self.phase(None, GA, S0, khalf=None)
        if self.o.get("warmwo") is not None:
            pol = self.o.get("warmwo")
            A(f"s_mul_i32 s3, s{S_BR}, 40\ns_add_u32 s14, s0, s3\ns_addc_u32 s15, s1, 0")
            A("s_load_dwordx2 s[84:85], s[14:15], 32")
            A(f"s_lshl_b32 s3, s{S_B}, 4\ns_add_u32 s3, s3, s{S_H}\ns_mul_i32 s3, s3, {288*128}")
            A(f"v_lshlrev_b32 v{V_T+12}, 7, v0\nv_add_u32 v{V_T+12}, s3, v{V_T+12}")
            A(f"v_add_u32 v{V_T+13}, {256*128}, v{V_T+12}")
            A("s_waitcnt lgkmcnt(0)")
            A(f"s_add_u32 s14, s3, {288*128}")
            A(f"s_mov_b32 s86, s14\ns_mov_b32 s87, 0x20000")
            A(f"buffer_load_dword v{V_T+14}, v{V_T+12}, s[84:87], 0 offen{pol}")
            A(f"buffer_load_dword v{V_T+14}, v{V_T+13}, s[84:87], 0 offen{pol}")
        A(f"s_mov_b32 s{S_KSLOT}, {KRING + TILE}")
        A(f"s_mov_b32 s{S_VSLOT}, {VRING}")
        A(f"s_add_u32 s{S_KDSLOT}, s{S_KM0W}, {KRING}")
        A(f"s_add_u32 s{S_VDSLOT}, s{S_KM0W}, {VRING + 3*TILE}")
        A(f"s_mov_b32 s{S_KSOFF}, {4*16384}")
        A(f"s_mov_b32 s{S_VSOFF}, {3*16384}")
        A(f"s_mov_b32 s{S_LOOP}, 15")
        def body(last):
            top = ["s_waitcnt vmcnt(16) lgkmcnt(0)" if not last else "s_waitcnt vmcnt(0) lgkmcnt(0)", "s_barrier"]
            for l in top: A(l)
            A(f"v_add_u32 v{V_VAD}, s{S_VSLOT}, v{V_VLANE}")
            head1 = {0: [f"s_mov_b32 m0, s{S_KDSLOT}"]}
            self.phase(self.qk_mfmas(S1), GB, S0, vmb=0, dma=None if last else self.loop_dma("K"), head=head1)
            A("s_waitcnt lgkmcnt(0)")
            A(f"v_add_u32 v{V_KAD}, s{S_KSLOT}, v{V_KLANE}")
            self.phase(self.pv_mfmas(S0), GA, S1, khalf=None if last else 0)
            A("s_waitcnt lgkmcnt(0)")
            head3 = {0: [f"s_mov_b32 m0, s{S_VDSLOT}"]}
            self.phase(None if last else self.qk_mfmas(S0), GB, S1, vmb=1, dma=None if last else self.loop_dma("V"), head=head3)
            A("s_waitcnt lgkmcnt(0)")
            if last:
                A("s_nop 1")
                self.phase(self.pv_mfmas(S1), None, S0)
            else:
                adv = []
                for (s, base, woff) in ((S_KSLOT, KRING, False), (S_VSLOT, VRING, False), (S_KDSLOT, KRING, True), (S_VDSLOT, VRING, True)):
                    adv.append([f"s_add_u32 s{s}, s{s}, {TILE}"])
                head4 = {}
                seq = []
                for (s, base, woff) in ((S_KSLOT, KRING, False), (S_VSLOT, VRING, False), (S_KDSLOT, KRING, True), (S_VDSLOT, VRING, True)):
                    seq.append([f"s_add_u32 s{s}, s{s}, {TILE}", f"s_cmp_ge_u32 s{s}, {base + 4*TILE}"])
                    seq.append([f"s_cselect_b32 s{S_T0}, {4*TILE}, 0", f"s_sub_u32 s{s}, s{s}, s{S_T0}"])
                seq.append([f"s_add_u32 s{S_KSOFF}, s{S_KSOFF}, 16384", f"s_add_u32 s{S_VSOFF}, s{S_VSOFF}, 16384"])
                for n, sq in enumerate(seq):
                    head4[24 + n] = sq
                self.phase(self.pv_mfmas(S0 if False else S1), GA, S0, khalf=1, head=head4)
        self.stamp()
        A(".p2align 6")
        A("K1_LOOP:")
        start = len(A.lines)
        body(False)
        A(f"s_sub_u32 s{S_LOOP}, s{S_LOOP}, 1")
        A(f"s_cmp_lg_u32 s{S_LOOP}, 0")
        A("s_cbranch_scc1 K1_LOOP")
        self.loop_lines = A.lines[start:]
        body(True)

    def epilogue(self):
        A = self.A
        T = V_T
        A.c("---- epilogue: normalise and store o fragments")
        for sw in ("v_permlane32_swap_b32", "v_permlane16_swap_b32"):
            for t in range(5): A(f"v_mov_b32 v{T+t}, v{V_L+t}")
            A("s_nop 1")
            for t in range(5): A(f"{sw} v{V_L+t}, v{T+t}")
            A("s_nop 1")
            for t in range(5): A(f"v_add_f32 v{V_L+t}, v{V_L+t}, v{T+t}")
        for t in range(5): A(f"v_rcp_f32 v{V_L+t}, v{V_L+t}")
        A(f"v_lshlrev_b32 v{T+10}, 4, v{V_LANE}")
        A("s_nop 7")
        n = 0
        for t in range(5):
            for s in range(4):
                b = V_S[0] + (n % 6) * 12
                for half in range(2):
                    a0 = A_O + ((2*s+half)*5 + t)*4
                    for r in range(4):
                        A(f"v_accvgpr_read_b32 v{b+4*half+r}, a{a0+r}")
                for r in range(8):
                    A(f"v_mul_f32 v{b+r}, v{V_L+t}, v{b+r}")
                for p in range(4):
                    A(f"v_cvt_pk_bf16_f32 v{b+8+p}, v{b+2*p}, v{b+2*p+1}")
                A(f"s_mov_b32 s{S_T0}, {t*self.QS + s*1024}")
                A(f"buffer_store_dwordx4 {vr(b+8,4)}, v{T+10}, s[{S_O}:{S_O+3}], s{S_T0} offen{self.o.get('nto','')}")
                n += 1

    def build(self):
        A = self.A
        A(".p2align 8\n.type k1_kernel,@function\nk1_kernel:")
        self.stamp()
        self.setup()
        self.qproj()
        self.stamp()
        self.qconvert()
        self.attention()
        self.stamp()
        self.epilogue()
        self.stamp()
        self.dump_stamps()
        A("K1_END:")
        A("s_endpgm")
        return A
```

```python
from asmlib import *

D = 4
WST = 6144
WAVE_LDS = D * WST
LDS_TOTAL = 4 * WAVE_LDS

V_LANE = 1
V_WD = 2
V_OB = 8
V_AE, V_AO = 9, 10
V_T = 11
V_ACC = 64
V_B = 160
A_A = [0, 24]

S_O, S_WO, S_OUT = 16, 20, 24
S_W, S_BR, S_MT, S_NT = 36, 37, 38, 39
S_KS = 40
S_OSO = 41
S_WSO = 42
S_M0B = 43
S_T0, S_T1 = 44, 45
S_LOOP = 46

def mfma(d, a, b, c):
    return f"v_mfma_f32_16x16x32_bf16 {d}, {a}, {b}, {c}"

class K2:
    def __init__(self, opts=None):
        self.o = opts or {}
        self.A = Asm()
        self.QS = 131072 + self.o.get("qpad", 0)
        self.D = self.o.get("D2", 4)
        self.WAVE_LDS = self.D * WST
        self.LDS = max(4 * self.WAVE_LDS, 98304)
        self.VB = 160 if self.D <= 6 else None
    def stamp(self):
        if not self.o.get("prof"): return
        i = self.nst = getattr(self, "nst", 0) + 1
        b = 60 + (i-1)*4
        self.A(f"s_memtime s[{b}:{b+1}]")
        self.A(f"s_memrealtime s[{b+2}:{b+3}]")
    def dump_stamps(self):
        if not self.o.get("prof"): return
        A = self.A
        A("s_waitcnt lgkmcnt(0) vmcnt(0)")
        A("s_load_dwordx2 s[4:5], s[0:1], 96")
        A("s_waitcnt lgkmcnt(0)")
        A(f"s_add_u32 s4, s4, {(129<<20)}\ns_addc_u32 s5, s5, 0\ns_mov_b32 s6, 0x100000\ns_mov_b32 s7, 0x20000")
        A(f"s_lshl_b32 s3, s2, 2\ns_add_u32 s3, s3, s{S_W}\ns_lshl_b32 s3, s3, 7")
        A("s_mov_b64 exec, 1")
        for i in range(self.nst):
            b = 60 + i*4
            A(f"v_mov_b32 v2, s{b}\nv_mov_b32 v3, s{b+2}\nv_mov_b32 v4, s3")
            A(f"buffer_store_dwordx2 v[2:3], v4, s[4:7], 0 offen offset:{i*8}")
            A("s_nop 1")
    def loads_dma(self, st):
        L = []
        for i in range(6):
            L.append([f"s_add_u32 m0, s{S_M0B}, {st*WST + i*1024}",
                      "s_nop 0",
                      f"buffer_load_dwordx4 v{V_WD+i}, s[{S_WO}:{S_WO+3}], s{S_WSO} offen{self.o.get('nt2w','')} lds"])
        return L
    def loads_b(self, st):
        L = []
        for qi in range(4):
            L.append([f"s_add_u32 s{S_T0}, s{S_OSO}, {qi*self.QS}",
                      f"buffer_load_dwordx4 {vr(self.VB+16*st+4*qi,4)}, v{V_OB}, s[{S_O}:{S_O+3}], s{S_T0} offen{self.o.get('nt2o','')}"])
        return L
    def adv(self):
        return [f"s_add_u32 s{S_KS}, s{S_KS}, 4", f"s_and_b32 s{S_KS}, s{S_KS}, 127",
                f"s_lshl_b32 s{S_OSO}, s{S_KS}, 10", f"s_mul_i32 s{S_WSO}, s{S_KS}, {32*1152}"]
    def a_reads(self, st, buf):
        R = []
        for nt in range(6):
            for hh in range(2):
                v = V_AE if nt % 2 == 0 else V_AO
                R.append(f"ds_read_b64_tr_b16 {ar(A_A[buf]+4*nt+2*hh,2)}, v{v} offset:{st*WST + hh*3072 + nt*32}")
        return R
    def build(self):
        A = self.A
        A(".p2align 8\n.type k2_kernel,@function\nk2_kernel:")
        A("s_cmp_ge_u32 s2, 240")
        A("s_cbranch_scc1 K2_END")
        self.stamp()
        if self.o.get("badmap2"):
            A("s_mul_i32 s3, s2, 2185\ns_lshr_b32 s3, s3, 16\ns_mul_i32 s14, s3, 30\ns_sub_u32 s14, s2, s14")
        else:
            A("s_and_b32 s3, s2, 7\ns_lshr_b32 s14, s2, 3")
        A(f"s_lshr_b32 s{S_BR}, s3, 2\ns_and_b32 s3, s3, 3")
        A("s_mul_i32 s15, s14, 43\ns_lshr_b32 s15, s15, 8")
        A(f"s_mul_i32 s{S_NT}, s15, 6\ns_sub_u32 s{S_NT}, s14, s{S_NT}")
        A(f"s_mul_i32 s{S_MT}, s3, 5\ns_add_u32 s{S_MT}, s{S_MT}, s15")
        A(f"s_mul_i32 s3, s{S_BR}, 40\ns_add_u32 s14, s0, s3\ns_addc_u32 s15, s1, 0")
        A("s_load_dwordx2 s[4:5], s[14:15], 32")
        A("s_load_dwordx2 s[6:7], s[0:1], 80")
        A("s_load_dwordx2 s[8:9], s[0:1], 96")
        L = V_LANE
        A(f"v_and_b32 v{L}, 63, v0\nv_lshrrev_b32 v{V_T}, 6, v0\ns_nop 0\nv_readfirstlane_b32 s{S_W}, v{V_T}")
        t0, t1, t2, t3 = V_T, V_T+1, V_T+2, V_T+3
        for i in range(6):
            A(f"v_add_u32 v{t0}, {64*i}, v{L}")
            A(f"v_mul_u32_u24 v{t1}, 43691, v{t0}\nv_lshrrev_b32 v{t1}, 19, v{t1}")
            A(f"v_mul_u32_u24 v{t2}, 12, v{t1}\nv_sub_u32 v{t2}, v{t0}, v{t2}")
            A(f"v_lshrrev_b32 v{t3}, 2, v{t1}\nv_and_b32 v{t3}, 1, v{t3}\nv_lshlrev_b32 v{t3}, 1, v{t3}")
            A(f"v_xor_b32 v{t2}, v{t2}, v{t3}")
            A(f"v_mul_u32_u24 v{t1}, 1152, v{t1}")
            A(f"v_lshl_add_u32 v{V_WD+i}, v{t2}, 4, v{t1}")
        A(f"v_lshlrev_b32 v{V_OB}, 4, v{L}")
        A(f"v_lshrrev_b32 v{t0}, 2, v{L}\nv_mul_u32_u24 v{t0}, 192, v{t0}")
        A(f"v_and_b32 v{t1}, 3, v{L}\nv_lshl_add_u32 v{t0}, v{t1}, 3, v{t0}")
        A(f"v_lshrrev_b32 v{t1}, 4, v{L}\nv_and_b32 v{t1}, 1, v{t1}\nv_lshlrev_b32 v{t1}, 5, v{t1}")
        A("s_waitcnt lgkmcnt(0)")
        A(f"s_mul_i32 s{S_M0B}, s{S_W}, {self.WAVE_LDS}")
        A(f"v_add_u32 v{t0}, s{S_M0B}, v{t0}")
        A(f"v_add_u32 v{V_AE}, v{t0}, v{t1}\nv_sub_u32 v{V_AO}, v{t0}, v{t1}")
        A(f"s_mul_i32 s3, s{S_BR}, 80\ns_lshl_b32 s14, s{S_MT}, 2\ns_add_u32 s3, s3, s14\ns_mul_i32 s3, s3, {self.QS}")
        A(f"s_add_u32 s{S_O}, s8, s3\ns_addc_u32 s{S_O+1}, s9, 0\ns_mov_b32 s{S_O+2}, {3*self.QS+131072}\ns_mov_b32 s{S_O+3}, 0x20000")
        A(f"s_mul_i32 s3, s{S_NT}, 192")
        A(f"s_add_u32 s{S_WO}, s4, s3\ns_addc_u32 s{S_WO+1}, s5, 0\ns_sub_u32 s{S_WO+2}, {4096*1152}, s3\ns_mov_b32 s{S_WO+3}, 0x20000")
        A(f"s_lshl_b32 s3, s{S_MT}, 6\ns_lshl_b32 s14, s{S_W}, 4\ns_add_u32 s3, s3, s14\ns_mul_i32 s3, s3, 2304")
        A(f"s_mul_i32 s14, s{S_BR}, 1152\ns_add_u32 s3, s3, s14\ns_mul_i32 s14, s{S_NT}, 192\ns_add_u32 s3, s3, s14")
        A(f"s_add_u32 s{S_OUT}, s6, s3\ns_addc_u32 s{S_OUT+1}, s7, 0")
        A(f"s_sub_u32 s{S_OUT+2}, {1280*2304}, s3\ns_mov_b32 s{S_OUT+3}, 0x20000")
        if self.o.get("rot2", True):
            mul = self.o.get("rot2mul", 1)
            A(f"s_mul_i32 s{S_KS}, s{S_MT}, 205\ns_lshr_b32 s{S_KS}, s{S_KS}, 10\ns_mul_i32 s{S_KS}, s{S_KS}, 5\ns_sub_u32 s{S_KS}, s{S_MT}, s{S_KS}")
            A(f"s_add_u32 s{S_KS}, s{S_KS}, s{S_NT}\ns_mul_i32 s{S_KS}, s{S_KS}, {4*mul}\ns_add_u32 s{S_KS}, s{S_KS}, s{S_W}")
        else:
            A(f"s_mov_b32 s{S_KS}, s{S_W}")
        A(f"s_lshl_b32 s{S_OSO}, s{S_KS}, 10\ns_mul_i32 s{S_WSO}, s{S_KS}, {32*1152}")
        D = self.D
        vm = []
        def issue_dma(stage):
            st = stage % D
            G = self.loads_dma(st)
            return G
        NIT = 32
        for stage in range(min(D, NIT)):
            for g in self.loads_dma(stage % D):
                for l in g: A(l)
            vm += [("d", stage)] * 6
            for g in self.loads_b(stage % D):
                for l in g: A(l)
            vm += [("b", stage)] * 4
            for l in self.adv(): A(l)
        def wait_n(tags):
            last = max(i for i, t in enumerate(vm) if t in tags)
            return len(vm) - 1 - last
        A(f"s_waitcnt vmcnt({wait_n({('d',0)})})")
        self.stamp()
        for r in self.a_reads(0, 0): A(r)
        start = len(A.lines)
        for it in range(NIT):
            st = it % D
            buf = it & 1
            M = []
            for nt in range(6):
                for qi in range(4):
                    d = vr(V_ACC + (nt*4+qi)*4, 4)
                    M.append(mfma(d, ar(A_A[buf]+4*nt, 4), vr(self.VB+16*st+4*qi, 4), "0" if it == 0 else d))
            tags = {("b", it)}
            if it + 1 < NIT: tags.add(("d", it + 1))
            A(f"s_waitcnt vmcnt({wait_n(tags)}) lgkmcnt(0)")
            fill = [[] for _ in range(24)]
            if it + 1 < NIT:
                R = self.a_reads((it + 1) % D, buf ^ 1)
                for i, r in enumerate(R): fill[1 + i].append(r)
            loads = it + D < NIT
            if loads:
                G = self.loads_dma(st)
                for i, g in enumerate(G): fill[2 + 3*i] += g
            for m in range(24):
                A(M[m])
                for l in fill[m]: A(l)
            if loads:
                vm += [("d", it + D)] * 6
                for g in self.loads_b(st):
                    for l in g: A(l)
                vm += [("b", it + D)] * 4
                for l in self.adv(): A(l)
        self.loop_lines = []
        self.stamp()
        A("s_barrier")
        A(f"s_mul_i32 s{S_T0}, s{S_W}, 24576")
        A(f"v_lshlrev_b32 v{V_T}, 4, v{V_LANE}")
        A(f"v_add_u32 v{V_T+1}, s{S_T0}, v{V_T}")
        A("s_nop 7")
        for tl in range(24):
            A(f"ds_write_b128 v{V_T+1}, {vr(V_ACC+4*tl,4)} offset:{tl*1024}")
        A("s_waitcnt lgkmcnt(0)")
        A("s_barrier")
        A(f"s_lshl_b32 s{S_T0}, s{S_W}, 10")
        A(f"v_add_u32 v{V_T+1}, s{S_T0}, v{V_T}")
        A(f"v_add_u32 v{V_T+2}, {2*24576}, v{V_T+1}")
        for nt in range(6):
            for src in range(4):
                base = V_T+1 if src < 2 else V_T+2
                A(f"ds_read_b128 {vr(V_ACC+(nt*4+src)*4,4)}, v{base} offset:{(src & 1)*24576 + nt*4096}")
        A(f"v_and_b32 v{V_T+3}, 15, v{V_LANE}\nv_mul_u32_u24 v{V_T+3}, 2304, v{V_T+3}")
        A(f"v_lshrrev_b32 v{V_T+4}, 4, v{V_LANE}\nv_lshl_add_u32 v{V_T+3}, v{V_T+4}, 3, v{V_T+3}")
        for nt in range(6):
            A(f"s_waitcnt lgkmcnt({max(0, 15 if (5-nt)*4 > 15 else (5-nt)*4)})")
            b = V_ACC + nt*16
            for r in range(4):
                A(f"v_add_f32 v{b+r}, v{b+r}, v{b+4+r}")
                A(f"v_add_f32 v{b+8+r}, v{b+8+r}, v{b+12+r}")
            for r in range(4):
                A(f"v_add_f32 v{b+r}, v{b+r}, v{b+8+r}")
            A(f"v_cvt_pk_bf16_f32 v{b+4}, v{b}, v{b+1}")
            A(f"v_cvt_pk_bf16_f32 v{b+5}, v{b+2}, v{b+3}")
            A(f"buffer_store_dwordx2 {vr(b+4,2)}, v{V_T+3}, s[{S_OUT}:{S_OUT+3}], 0 offen offset:{nt*32}")
        self.stamp()
        self.dump_stamps()
        A("K2_END:")
        A("s_endpgm")
        return A
```

```python
from asmlib import *
from sched import window_schedule
import p2 as P2M

BLK = 1056
TILE = 16 * BLK
KRING = 0
VRING = 4 * TILE
SPARE = 8 * TILE
LDS_TOTAL = 163840
STAGE = [SPARE, VRING + 2 * TILE, KRING + 2 * TILE]
XOFF = 0
WOFF = 10240
WBLK = 1088
BIAS = 2400

V_TID, V_LANE = 0, 1
V_XDMA, V_WDMA = 2, 3
V_KDMA = 6
V_VDMA = 10
V_KLANE, V_VLANE = 14, 15
V_Q = 16
V_S = [96, 136]
V_CI = 176
V_L = 196
V_T = 201
V_KAD, V_VAD = 216, 217
V_QACC = 96
V_XF = [16, 36]
V_XRD = 56
V_WRD = 59
A_O = 0
A_KF = 160
A_VF = 192
A_WF = [160, 192]

S_X, S_WQ, S_K, S_V, S_O = 16, 20, 24, 28, 32
S_W, S_BR, S_B, S_H = 36, 37, 38, 39
S_XSO, S_XM0, S_WSO, S_WM0 = 40, 41, 42, 43
S_T0, S_T1, S_T2 = 44, 45, 46
S_KM0W = 47
S_KSLOT, S_VSLOT = 48, 49
S_KDSLOT, S_VDSLOT = 50, 51
S_KSOFF, S_VSOFF = 52, 53
S_LOOP = 54
S_SCALE = 55
S_FLAG = 56

def mfma(d, a, b, c):
    return f"v_mfma_f32_16x16x32_bf16 {d}, {a}, {b}, {c}"

class K1:
    def __init__(self, opts=None):
        self.o = opts or {}
        self.A = Asm()
        self.QS = 131072 + self.o.get("qpad", 0)
        self.vm = []
    def stamp(self):
        if not self.o.get("prof"): return
        i = self.nst = getattr(self, "nst", 0) + 1
        b = 60 + (i-1)*2
        assert b + 1 <= 87
        self.A(f"{'s_memtime' if self.o.get('profcyc') else 's_memrealtime'} s[{b}:{b+1}]")
    def dump_stamps(self, wgs="s2"):
        if not self.o.get("prof"): return
        A = self.A
        A("s_waitcnt lgkmcnt(0) vmcnt(0)")
        A("s_load_dwordx2 s[4:5], s[0:1], 96")
        A("s_waitcnt lgkmcnt(0)")
        A(f"s_add_u32 s4, s4, {self.o.get('profoff', 128<<20)}\ns_addc_u32 s5, s5, 0\ns_mov_b32 s6, 0x100000\ns_mov_b32 s7, 0x20000")
        A(f"s_lshl_b32 s3, s2, 2\ns_add_u32 s3, s3, s{S_W}\ns_lshl_b32 s3, s3, 7")
        A("s_mov_b64 exec, 1")
        for i in range(self.nst):
            b = 60 + i*2
            A(f"v_mov_b32 v2, s{b}\nv_mov_b32 v3, s{b}\nv_mov_b32 v4, s3")
            A(f"buffer_store_dwordx2 v[2:3], v4, s[4:7], 0 offen offset:{i*8}")
            A("s_nop 1")
    def vm_issue(self, tag, n=1):
        self.vm += [tag] * n
    def vm_wait_n(self, tags):
        last = max(i for i, t in enumerate(self.vm) if t in tags)
        return len(self.vm) - 1 - last

    def setup(self):
        A = self.A
        A("s_cmp_ge_u32 s2, 256")
        A("s_cbranch_scc1 K1_END")
        if self.o.get("badmap"):
            A("s_lshr_b32 s3, s2, 5")
            A("s_and_b32 s14, s2, 31")
        else:
            A("s_and_b32 s3, s2, 7")
            A("s_lshr_b32 s14, s2, 3")
        A(f"s_lshr_b32 s{S_BR}, s3, 2")
        A("s_and_b32 s3, s3, 3")
        A("s_lshl_b32 s3, s3, 2")
        A(f"s_and_b32 s{S_H}, s14, 3")
        A(f"s_add_u32 s{S_H}, s{S_H}, s3")
        A(f"s_lshr_b32 s{S_B}, s14, 2")
        A(f"s_mul_i32 s3, s{S_BR}, 40")
        A("s_add_u32 s14, s0, s3")
        A("s_addc_u32 s15, s1, 0")
        A("s_load_dwordx8 s[4:11], s[14:15], 0")
        A("s_load_dwordx2 s[12:13], s[0:1], 96")
        A(f"v_and_b32 v{V_LANE}, 63, v0")
        A(f"v_lshrrev_b32 v{V_T}, 6, v0")
        A("s_nop 0")
        A(f"v_readfirstlane_b32 s{S_W}, v{V_T}")
        L = V_LANE
        t0, t1, t2 = V_T, V_T + 1, V_T + 2
        A(f"v_lshrrev_b32 v{t0}, 2, v{L}")
        A(f"v_mul_u32_u24 v{t0}, 1152, v{t0}")
        A(f"v_lshrrev_b32 v{t1}, 4, v{L}")
        A(f"v_sub_u32 v{t1}, 0, v{t1}")
        A(f"v_and_b32 v{t1}, 3, v{t1}")
        A(f"v_and_b32 v{t2}, 3, v{L}")
        A(f"v_xor_b32 v{t1}, v{t1}, v{t2}")
        A(f"v_lshl_add_u32 v{V_XDMA}, v{t1}, 4, v{t0}")
        A(f"v_lshrrev_b32 v{t0}, 5, v{L}")
        A(f"v_lshlrev_b32 v{t0}, 16, v{t0}")
        A(f"v_and_b32 v{t1}, 31, v{L}")
        A(f"v_lshl_add_u32 v{V_WDMA}, v{t1}, 4, v{t0}")
        A("s_waitcnt lgkmcnt(0)")
        if self.o.get("fused") or self.o.get("k2b"):
            A(f"s_or_b32 s14, s2, s{S_W}")
            A("s_cmp_lg_u32 s14, 0")
            A("s_cbranch_scc1 K1_NONON")
            A("s_load_dwordx2 s[14:15], s[0:1], 88")
            A("s_memrealtime s[44:45]")
            A("s_waitcnt lgkmcnt(0)")
            A("s_or_b32 s44, s44, 1")
            A(f"v_mov_b32 v{V_T}, 0\nv_mov_b32 v{V_T+1}, s44")
            A(f"global_store_dword v{V_T}, v{V_T+1}, s[14:15] sc1")
            A("K1_NONON:")
        w, b, h, br = S_W, S_B, S_H, S_BR
        A(f"s_mul_i32 s3, s{b}, 184320")
        A(f"s_add_u32 s{S_X}, s4, s3\ns_addc_u32 s{S_X+1}, s5, 0\ns_mov_b32 s{S_X+2}, 184320\ns_mov_b32 s{S_X+3}, 0x20000")
        A(f"s_lshl_b32 s3, s{h}, 9")
        A(f"s_add_u32 s{S_WQ}, s10, s3\ns_addc_u32 s{S_WQ+1}, s11, 0")
        A(f"s_sub_u32 s{S_WQ+2}, {576*8192}, s3\ns_mov_b32 s{S_WQ+3}, 0x20000")
        A(f"s_lshl_b32 s3, s{b}, 4\ns_add_u32 s3, s3, s{h}")
        A("s_lshr_b32 s14, s3, 14\ns_lshl_b32 s3, s3, 18")
        for (srd, lo) in ((S_K, 6), (S_V, 8)):
            A(f"s_add_u32 s{srd}, s{lo}, s3\ns_addc_u32 s{srd+1}, s{lo+1}, s14")
            A(f"s_sub_u32 s{srd}, s{srd}, {BIAS}\ns_subb_u32 s{srd+1}, s{srd+1}, 0")
            A(f"s_mov_b32 s{srd+2}, {262144+BIAS}\ns_mov_b32 s{srd+3}, 0x20000")
        A(f"s_lshl_b32 s3, s{br}, 3\ns_add_u32 s3, s3, s{b}")
        A(f"s_mul_i32 s3, s3, {10*self.QS}")
        A(f"s_lshl_b32 s14, s{h}, 1\ns_lshr_b32 s15, s{w}, 1\ns_add_u32 s14, s14, s15")
        A("s_lshl_b32 s14, s14, 12")
        A("s_add_u32 s3, s3, s14")
        A(f"s_and_b32 s15, s{w}, 1\ns_mul_i32 s15, s15, {5*self.QS}")
        A("s_add_u32 s3, s3, s15")
        A(f"s_add_u32 s{S_O}, s12, s3\ns_addc_u32 s{S_O+1}, s13, 0")
        A(f"s_mov_b32 s{S_O+2}, {4*self.QS+4096}\ns_mov_b32 s{S_O+3}, 0x20000")
        A(f"s_mul_i32 s3, s{w}, 3\ns_lshl_b32 s14, s{w}, 1\ns_add_u32 s14, s14, 1")
        A(f"s_cmp_lt_u32 s{w}, 2\ns_cselect_b32 s3, s3, s14")
        A(f"s_mul_i32 s{S_XSO}, s3, 18432\ns_lshl_b32 s{S_XM0}, s3, 10")
        A(f"s_and_b32 s3, s{w}, 1\ns_lshl_b32 s3, s3, 2\ns_lshr_b32 s14, s{w}, 1\ns_lshl_b32 s14, s14, 4\ns_add_u32 s3, s3, s14")
        A(f"s_lshl_b32 s{S_WSO}, s3, 13")
        A(f"s_mul_i32 s{S_WM0}, s{w}, {4*WBLK}\ns_add_u32 s{S_WM0}, s{S_WM0}, {WOFF}")
        A(f"s_mul_i32 s{S_KM0W}, s{w}, {4*BLK}")

    def dma_chunk(self, cc, inter=None):
        st = STAGE[cc % 3]
        G = []
        for i in range(3):
            g = [f"s_add_u32 s{S_T0}, s{S_XSO}, {i*18432 + cc*64}",
                 f"s_add_u32 m0, s{S_XM0}, {st + XOFF + i*1024}",
                 "s_nop 0",
                 f"buffer_load_dwordx4 v{V_XDMA}, s[{S_X}:{S_X+3}], s{S_T0} offen{self.o.get('ntq','')} lds"]
            G.append(("x", i, g))
        for i in range(4):
            g = [f"s_add_u32 s{S_T1}, s{S_WSO}, {(32*cc + i)*8192}",
                 f"s_add_u32 m0, s{S_WM0}, {st + i*WBLK}",
                 "s_nop 0",
                 f"buffer_load_dwordx4 v{V_WDMA}, s[{S_WQ}:{S_WQ+3}], s{S_T1} offen{self.o.get('ntq','')} lds"]
            G.append(("w", i, g))
        return G

    def emit_chunk_dma_group(self, kind, i, g, cc, uid):
        A = self.A
        if kind == "x" and i == 2:
            A(f"s_cmp_ge_u32 s{S_W}, 2")
            A(f"s_cbranch_scc1 K1_SKX_{uid}")
            for l in g: A(l)
            A(f"K1_SKX_{uid}:")
        else:
            for l in g: A(l)
            self.vm_issue(("c", cc))

    def kv_dma(self, kind, tile_imm=None, slot_imm=None):
        nt = " nt" if self.o.get("nt", True) else ""
        srd = S_K if kind == "K" else S_V
        vd = V_KDMA if kind == "K" else V_VDMA
        ring = KRING if kind == "K" else VRING
        L = []
        L.append(f"s_add_u32 m0, s{S_KM0W}, {ring + slot_imm*TILE}")
        L.append(f"s_mov_b32 s{S_T2}, {tile_imm*16384}")
        for i in range(4):
            L.append(f"buffer_load_dwordx4 v{vd+i}, s[{srd}:{srd+3}], s{S_T2} offen offset:{i*BLK}{nt} lds")
        return L

    def setup2(self):
        A = self.A
        L = V_LANE
        t0, t1, t2, t3 = V_T, V_T + 1, V_T + 2, V_T + 3
        w = S_W
        A(f"v_and_b32 v{t0}, 15, v{L}")
        A(f"v_lshrrev_b32 v{t1}, 2, v{t0}")
        A(f"v_sub_u32 v{t1}, 0, v{t1}")
        A(f"v_and_b32 v{t1}, 3, v{t1}")
        A(f"v_lshrrev_b32 v{t2}, 4, v{L}")
        A(f"v_xor_b32 v{t1}, v{t1}, v{t2}")
        A(f"v_lshlrev_b32 v{t1}, 4, v{t1}")
        A(f"v_lshl_add_u32 v{t1}, v{t0}, 6, v{t1}")
        A(f"s_and_b32 s3, s{w}, 1\ns_mul_i32 s3, s3, 5120")
        A(f"v_add_u32 v{t1}, s3, v{t1}")
        A(f"v_add_u32 v{V_XRD+1}, {XOFF}, v{t1}")
        A(f"v_lshrrev_b32 v{t0}, 2, v{L}\nv_and_b32 v{t0}, 3, v{t0}")
        A(f"v_lshrrev_b32 v{t1}, 5, v{L}")
        A(f"v_lshl_add_u32 v{t0}, v{t1}, 3, v{t0}")
        A(f"v_mul_u32_u24 v{t0}, {WBLK}, v{t0}")
        A(f"v_lshrrev_b32 v{t1}, 4, v{L}\nv_and_b32 v{t1}, 1, v{t1}")
        A(f"v_lshl_add_u32 v{t0}, v{t1}, 9, v{t0}")
        A(f"v_and_b32 v{t1}, 3, v{L}")
        A(f"v_lshl_add_u32 v{t0}, v{t1}, 4, v{t0}")
        A(f"s_lshr_b32 s3, s{w}, 1\ns_lshl_b32 s3, s3, 8")
        A(f"v_add_u32 v{t0}, s3, v{t0}")
        A(f"v_add_u32 v{V_WRD+1}, {WOFF}, v{t0}")

    def setup_kv(self):
        A = self.A
        L = V_LANE
        t0, t1, t2, t3 = V_T, V_T + 1, V_T + 2, V_T + 3
        w = S_W
        A(f"v_lshrrev_b32 v{t0}, 4, v{L}\nv_and_b32 v{t1}, 15, v{L}\nv_lshlrev_b32 v{t1}, 4, v{t1}")
        A(f"v_lshl_add_u32 v{t2}, v{t0}, 12, v{t1}")
        A(f"s_lshl_b32 s3, s{w}, 10")
        A(f"v_add_u32 v{t2}, s3, v{t2}")
        for i in range(4):
            A(f"v_add_u32 v{V_KDMA+i}, {BIAS - 800*i}, v{t2}")
        A(f"v_lshl_add_u32 v{t2}, v{t0}, 11, v{t1}")
        A(f"s_lshr_b32 s3, s{w}, 1\ns_lshl_b32 s3, s3, 13\ns_and_b32 s14, s{w}, 1\ns_lshl_b32 s14, s14, 10\ns_add_u32 s3, s3, s14")
        A(f"v_add_u32 v{t2}, s3, v{t2}")
        for i in range(4):
            A(f"v_add_u32 v{V_VDMA+i}, {BIAS - 800*i}, v{t2}")
        A(f"v_and_b32 v{t1}, 15, v{L}\nv_mul_u32_u24 v{t1}, {BLK}, v{t1}")
        A(f"v_lshl_add_u32 v{V_KLANE}, v{t0}, 4, v{t1}")
        A(f"v_lshrrev_b32 v{t1}, 2, v{L}\nv_and_b32 v{t1}, 7, v{t1}")
        A(f"v_mul_u32_u24 v{t1}, {BLK}, v{t1}")
        A(f"v_lshrrev_b32 v{t2}, 5, v{L}")
        A(f"v_lshl_add_u32 v{t1}, v{t2}, 8, v{t1}")
        A(f"v_and_b32 v{t2}, 3, v{L}")
        A(f"v_lshl_add_u32 v{V_VLANE}, v{t2}, 3, v{t1}")

    def warm(self):
        mode = self.o.get("warm", None)
        if mode is None: return
        A = self.A
        gran = self.o.get("wgran", 128)
        pol = mode
        A(f"s_mov_b32 s84, s4\ns_mov_b32 s85, s5\ns_mov_b32 s86, {8*184320}\ns_mov_b32 s87, 0x20000")
        A(f"s_and_b32 s3, s2, 3\ns_lshl_b32 s3, s3, 11")
        A(f"s_add_u32 s88, s10, s3\ns_addc_u32 s89, s11, 0\ns_sub_u32 s90, {576*8192}, s3\ns_mov_b32 s91, 0x20000")
        A(f"s_lshr_b32 s3, s2, 3\ns_lshl_b32 s3, s3, 8")
        t0, t1, t2 = 72, 73, 74
        A(f"v_add_u32 v{t0}, s3, v0")
        nx = (8*184320 // gran + 8191) // 8192
        nw = (576*2048 // gran + 8191) // 8192
        lg = {128: 7, 64: 6}[gran]
        per_row = 2048 // gran
        lgr = {16: 4, 32: 5}[per_row]
        d = 76
        for i in range(max(nx, nw)):
            if i < nw:
                A(f"v_add_u32 v{t1}, {8192*i}, v{t0}")
                A(f"v_lshrrev_b32 v{t2}, {lgr}, v{t1}\nv_lshlrev_b32 v{t2}, 13, v{t2}")
                A(f"v_and_b32 v{t1}, {per_row-1}, v{t1}\nv_lshl_add_u32 v{t1}, v{t1}, {lg}, v{t2}")
                A(f"buffer_load_dword v{d}, v{t1}, s[88:91], 0 offen{pol}"); d += 1
                self.vm_issue(("warm",))
            if i < nx:
                A(f"v_add_u32 v{t1}, {8192*i}, v{t0}\nv_lshlrev_b32 v{t1}, {lg}, v{t1}")
                A(f"buffer_load_dword v{d}, v{t1}, s[84:87], 0 offen{pol}"); d += 1
                self.vm_issue(("warm",))

    def frag_reads(self, cc):
        st = cc % 3
        buf = cc & 1
        R = []
        for t in range(5):
            R.append(f"ds_read_b128 {vr(V_XF[buf]+4*t,4)}, v{V_XRD+st} offset:{t*1024}")
        for T in range(8):
            for hh in range(2):
                off = hh * 4 * WBLK + 64 * (T >> 1) + 8 * (T & 1)
                R.append(f"ds_read_b64_tr_b16 {ar(A_WF[buf]+4*T+2*hh,2)}, v{V_WRD+st} offset:{off}")
        return R

    def qproj(self):
        A = self.A
        NC = 18
        SC, ST0, ST1, ST2, XS, WS = 92, 93, 94, 95, 96, 97
        XA, WA = V_XRD, V_WRD
        XL, WL = V_XRD + 1, V_WRD + 1
        XD = [V_XDMA, 62, 63]
        WD = [V_WDMA, 64, 65, 66]
        ntq = self.o.get('ntq', '')
        for n in (1, 2): A(f"v_add_u32 v{XD[n]}, {n*(18432-1024)}, v{V_XDMA}")
        for n in (1, 2, 3): A(f"v_add_u32 v{WD[n]}, {n*(8192-WBLK)}, v{V_WDMA}")
        def xdma(): return [f"buffer_load_dwordx4 v{XD[n]}, s[{S_X}:{S_X+3}], s{XS} offen offset:{n*1024}{ntq} lds" for n in range(3)]
        def wdma(): return [f"buffer_load_dwordx4 v{WD[n]}, s[{S_WQ}:{S_WQ+3}], s{WS} offen offset:{n*WBLK}{ntq} lds" for n in range(4)]
        RC = 98
        if self.o.get("rot", True):
            A(f"s_and_b32 s3, s{S_H}, 3\ns_mul_i32 s3, s3, 5\ns_lshl_b32 s{RC}, s{S_B}, 1\ns_add_u32 s{RC}, s{RC}, s3")
            A(f"s_cmp_ge_u32 s{RC}, 18\ns_cselect_b32 s3, 18, 0\ns_sub_u32 s{RC}, s{RC}, s3")
        else:
            A(f"s_mov_b32 s{RC}, 0")
        def adv():
            return [f"s_add_u32 s{RC}, s{RC}, 1", f"s_cmp_ge_u32 s{RC}, 18", f"s_cselect_b32 s{RC}, 0, s{RC}",
                    f"s_lshl_b32 s{XS}, s{RC}, 6", f"s_add_u32 s{XS}, s{XS}, s{S_XSO}",
                    f"s_lshl_b32 s{WS}, s{RC}, 18", f"s_add_u32 s{WS}, s{WS}, s{S_WSO}"]
        for l in adv()[3:]: A(l)
        def chunk_dma_static(cc):
            A(f"s_add_u32 m0, s{S_XM0}, {STAGE[cc]+XOFF}")
            A(f"s_nop 0")
            for l in xdma(): A(l)
            A(f"s_add_u32 m0, s{S_WM0}, {STAGE[cc]}")
            A(f"s_nop 0")
            for l in wdma(): A(l)
            for l in adv(): A(l)
            self.vm_issue(("c", cc), 7)
        chunk_dma_static(0)
        self.warm()
        self.setup2()
        self.setup_kv()
        z = 68
        for i in range(4): A(f"v_mov_b32 v{z+i}, 0")
        A("s_nop 1")
        for i in range(10):
            A(f"v_mfma_f32_32x32x16_bf16 {vr(V_QACC+16*i,16)}, {vr(z,4)}, {vr(z,4)}, 0")
        for i in range(10):
            A(f"v_mfma_f32_32x32x16_bf16 {ar(A_O+16*i,16)}, {vr(z,4)}, {vr(z,4)}, 0")
        chunk_dma_static(1)
        A(f"s_mov_b32 s{SC}, 0")
        A(f"s_mov_b32 s{ST0}, {STAGE[0]}\ns_mov_b32 s{ST1}, {STAGE[1]}\ns_mov_b32 s{ST2}, {STAGE[2]}")
        A(f"s_waitcnt vmcnt({self.vm_wait_n({('c',0)})})")
        A("s_barrier")
        self.stamp()
        A(f"v_add_u32 v{XA}, s{ST0}, v{XL}\nv_add_u32 v{WA}, s{ST0}, v{WL}")
        def reads(buf):
            R = []
            for t in range(5):
                R.append(f"ds_read_b128 {vr(V_XF[buf]+4*t,4)}, v{XA} offset:{t*1024}")
            for T in range(8):
                for hh in range(2):
                    off = hh * 4 * WBLK + 64 * (T >> 1) + 8 * (T & 1)
                    R.append(f"ds_read_b64_tr_b16 {ar(A_WF[buf]+4*T+2*hh,2)}, v{WA} offset:{off}")
            return R
        for r in reads(0): A(r)
        chunk_dma_static(2)
        def chunk(par, dma, rd, top, extra=None):
            buf = par
            for l in top: A(l)
            if rd:
                A(f"v_add_u32 v{XA}, s{ST1}, v{XL}\nv_add_u32 v{WA}, s{ST1}, v{WL}")
            M = []
            for T in range(8):
                for t in range(5):
                    d = vr(V_QACC + (T*5 + t)*4, 4)
                    M.append(mfma(d, ar(A_WF[buf]+4*T, 4), vr(V_XF[buf]+4*t, 4), d))
            fill = [[] for _ in range(40)]
            R = reads(buf ^ 1) if (rd and not self.o.get("qp_nods")) else []
            dpos = self.o.get("qdpos", [2, 7, 12, 17, 22, 27, 32])
            m0pos = (dpos[0] - 1, dpos[3] - 1)
            slots = [g for g in range(0, 34) if g not in dpos and g not in m0pos]
            for i, r in enumerate(R):
                fill[slots[(i * len(slots)) // len(R)]].append(r)
            if dma and not self.o.get("qp_nodma"):
                fill[m0pos[0]].append(f"s_add_u32 m0, s{S_XM0}, s{ST0}")
                xd, wd = xdma(), wdma()
                for n in range(3): fill[dpos[n]].append(xd[n])
                fill[m0pos[1]].append(f"s_add_u32 m0, s{S_WM0}, s{ST0}")
                for n in range(4): fill[dpos[3+n]].append(wd[n])
            for g, ls in (extra or {}).items():
                fill[g] += ls
            sal = [f"s_mov_b32 s{S_T2}, s{ST0}", f"s_mov_b32 s{ST0}, s{ST1}", f"s_mov_b32 s{ST1}, s{ST2}", f"s_mov_b32 s{ST2}, s{S_T2}",
                   f"s_add_u32 s{SC}, s{SC}, 1"] + adv()
            g = 33
            for i in range(0, len(sal), 2):
                fill[g] += sal[i:i+2]; g += 1
            for m in range(40):
                A(M[m])
                for l in fill[m]: A(l)
        A(".p2align 6")
        A("K1_QLOOP:")
        start = len(A.lines)
        nw = 7 if not self.o.get("qp_nowait") else 63
        for par in range(2):
            top = [f"s_waitcnt vmcnt({nw}) lgkmcnt(0)"]
            if not self.o.get("qp_nobar"): top.append("s_barrier")
            chunk(par, True, True, top)
        A(f"s_cmp_lt_u32 s{SC}, 14")
        A("s_cbranch_scc1 K1_QLOOP")
        self.qloop_lines = A.lines[start:]
        if self.o.get("prof2"): self.stamp()
        self.vm = [("c", 15)] * 7 + [("c", 16)] * 7
        def kvgrp(k, tile, slot):
            L = self.kv_dma(k, tile, slot)
            return L[:2], L[2:]
        pre, dm = kvgrp("K", 0, 0)
        chunk(0, True, True, [f"s_waitcnt vmcnt({self.vm_wait_n({('c',15)})}) lgkmcnt(0)", "s_barrier"], extra={})
        self.vm_issue(("c", 17), 7)
        p0, d0 = kvgrp("K", 0, 0); p1, d1 = kvgrp("K", 1, 1)
        chunk(1, False, True, [f"s_waitcnt vmcnt({self.vm_wait_n({('c',16)})}) lgkmcnt(0)", "s_barrier"],
              extra={2: p0, 3: d0, 28: p1, 29: d1})
        self.vm_issue(("K", 0), 4); self.vm_issue(("K", 1), 4)
        p0, d0 = kvgrp("V", 0, 0)
        chunk(0, False, True, [f"s_waitcnt vmcnt({self.vm_wait_n({('c',17)})}) lgkmcnt(0)", "s_barrier"],
              extra={14: p0, 15: d0})
        self.vm_issue(("V", 0), 4)
        ex = {}
        chunk(1, False, False, ["s_waitcnt lgkmcnt(0)", "s_barrier"], extra=ex)
        self.late_kv = [("K", 2, 2), ("V", 1, 1), ("K", 3, 3), ("V", 2, 2)]
        if self.o.get("prof2"): self.stamp()

    def qconvert(self):
        A = self.A
        A(f"s_mov_b32 s{S_SCALE}, 0x3e0293ee")
        A("s_nop 7")
        A(f"s_mov_b32 s{S_SCALE+2}, s{S_SCALE}") if False else None
        A(f"v_mov_b32 v{V_XRD}, s{S_SCALE}\nv_mov_b32 v{V_XRD+1}, s{S_SCALE}") if False else None
        late = list(self.late_kv)
        for t in range(5):
            if t < 4:
                k, tile, slot = late[t]
                for l in self.kv_dma(k, tile, slot): A(l)
                self.vm_issue((k, tile), 4)
            for s in range(4):
                for half in range(2):
                    T = 2*s + half
                    src = V_QACC + (T*5 + t)*4
                    for r in range(0, 4, 2):
                        A(f"v_pk_mul_f32 v[{src+r}:{src+r+1}], v[{src+r}:{src+r+1}], s[{S_SCALE-1}:{S_SCALE}] op_sel:[0,1] op_sel_hi:[1,1]" if False else f"v_mul_f32 v{src+r}, s{S_SCALE}, v{src+r}\nv_mul_f32 v{src+r+1}, s{S_SCALE}, v{src+r+1}")
                    dst = V_Q + 16*t + 4*s + 2*half
                    A(f"v_cvt_pk_bf16_f32 v{dst}, v{src}, v{src+1}")
                    A(f"v_cvt_pk_bf16_f32 v{dst+1}, v{src+2}, v{src+3}")

    def k_read(self, n, half):
        kt = 2*half + (n >> 2); s = n & 3
        return f"ds_read_b128 {ar(A_KF+4*n,4)}, v{V_KAD} offset:{kt*256 + s*64}"
    def v_read(self, n, mb):
        dt = n >> 1; hh = n & 1
        return f"ds_read_b64_tr_b16 {ar(A_VF+4*dt+2*hh,2)}, v{V_VAD} offset:{mb*8*BLK + hh*512 + dt*32}"
    def qk_mfmas(self, sb, first_c=None):
        M = []
        for ktl in range(2):
            for s in range(4):
                for t in range(5):
                    d = vr(sb + 8*t + 4*ktl, 4)
                    if s == 0:
                        c = vr(V_CI + 4*t, 4) if first_c is None else first_c
                    else:
                        c = d
                    M.append(mfma(d, ar(A_KF + 4*(ktl*4+s), 4), vr(V_Q + 16*t + 4*s, 4), c))
        return M
    def pv_mfmas(self, sb):
        M = []
        for dt in range(8):
            for t in range(5):
                d = ar(A_O + (dt*5 + t)*4, 4)
                M.append(mfma(d, ar(A_VF + 4*dt, 4), vr(sb + 8*t, 4), d))
        return M
    def item(self, it, sb, khalf, vmb, dma):
        k = it[0]
        if k == 'exp':
            r = sb + 8*it[1] + it[2]
            return [f"v_exp_f32 v{r}, v{r}"]
        if k == 'add':
            r = sb + 8*it[1] + it[2]
            return [f"v_add_f32 v{V_L+it[1]}, v{V_L+it[1]}, v{r}"]
        if k == 'cvt':
            r = sb + 8*it[1]
            p = it[2]
            return [f"v_cvt_pk_bf16_f32 v{r+p}, v{r+2*p}, v{r+2*p+1}"]
        if k == 'K':
            return [self.k_read(it[1], khalf)] if khalf is not None else []
        if k == 'V':
            return [self.v_read(it[1], vmb)] if vmb is not None else []
        if k == 'DMA':
            return dma or []
    def phase(self, M, gaps, sb, khalf=None, vmb=None, dma=None, pre=None, head=None):
        A = self.A
        for i in range(40):
            if M is not None:
                A(M[i])
            else:
                A("s_nop 0")
            if head and i in head:
                for l in head[i]: A(l)
            if gaps is not None:
                for it in gaps[i]:
                    for l in self.item(it, sb, khalf, vmb, dma): A(l)

    def loop_dma(self, kind):
        nt = " nt" if self.o.get("nt", True) else ""
        srd = S_K if kind == "K" else S_V
        vd = V_KDMA if kind == "K" else V_VDMA
        so = S_KSOFF if kind == "K" else S_VSOFF
        return [f"buffer_load_dwordx4 v{vd+i}, s[{srd}:{srd+3}], s{so} offen offset:{i*BLK}{nt} lds" for i in range(4)]

    def slot_adv(self, s, base):
        return [f"s_add_u32 s{s}, s{s}, {TILE}",
                f"s_cmp_ge_u32 s{s}, s{S_T0}" if False else None]

    def attention(self):
        A = self.A
        W = window_schedule(exp_end=66, ds_end_a=24, ds_end_b=64)
        GA, GB = W[:40], W[40:]
        S0, S1 = V_S
        A.c("---- attention prologue")
        A(f"s_waitcnt vmcnt({self.vm_wait_n({('K',0)})})")
        A("s_barrier")
        A(f"v_mov_b32 v{V_KAD}, v{V_KLANE}")
        A(f"v_add_u32 v{V_VAD}, {VRING}, v{V_VLANE}")
        for n in range(8): A(self.k_read(n, 0))
        for t in range(5): A(f"v_mov_b32 v{V_L+t}, 0")
        A("s_waitcnt lgkmcnt(0)")
        for m in self.qk_mfmas(S0, first_c="0"): A(m)
        for n in range(8): A(self.k_read(n, 1))
        A("s_nop 7")
        T = V_T
        for t in range(5):
            r = S0 + 8*t
            A(f"v_max3_f32 v{T+t}, v{r}, v{r+1}, v{r+2}")
            A(f"v_max3_f32 v{T+t}, v{T+t}, v{r+3}, v{r+4}")
            A(f"v_max3_f32 v{T+t}, v{T+t}, v{r+5}, v{r+6}")
            A(f"v_max_f32 v{T+t}, v{T+t}, v{r+7}")
        for sw in ("v_permlane32_swap_b32", "v_permlane16_swap_b32"):
            for t in range(5): A(f"v_mov_b32 v{T+5+t}, v{T+t}")
            A("s_nop 1")
            for t in range(5): A(f"{sw} v{T+t}, v{T+5+t}")
            A("s_nop 1")
            for t in range(5): A(f"v_max_f32 v{T+t}, v{T+t}, v{T+5+t}")
        for t in range(5):
            for i in range(8):
                A(f"v_sub_f32 v{S0+8*t+i}, v{S0+8*t+i}, v{T+t}")
            for i in range(4):
                A(f"v_sub_f32 v{V_CI+4*t+i}, 0, v{T+t}")
        self.phase(None, GA, S0, khalf=None)
        if self.o.get("warmwo") is not None:
            pol = self.o.get("warmwo")
            A(f"s_mul_i32 s3, s{S_BR}, 40\ns_add_u32 s14, s0, s3\ns_addc_u32 s15, s1, 0")
            A("s_load_dwordx2 s[88:89], s[14:15], 32")
            if self.o.get("fused"):
                A(f"s_lshr_b32 s3, s{S_H}, 2\ns_lshl_b32 s3, s3, 5\ns_lshl_b32 s14, s{S_B}, 2\ns_add_u32 s3, s3, s14\ns_and_b32 s14, s{S_H}, 3\ns_add_u32 s3, s3, s14\ns_mul_i32 s3, s3, {288*128}")
            else:
                A(f"s_lshl_b32 s3, s{S_B}, 4\ns_add_u32 s3, s3, s{S_H}\ns_mul_i32 s3, s3, {288*128}")
            A(f"v_lshlrev_b32 v{V_T+12}, 7, v0\nv_add_u32 v{V_T+12}, s3, v{V_T+12}")
            A(f"v_add_u32 v{V_T+13}, {256*128}, v{V_T+12}")
            A("s_waitcnt lgkmcnt(0)")
            A(f"s_add_u32 s14, s3, {288*128}")
            A(f"s_mov_b32 s90, s14\ns_mov_b32 s91, 0x20000")
            A(f"buffer_load_dword v{V_T+14}, v{V_T+12}, s[88:91], 0 offen{pol}")
            A(f"buffer_load_dword v{V_T+14}, v{V_T+13}, s[88:91], 0 offen{pol}")
        if self.o.get("fused"):
            A("s_load_dwordx2 s[14:15], s[0:1], 88")
            A(f"v_mov_b32 v219, 0")
            A("s_waitcnt lgkmcnt(0)")
            A(f"global_load_dword v218, v219, s[14:15] sc1")
        A(f"s_mov_b32 s{S_KSLOT}, {KRING + TILE}")
        A(f"s_mov_b32 s{S_VSLOT}, {VRING}")
        A(f"s_add_u32 s{S_KDSLOT}, s{S_KM0W}, {KRING}")
        A(f"s_add_u32 s{S_VDSLOT}, s{S_KM0W}, {VRING + 3*TILE}")
        A(f"s_mov_b32 s{S_KSOFF}, {4*16384}")
        A(f"s_mov_b32 s{S_VSOFF}, {3*16384}")
        A(f"s_mov_b32 s{S_LOOP}, 15")
        def body(last):
            top = ["s_waitcnt vmcnt(16) lgkmcnt(0)" if not last else "s_waitcnt vmcnt(0) lgkmcnt(0)", "s_barrier"]
            for l in top: A(l)
            A(f"v_add_u32 v{V_VAD}, s{S_VSLOT}, v{V_VLANE}")
            head1 = {0: [f"s_mov_b32 m0, s{S_KDSLOT}"]}
            self.phase(self.qk_mfmas(S1), GB, S0, vmb=0, dma=None if last else self.loop_dma("K"), head=head1)
            A("s_waitcnt lgkmcnt(0)")
            A(f"v_add_u32 v{V_KAD}, s{S_KSLOT}, v{V_KLANE}")
            self.phase(self.pv_mfmas(S0), GA, S1, khalf=None if last else 0)
            A("s_waitcnt lgkmcnt(0)")
            head3 = {0: [f"s_mov_b32 m0, s{S_VDSLOT}"]}
            self.phase(None if last else self.qk_mfmas(S0), GB, S1, vmb=1, dma=None if last else self.loop_dma("V"), head=head3)
            A("s_waitcnt lgkmcnt(0)")
            if last:
                A("s_nop 1")
                self.phase(self.pv_mfmas(S1), None, S0)
            else:
                adv = []
                for (s, base, woff) in ((S_KSLOT, KRING, False), (S_VSLOT, VRING, False), (S_KDSLOT, KRING, True), (S_VDSLOT, VRING, True)):
                    adv.append([f"s_add_u32 s{s}, s{s}, {TILE}"])
                head4 = {}
                seq = []
                for (s, base, woff) in ((S_KSLOT, KRING, False), (S_VSLOT, VRING, False), (S_KDSLOT, KRING, True), (S_VDSLOT, VRING, True)):
                    seq.append([f"s_add_u32 s{s}, s{s}, {TILE}", f"s_cmp_ge_u32 s{s}, {base + 4*TILE}"])
                    seq.append([f"s_cselect_b32 s{S_T0}, {4*TILE}, 0", f"s_sub_u32 s{s}, s{s}, s{S_T0}"])
                seq.append([f"s_add_u32 s{S_KSOFF}, s{S_KSOFF}, 16384", f"s_add_u32 s{S_VSOFF}, s{S_VSOFF}, 16384"])
                for n, sq in enumerate(seq):
                    head4[24 + n] = sq
                self.phase(self.pv_mfmas(S0 if False else S1), GA, S0, khalf=1, head=head4)
        self.stamp()
        A(".p2align 6")
        A("K1_LOOP:")
        start = len(A.lines)
        body(False)
        A(f"s_sub_u32 s{S_LOOP}, s{S_LOOP}, 1")
        A(f"s_cmp_lg_u32 s{S_LOOP}, 0")
        A("s_cbranch_scc1 K1_LOOP")
        self.loop_lines = A.lines[start:]
        body(True)

    def epilogue(self):
        A = self.A
        T = V_T
        A.c("---- epilogue: normalise and store o fragments")
        for sw in ("v_permlane32_swap_b32", "v_permlane16_swap_b32"):
            for t in range(5): A(f"v_mov_b32 v{T+t}, v{V_L+t}")
            A("s_nop 1")
            for t in range(5): A(f"{sw} v{V_L+t}, v{T+t}")
            A("s_nop 1")
            for t in range(5): A(f"v_add_f32 v{V_L+t}, v{V_L+t}, v{T+t}")
        for t in range(5): A(f"v_rcp_f32 v{V_L+t}, v{V_L+t}")
        A(f"v_lshlrev_b32 v{T+10}, 4, v{V_LANE}")
        A("s_nop 7")
        n = 0
        for t in range(5):
            for s in range(4):
                b = V_S[0] + (n % 6) * 12
                for half in range(2):
                    a0 = A_O + ((2*s+half)*5 + t)*4
                    for r in range(4):
                        A(f"v_accvgpr_read_b32 v{b+4*half+r}, a{a0+r}")
                for r in range(8):
                    A(f"v_mul_f32 v{b+r}, v{V_L+t}, v{b+r}")
                for p in range(4):
                    A(f"v_cvt_pk_bf16_f32 v{b+8+p}, v{b+2*p}, v{b+2*p+1}")
                A(f"s_mov_b32 s{S_T0}, {t*self.QS + s*1024}")
                A(f"buffer_store_dwordx4 {vr(b+8,4)}, v{T+10}, s[{S_O}:{S_O+3}], s{S_T0} offen{' sc1' if self.o.get('fused') else self.o.get('nto','')}")
                n += 1

    def build(self):
        A = self.A
        A(".p2align 8\n.type k1_kernel,@function\nk1_kernel:")
        self.stamp()
        self.setup()
        self.qproj()
        self.stamp()
        self.qconvert()
        self.attention()
        self.stamp()
        self.epilogue()
        self.stamp()
        if self.o.get("fused"):
            A("s_barrier")
            p = P2M.P2(A, self.o, self.QS, fused=True)
            A(f"v_readfirstlane_b32 s{P2M.S_NONCE}, v218")
            A("s_nop 3")
            A(f"s_cmp_lg_u32 s{P2M.S_NONCE}, 0")
            A("s_cbranch_scc1 K1_HAVENONCE")
            A("s_waitcnt vmcnt(0)")
            p.get_nonce("f")
            A("K1_HAVENONCE:")
            p.setup()
            p.main(self.stamp)
            p.reduce(self.stamp)
            self.stamp()
        self.dump_stamps()
        A("K1_END:")
        A("s_endpgm")
        return A
```

```python
from asmlib import *

S_W, S_BR, S_B, S_H = 36, 37, 38, 39
S_OF, S_WO, S_PT, S_OUT, S_DBG = 16, 20, 24, 28, 32
S_I, S_J, S_RH, S_KH = 40, 41, 42, 43
S_IT = 44
S_OSO, S_WSO = 45, 46
S_M0 = 47
S_T0, S_T1, S_T2, S_T3 = 48, 49, 50, 51
S_CNT = 52
S_CNT2 = 53
V_LANE = 1
V_WD = 2
V_OB = 11
V_AR = 12
V_ARL = 13
V_T = 14
V_B = 64
A_ACC = 0
A_A = [180, 216]
CH = 9216
STG = 4 * CH
NST = 3
PART_OFF = 32 << 20
FLAG_OFF = 60 << 20
S_FLG = 84
S_NONCE = 99

def mfma(d, a, b, c):
    return f"v_mfma_f32_16x16x32_bf16 {d}, {a}, {b}, {c}"

class P2:
    def __init__(self, A, opts, QS, fused):
        self.A, self.o, self.QS, self.fused = A, opts, QS, fused

    def setup(self):
        A = self.A
        A(f"s_mul_i32 s3, s{S_BR}, 40\ns_add_u32 s14, s0, s3\ns_addc_u32 s15, s1, 0")
        A("s_load_dwordx2 s[4:5], s[14:15], 32")
        A("s_load_dwordx4 s[8:11], s[0:1], 80")
        A("s_load_dwordx2 s[12:13], s[0:1], 96")
        A(f"s_and_b32 s{S_I}, s{S_H}, 3\ns_lshr_b32 s{S_J}, s{S_H}, 2")
        A(f"s_and_b32 s{S_RH}, s{S_W}, 1\ns_lshr_b32 s{S_KH}, s{S_W}, 1")
        L = V_LANE
        t0, t1, t2 = V_T, V_T+1, V_T+2
        A(f"v_and_b32 v{L}, 63, v0")
        for i in range(9):
            A(f"v_add_u32 v{t0}, {64*i}, v{L}")
            A(f"v_mul_u32_u24 v{t1}, 58255, v{t0}\nv_lshrrev_b32 v{t1}, 20, v{t1}")
            A(f"v_mul_u32_u24 v{t2}, 18, v{t1}\nv_sub_u32 v{t2}, v{t0}, v{t2}")
            A(f"v_mul_u32_u24 v{t1}, 1152, v{t1}")
            A(f"v_lshl_add_u32 v{t1}, v{t2}, 4, v{t1}")
            A(f"v_add_u32 v{V_WD+i}, {8192 - 1024*i}, v{t1}") if i < 4 else A(f"v_add_u32 v{V_WD+i}, {8192 - 1024*(i-4) if i < 8 else 8192}, v{t1}")
        A(f"v_lshlrev_b32 v{V_OB}, 4, v{L}")
        A(f"v_lshrrev_b32 v{t0}, 2, v{L}\nv_mul_u32_u24 v{t0}, 288, v{t0}")
        A(f"v_and_b32 v{t1}, 3, v{L}\nv_lshl_add_u32 v{t0}, v{t1}, 3, v{t0}")
        A(f"s_mul_i32 s3, s{S_KH}, {2*CH}")
        A(f"v_add_u32 v{V_ARL}, s3, v{t0}")
        A("s_waitcnt lgkmcnt(0)")
        A(f"s_lshl_b32 s3, s{S_BR}, 3\ns_add_u32 s3, s3, s{S_B}\ns_mul_i32 s14, s3, 10\ns_mul_i32 s15, s{S_RH}, 5\ns_add_u32 s14, s14, s15")
        A(f"s_mul_i32 s14, s14, {self.QS}")
        A(f"s_add_u32 s{S_OF}, s12, s14\ns_addc_u32 s{S_OF+1}, s13, 0\ns_mov_b32 s{S_OF+2}, {4*self.QS+131072}\ns_mov_b32 s{S_OF+3}, 0x20000")
        A(f"s_mul_i32 s14, s{S_I}, 288")
        A(f"s_add_u32 s{S_WO}, s4, s14\ns_addc_u32 s{S_WO+1}, s5, 0\ns_sub_u32 s{S_WO}, s{S_WO}, 8192\ns_subb_u32 s{S_WO+1}, s{S_WO+1}, 0")
        A(f"s_sub_u32 s{S_WO+2}, {4096*1152+8192}, s14\ns_mov_b32 s{S_WO+3}, 0x20000")
        A(f"s_lshl_b32 s14, s3, 2\ns_add_u32 s14, s14, s{S_I}\ns_mul_i32 s14, s14, {16*12*1024}\ns_add_u32 s14, s14, {PART_OFF}")
        A(f"s_add_u32 s{S_PT}, s12, s14\ns_addc_u32 s{S_PT+1}, s13, 0\ns_mov_b32 s{S_PT+2}, {16*12*1024}\ns_mov_b32 s{S_PT+3}, 0x20000")
        A(f"s_mul_i32 s14, s{S_B}, {160*2304}\ns_mul_i32 s15, s{S_BR}, 1152\ns_add_u32 s14, s14, s15\ns_mul_i32 s15, s{S_I}, 288\ns_add_u32 s14, s14, s15")
        A(f"s_add_u32 s{S_OUT}, s8, s14\ns_addc_u32 s{S_OUT+1}, s9, 0\ns_sub_u32 s{S_OUT+2}, {1280*2304}, s14\ns_mov_b32 s{S_OUT+3}, 0x20000")
        A(f"s_mov_b32 s{S_DBG}, s10\ns_mov_b32 s{S_DBG+1}, s11")
        A(f"s_add_u32 s{S_FLG}, s12, {FLAG_OFF}\ns_addc_u32 s{S_FLG+1}, s13, 0\ns_mov_b32 s{S_FLG+2}, {2*256*128}\ns_mov_b32 s{S_FLG+3}, 0x20000")
        A(f"s_lshl_b32 s3, s3, 4")
        A(f"s_add_u32 s14, s3, s{S_H}\ns_lshl_b32 s{S_CNT}, s14, 7")
        A(f"s_lshl_b32 s{S_CNT2}, s3, 7")
        A(f"s_lshl_b32 s{S_IT}, s{S_I}, 1")
        A(f"s_mul_i32 s{S_M0}, s{S_W}, 0")
        A(f"s_lshl_b32 s14, s{S_KH}, 1\ns_add_u32 s14, s14, s{S_RH}\ns_mul_i32 s{S_M0}, s14, {CH}")

    def offs(self):
        return [f"s_lshl_b32 s{S_T0}, s{S_J}, 5", f"s_lshl_b32 s{S_T1}, s{S_KH}, 4", f"s_add_u32 s{S_T0}, s{S_T0}, s{S_T1}",
                f"s_lshl_b32 s{S_T1}, s{S_IT}, 1", f"s_add_u32 s{S_T0}, s{S_T0}, s{S_T1}",
                f"s_lshl_b32 s{S_OSO}, s{S_T0}, 10",
                f"s_add_u32 s{S_T0}, s{S_T0}, s{S_RH}", f"s_mul_i32 s{S_WSO}, s{S_T0}, {32*1152}",
                f"s_add_u32 s{S_IT}, s{S_IT}, 1", f"s_and_b32 s{S_IT}, s{S_IT}, 7"]
    def wdma(self, stage):
        pol = self.o.get("p2w", "")
        G = []
        for grp, idx in enumerate(([0,1,2,3], [4,5,6,7], [8])):
            g = [f"s_add_u32 m0, s{S_M0}, {stage*STG + grp*4096}"]
            for n, i in enumerate(idx):
                g.append(f"buffer_load_dwordx4 v{V_WD+i}, s[{S_WO}:{S_WO+3}], s{S_WSO} offen offset:{n*1024}{pol} lds")
            G.append(g)
        return G
    def bloads(self, stage):
        pol = self.o.get("p2o", " sc1")
        L = []
        for st in range(2):
            for qi in range(5):
                L.append([f"s_add_u32 s{S_T2}, s{S_OSO}, {qi*self.QS + st*1024}",
                          f"buffer_load_dwordx4 {vr(V_B+40*stage+20*st+4*qi,4)}, v{V_OB}, s[{S_OF}:{S_OF+3}], s{S_T2} offen{pol}"])
        return L
    def a_reads(self, st, buf):
        R = []
        for nt in range(9):
            for hh in range(2):
                R.append(f"ds_read_b64_tr_b16 {ar(A_A[buf]+4*nt+2*hh,2)}, v{V_AR} offset:{st*CH + hh*4608 + nt*32}")
        return R

    def issue_w(self, stage):
        for g in self.wdma(stage):
            self.A(g[0]); self.A("s_nop 0")
            for l in g[1:]: self.A(l)
    def issue_b(self, stage):
        for g in self.bloads(stage):
            for l in g: self.A(l)

    def get_nonce(self, uid):
        A = self.A
        A(f"s_load_dwordx2 s[14:15], s[0:1], 88")
        A("s_waitcnt lgkmcnt(0)")
        A(f"v_mov_b32 v{V_T}, 0")
        A(f"s_mov_b32 s{S_T3}, 0x40000")
        A(f"P2_NON_{uid}:")
        A(f"global_load_dword v{V_T+1}, v{V_T}, s[14:15] sc1")
        A("s_waitcnt vmcnt(0)")
        A(f"v_readfirstlane_b32 s{S_NONCE}, v{V_T+1}")
        A("s_nop 3")
        A(f"s_cmp_lg_u32 s{S_NONCE}, 0")
        A(f"s_cbranch_scc1 P2_NOND_{uid}")
        A(f"s_sub_u32 s{S_T3}, s{S_T3}, 1\ns_cmp_eq_u32 s{S_T3}, 0")
        A(f"s_cbranch_scc1 P2_NOND_{uid}")
        A("s_sleep 1")
        A(f"s_branch P2_NON_{uid}")
        A(f"P2_NOND_{uid}:")
    def poll(self, kind, uid):
        A = self.A
        A(f"s_cmp_lg_u32 s{S_W}, 0")
        A(f"s_cbranch_scc1 P2_POLLED_{uid}")
        A(f"v_and_b32 v{V_T}, 3, v{V_LANE}")
        if kind == 0:
            A(f"s_lshl_b32 s{S_T0}, s{S_J}, 9\ns_add_u32 s{S_T0}, s{S_T0}, s{S_CNT2}")
            A(f"v_lshlrev_b32 v{V_T}, 7, v{V_T}")
        else:
            A(f"s_lshl_b32 s{S_T0}, s{S_I}, 7\ns_add_u32 s{S_T0}, s{S_T0}, s{S_CNT2}\ns_add_u32 s{S_T0}, s{S_T0}, {256*128}")
            A(f"v_lshlrev_b32 v{V_T}, 9, v{V_T}")
        A(f"s_mov_b32 s{S_T3}, 0x40000")
        A(f"P2_POLL_{uid}:")
        A(f"buffer_load_dword v{V_T+1}, v{V_T}, s[{S_FLG}:{S_FLG+3}], s{S_T0} offen sc1")
        A("s_waitcnt vmcnt(0)")
        A(f"v_cmp_ne_u32 vcc, s{S_NONCE}, v{V_T+1}")
        A("s_nop 4")
        A(f"s_cbranch_vccz P2_POLLED_{uid}")
        A(f"s_sub_u32 s{S_T3}, s{S_T3}, 1")
        A(f"s_cmp_eq_u32 s{S_T3}, 0")
        A(f"s_cbranch_scc1 P2_POLLED_{uid}")
        A("s_sleep 1")
        A(f"s_branch P2_POLL_{uid}")
        A(f"P2_POLLED_{uid}:")
        A("s_barrier")
    def signal(self, kind, uid, drain=True):
        A = self.A
        if drain:
            A("s_waitcnt vmcnt(0)")
            A("s_barrier")
        A(f"s_cmp_lg_u32 s{S_W}, 0")
        A(f"s_cbranch_scc1 P2_SIG_{uid}")
        A(f"s_add_u32 s{S_T0}, s{S_CNT}, {kind*256*128}")
        A(f"v_mov_b32 v{V_T}, 0\nv_mov_b32 v{V_T+1}, s{S_NONCE}")
        A("s_mov_b64 s[14:15], exec\ns_mov_b64 exec, 1")
        A(f"buffer_store_dword v{V_T+1}, v{V_T}, s[{S_FLG}:{S_FLG+3}], s{S_T0} offen sc1")
        A("s_mov_b64 exec, s[14:15]")
        A(f"P2_SIG_{uid}:")

    def main(self, stamp=None):
        A = self.A
        NIT = 8
        vm = []
        def wait_n(tags):
            last = max(i for i, t in enumerate(vm) if t in tags)
            return len(vm) - 1 - last
        for it in range(2):
            for l in self.offs(): A(l)
            A(f"s_mov_b32 s{54+it}, s{S_OSO}")
            self.issue_w(it); vm += [("w", it)] * 9
        if self.fused:
            A("s_waitcnt vmcnt(18)")
            A("s_barrier")
            self.signal(0, "a", drain=False)
            if stamp: stamp()
            self.poll(0, "a")
            if stamp: stamp()
        for it in range(2):
            A(f"s_mov_b32 s{S_OSO}, s{54+it}")
            self.issue_b(it); vm += [("b", it)] * 10
        z = V_T + 4
        for i in range(4): A(f"v_mov_b32 v{z+i}, 0")
        A("s_nop 1")
        for i in range(11):
            A(f"v_mfma_f32_32x32x16_bf16 {ar(16*i,16)}, {vr(z,4)}, {vr(z,4)}, 0")
        for i in range(176, 180): A(f"v_accvgpr_write_b32 a{i}, 0")
        A(f"s_waitcnt vmcnt({wait_n({('w',0)})})")
        A("s_barrier")
        if stamp: stamp()
        A(f"v_mov_b32 v{V_AR}, v{V_ARL}")
        for r in self.a_reads(0, 0): A(r)
        for it in range(NIT):
            stg = it % NST
            nstg = (it + 1) % NST
            for st in range(2):
                buf = st
                M = []
                for nt in range(9):
                    for qi in range(5):
                        d = ar(A_ACC + (nt*5+qi)*4, 4)
                        M.append(mfma(d, ar(A_A[buf]+4*nt, 4), vr(V_B+40*stg+20*st+4*qi, 4), d))
                fill = [[] for _ in range(45)]
                if st == 0:
                    A(f"s_waitcnt vmcnt({wait_n({('b',it)})}) lgkmcnt(0)")
                    R = self.a_reads(1, 1)
                    for n, r in enumerate(R): fill[1 + 2*n].append(r)
                    if it + 2 < NIT:
                        o = self.offs()
                        for n in range(5): fill[2*n] += o[2*n:2*n+2]
                        G = self.wdma((it + 2) % NST)
                        fill[12] += [G[0][0]]; fill[14] += G[0][1:3]; fill[18] += G[0][3:5]
                        fill[22] += [G[1][0]]; fill[24] += G[1][1:3]; fill[28] += G[1][3:5]
                        fill[32] += [G[2][0]]; fill[34] += G[2][1:]
                        vm += [("w", it + 2)] * 9
                else:
                    if it + 1 < NIT:
                        A(f"s_waitcnt vmcnt({wait_n({('w',it+1)})}) lgkmcnt(0)")
                        A("s_barrier")
                        A(f"v_add_u32 v{V_AR}, {nstg*STG}, v{V_ARL}") if False else None
                        R = [r.replace(f"v{V_AR} offset:", f"v{V_T+8} offset:") for r in self.a_reads(0, 0)]
                        A(f"v_add_u32 v{V_T+8}, {nstg*STG}, v{V_ARL}")
                        for n, r in enumerate(R): fill[1 + 2*n].append(r)
                    else:
                        A("s_waitcnt lgkmcnt(0)")
                    if it + 2 < NIT:
                        B = self.bloads((it + 2) % NST)
                        for n, g in enumerate(B): fill[2 + 4*n] += g
                        vm += [("b", it + 2)] * 10
                for m in range(45):
                    A(M[m])
                    for l in fill[m]: A(l)
                if st == 1 and it + 1 < NIT:
                    A(f"v_mov_b32 v{V_AR}, v{V_T+8}")
        if stamp: stamp()

    def reduce(self, stamp=None):
        A = self.A
        T = V_T
        PK = V_B + 192 - 48
        A("s_barrier")
        A(f"s_mul_i32 s{S_T0}, s{S_RH}, {46*1024}")
        A(f"v_add_u32 v{T}, s{S_T0}, v{V_OB}")
        A("s_nop 4")
        A(f"s_cmp_eq_u32 s{S_KH}, 0")
        A("s_cbranch_scc0 P2_RED1")
        def red(send, keep):
            for tl in send:
                A(f"ds_write_b128 v{T}, {ar(A_ACC+4*tl,4)} offset:{tl*1024}")
            for n, tl in enumerate(keep):
                for r in range(4): A(f"v_accvgpr_read_b32 v{V_B+4*n+r}, a{A_ACC+4*tl+r}")
            A("s_waitcnt lgkmcnt(0)")
            A("s_barrier")
            RB = V_B + 92
            for base in (0, 12):
                batch = list(enumerate(keep))[base:base+12]
                for m, (n, tl) in enumerate(batch):
                    A(f"ds_read_b128 {vr(RB+4*m,4)}, v{T} offset:{tl*1024}")
                A("s_waitcnt lgkmcnt(0)")
                for m, (n, tl) in enumerate(batch):
                    for r in range(0, 4, 2):
                        A(f"v_pk_add_f32 v[{V_B+4*n+r}:{V_B+4*n+r+1}], v[{V_B+4*n+r}:{V_B+4*n+r+1}], v[{RB+4*m+r}:{RB+4*m+r+1}]")
                    pr, hf = n // 2, n % 2
                    A(f"v_cvt_pk_bf16_f32 v{PK+4*pr+2*hf}, v{V_B+4*n}, v{V_B+4*n+1}")
                    A(f"v_cvt_pk_bf16_f32 v{PK+4*pr+2*hf+1}, v{V_B+4*n+2}, v{V_B+4*n+3}")
        red(list(range(23, 45)), list(range(0, 23)))
        A("s_branch P2_RED2")
        A("P2_RED1:")
        red(list(range(0, 23)), list(range(23, 45)))
        A("P2_RED2:")
        A(f"s_lshl_b32 s{S_T0}, s{S_J}, 2\ns_add_u32 s{S_T0}, s{S_T0}, s{S_W}\ns_mul_i32 s{S_T0}, s{S_T0}, {12*1024}")
        for pr in range(12):
            A(f"s_add_u32 s{S_T1}, s{S_T0}, {pr*1024}")
            A(f"buffer_store_dwordx4 {vr(PK+4*pr,4)}, v{V_OB}, s[{S_PT}:{S_PT+3}], s{S_T1} offen sc1")
        self.signal(1, "b")
        if stamp: stamp()
        self.poll(1, "b")
        if stamp: stamp()
        A(f"v_and_b32 v{T+2}, 15, v{V_LANE}\nv_mul_u32_u24 v{T+2}, 2304, v{T+2}")
        A(f"v_lshrrev_b32 v{T+3}, 4, v{V_LANE}\nv_lshl_add_u32 v{T+2}, v{T+3}, 3, v{T+2}")
        for m in range(3):
            A(f"s_add_u32 s{S_T0}, s{S_J}, {4*m}\ns_mul_i32 s{S_T1}, s{S_W}, 12\ns_add_u32 s{S_T0}, s{S_T0}, s{S_T1}\ns_lshl_b32 s{S_T0}, s{S_T0}, 10")
            for src in range(4):
                A(f"s_add_u32 s{S_T1}, s{S_T0}, {src*4*12*1024}")
                A(f"buffer_load_dwordx4 {vr(V_B+16*m+4*src,4)}, v{V_OB}, s[{S_PT}:{S_PT+3}], s{S_T1} offen sc1")
        F = V_B + 64
        nst = 0
        for m in range(3):
            b = V_B + 16*m
            A(f"s_waitcnt vmcnt({(2-m)*4 + nst})")
            for hf in range(2):
                f = F + 8*hf
                for src in range(4):
                    for d in range(2):
                        x = b + 4*src + 2*hf + d
                        if src == 0:
                            A(f"v_lshlrev_b32 v{f+2*d}, 16, v{x}\nv_and_b32 v{f+2*d+1}, 0xffff0000, v{x}")
                        else:
                            A(f"v_lshlrev_b32 v{f+4}, 16, v{x}\nv_and_b32 v{f+5}, 0xffff0000, v{x}")
                            A(f"v_add_f32 v{f+2*d}, v{f+2*d}, v{f+4}\nv_add_f32 v{f+2*d+1}, v{f+2*d+1}, v{f+5}")
                A(f"v_cvt_pk_bf16_f32 v{f+6}, v{f}, v{f+1}\nv_cvt_pk_bf16_f32 v{f+7}, v{f+2}, v{f+3}")
                A(f"s_add_u32 s{S_T0}, s{S_J}, {4*m}\ns_lshl_b32 s{S_T0}, s{S_T0}, 1\ns_add_u32 s{S_T0}, s{S_T0}, {hf}")
                A(f"s_mul_i32 s{S_T1}, s{S_KH}, 23\ns_add_u32 s{S_T1}, s{S_T1}, s{S_T0}")
                A(f"s_mul_i32 s{S_T2}, s{S_T1}, 52\ns_lshr_b32 s{S_T2}, s{S_T2}, 8")
                A(f"s_mul_i32 s{S_T3}, s{S_T2}, 5\ns_sub_u32 s{S_T3}, s{S_T1}, s{S_T3}")
                A(f"s_lshl_b32 s{S_T3}, s{S_T3}, 4\ns_mul_i32 s56, s{S_RH}, 80\ns_add_u32 s{S_T3}, s{S_T3}, s56\ns_mul_i32 s{S_T3}, s{S_T3}, 2304")
                A(f"s_lshl_b32 s{S_T2}, s{S_T2}, 5\ns_add_u32 s{S_T3}, s{S_T3}, s{S_T2}")
                A(f"s_sub_u32 s56, 23, s{S_KH}\ns_cmp_ge_u32 s{S_T0}, s56\ns_cselect_b32 s{S_T3}, {1<<30}, s{S_T3}")
                A(f"buffer_store_dwordx2 {vr(f+6,2)}, v{T+2}, s[{S_OUT}:{S_OUT+3}], s{S_T3} offen")
                nst += 1


class K2B:
    def __init__(self, opts=None):
        self.o = opts or {}
        self.A = Asm()
        self.QS = 131072 + self.o.get("qpad", 0)
        self.LDS = NST * STG
        self.nst = 0
    def stamp(self):
        if not self.o.get("prof"): return
        i = self.nst = self.nst + 1
        b = 64 + (i-1)*4
        self.A(f"s_memtime s[{b}:{b+1}]")
        self.A(f"s_memrealtime s[{b+2}:{b+3}]")
    def dump_stamps(self):
        if not self.o.get("prof"): return
        A = self.A
        A("s_waitcnt lgkmcnt(0) vmcnt(0)")
        A("s_load_dwordx2 s[4:5], s[0:1], 96")
        A("s_waitcnt lgkmcnt(0)")
        A(f"s_add_u32 s4, s4, {(129<<20)}\ns_addc_u32 s5, s5, 0\ns_mov_b32 s6, 0x100000\ns_mov_b32 s7, 0x20000")
        A(f"s_lshl_b32 s3, s2, 2\ns_add_u32 s3, s3, s{S_W}\ns_lshl_b32 s3, s3, 7")
        A("s_mov_b64 exec, 1")
        for i in range(self.nst):
            b = 64 + i*4
            A(f"v_mov_b32 v2, s{b}\nv_mov_b32 v3, s{b+2}\nv_mov_b32 v4, s3")
            A(f"buffer_store_dwordx2 v[2:3], v4, s[4:7], 0 offen offset:{i*8}")
            A("s_nop 1")
    def build(self):
        A = self.A
        A(".p2align 8\n.type k2_kernel,@function\nk2_kernel:")
        A("s_cmp_ge_u32 s2, 256")
        A("s_cbranch_scc1 K2_END")
        self.stamp()
        A("s_and_b32 s3, s2, 7\ns_lshr_b32 s14, s2, 3")
        A(f"s_lshr_b32 s{S_BR}, s3, 2\ns_and_b32 s3, s3, 3\ns_lshl_b32 s3, s3, 2")
        A(f"s_and_b32 s{S_H}, s14, 3\ns_add_u32 s{S_H}, s{S_H}, s3\ns_lshr_b32 s{S_B}, s14, 2")
        A(f"v_lshrrev_b32 v{V_T}, 6, v0\ns_nop 0\nv_readfirstlane_b32 s{S_W}, v{V_T}\ns_nop 3")
        p = P2(A, self.o, self.QS, fused=False)
        p.get_nonce("k")
        p.setup()
        p.main(self.stamp)
        p.reduce(self.stamp)
        self.stamp()
        self.dump_stamps()
        A("K2_END:")
        A("s_endpgm")
        self.loop_lines = []
        return A
```

```python
import sys
from asmlib import *
import k1, k2, p2

HEADER = open("concat_heads__gqa_block_cached__gqa_block_cached__near_ridge.s.ref").read().split("; Override launch")[0]

def desc(name, vgpr, accum, sgpr=102):
    return f""".amdhsa_kernel {name}
  .amdhsa_next_free_vgpr {vgpr}
  .amdhsa_next_free_sgpr {sgpr}
  .amdhsa_accum_offset {accum}
  .amdhsa_group_segment_fixed_size 0
  .amdhsa_kernarg_size 104
  .amdhsa_user_sgpr_count 2
  .amdhsa_user_sgpr_kernarg_segment_ptr 1
  .amdhsa_system_sgpr_workgroup_id_x 1
.end_amdhsa_kernel
"""

def build(opts=None, only=None):
    opts = opts or {}
    a1 = k1.K1(opts); t1 = a1.build()
    a2 = (p2.K2B(opts) if opts.get('k2b') else k2.K2(opts)); t2 = a2.build()
    errs = check_hazards(t1.lines, "k1") + check_hazards(a1.loop_lines * 2, "k1loop") + check_hazards(a1.qloop_lines * 2, "k1qloop") + check_hazards(t2.lines, "k2") + check_hazards(a2.loop_lines * 2, "k2loop")
    for e in errs: print("HAZARD:", e, file=sys.stderr)
    s = HEADER
    if opts.get("fused"):
        name = "concat_heads__gqa_block_cached__gqa_block_cached__near_ridge_kernel"
        s += f"; @launch grid=(256,1,1) block=(256,1,1) lds={k1.LDS_TOTAL}\n"
        s += f'.amdgcn_target "amdgcn-amd-amdhsa--gfx950"\n.text\n.globl {name}\n'
        s += t1.text().replace("k1_kernel", name)
        s += '.section .rodata,"a"\n.p2align 6\n' + desc(name, 512, 256)
        return s, errs
    s += f"; @launch kernel=k1_kernel grid=(256,1,1) block=(256,1,1) lds={k1.LDS_TOTAL}\n"
    s += f"; @launch kernel=k2_kernel grid=({256 if opts.get('k2b') else 240},1,1) block=(256,1,1) lds={a2.LDS}\n"
    s += '.amdgcn_target "amdgcn-amd-amdhsa--gfx950"\n.text\n.globl k1_kernel\n.globl k2_kernel\n'
    s += t1.text() + t2.text()
    s += '.section .rodata,"a"\n.p2align 6\n' + desc("k1_kernel", 512, 256) + ".p2align 6\n" + desc("k2_kernel", 512, 256)
    return s, errs

if __name__ == "__main__":
    out = sys.argv[1] if len(sys.argv) > 1 else "concat_heads__gqa_block_cached__gqa_block_cached__near_ridge.s"
    opts = {}
    for a in sys.argv[2:]:
        k, v = a.split("=")
        opts[k] = eval(v)
    s, errs = build(opts)
    open(out, "w").write(s)
    print("wrote", out, len(s), "bytes;", len(errs), "hazards")
```

```python
from asmlib import *
from sched import window_schedule, best_schedule
import p2 as P2M

BLK = 1056
TILE = 16 * BLK
KRING = 0
VRING = 4 * TILE
SPARE = 8 * TILE
LDS_TOTAL = 163840
STAGE = [SPARE, VRING + 2 * TILE, KRING + 2 * TILE]
XOFF = 0
WOFF = 10240
WBLK = 1088
BIAS = 2400

V_TID, V_LANE = 0, 1
V_XDMA, V_WDMA = 2, 3
V_KDMA = 6
V_VDMA = 10
V_KLANE, V_VLANE = 14, 15
V_Q = 16
V_S = [96, 136]
V_CI = 176
V_L = 196
V_T = 201
V_KAD, V_VAD = 216, 217
V_QACC = 96
V_XF = [16, 36]
V_XRD = 56
V_WRD = 59
A_O = 0
A_KF = 160
A_VF = 192
A_WF = [160, 192]

S_X, S_WQ, S_K, S_V, S_O = 16, 20, 24, 28, 32
S_W, S_BR, S_B, S_H = 36, 37, 38, 39
S_XSO, S_XM0, S_WSO, S_WM0 = 40, 41, 42, 43
S_T0, S_T1, S_T2 = 44, 45, 46
S_KM0W = 47
S_KSLOT, S_VSLOT = 48, 49
S_KDSLOT, S_VDSLOT = 50, 51
S_KSOFF, S_VSOFF = 52, 53
S_LOOP = 54
S_SCALE = 55
S_FLAG = 56

def mfma(d, a, b, c):
    return f"v_mfma_f32_16x16x32_bf16 {d}, {a}, {b}, {c}"

class K1:
    def __init__(self, opts=None):
        self.o = opts or {}
        self.A = Asm()
        self.QS = 131072 + self.o.get("qpad", 0)
        self.vm = []
    def stamp(self, force=False):
        if not self.o.get("prof"): return
        if self.o.get("profp2") and not force and not getattr(self, "in_p2", False) and getattr(self, "nst", 0) >= 1: return
        i = self.nst = getattr(self, "nst", 0) + 1
        b = 60 + (i-1)*2
        assert b + 1 <= 87
        self.A(f"{'s_memtime' if self.o.get('profcyc') else 's_memrealtime'} s[{b}:{b+1}]")
    def dump_stamps(self, wgs="s2"):
        if not self.o.get("prof"): return
        A = self.A
        A("s_waitcnt lgkmcnt(0) vmcnt(0)")
        A("s_load_dwordx2 s[4:5], s[0:1], 96")
        A("s_waitcnt lgkmcnt(0)")
        A(f"s_add_u32 s4, s4, {self.o.get('profoff', 128<<20)}\ns_addc_u32 s5, s5, 0\ns_mov_b32 s6, 0x100000\ns_mov_b32 s7, 0x20000")
        A(f"s_lshl_b32 s3, s2, 2\ns_add_u32 s3, s3, s{S_W}\ns_lshl_b32 s3, s3, 7")
        A("s_mov_b64 exec, 1")
        for i in range(self.nst):
            b = 60 + i*2
            A(f"v_mov_b32 v2, s{b}\nv_mov_b32 v3, s{b}\nv_mov_b32 v4, s3")
            A(f"buffer_store_dwordx2 v[2:3], v4, s[4:7], 0 offen offset:{i*8}")
            A("s_nop 1")
    def vm_issue(self, tag, n=1):
        self.vm += [tag] * n
    def vm_wait_n(self, tags):
        last = max(i for i, t in enumerate(self.vm) if t in tags)
        return min(63, len(self.vm) - 1 - last)

    def setup(self):
        A = self.A
        A("s_cmp_ge_u32 s2, 256")
        A("s_cbranch_scc1 K1_END")
        if self.o.get("badmap"):
            A("s_lshr_b32 s3, s2, 5")
            A("s_and_b32 s14, s2, 31")
        else:
            A("s_and_b32 s3, s2, 7")
            A("s_lshr_b32 s14, s2, 3")
        A(f"s_lshr_b32 s{S_BR}, s3, 2")
        A("s_and_b32 s3, s3, 3")
        A("s_lshl_b32 s3, s3, 2")
        A(f"s_and_b32 s{S_H}, s14, 3")
        A(f"s_add_u32 s{S_H}, s{S_H}, s3")
        A(f"s_lshr_b32 s{S_B}, s14, 2")
        A(f"s_mul_i32 s3, s{S_BR}, 40")
        A("s_add_u32 s14, s0, s3")
        A("s_addc_u32 s15, s1, 0")
        A("s_load_dwordx8 s[4:11], s[14:15], 0")
        A("s_load_dwordx2 s[12:13], s[0:1], 96")
        A("s_load_dwordx2 s[88:89], s[14:15], 32")
        A("s_load_dwordx2 s[100:101], s[0:1], 88")
        A("s_load_dwordx2 s[58:59], s[0:1], 80")
        A(f"v_and_b32 v{V_LANE}, 63, v0")
        A(f"v_lshrrev_b32 v{V_T}, 6, v0")
        A("s_nop 0")
        A(f"v_readfirstlane_b32 s{S_W}, v{V_T}")
        L = V_LANE
        t0, t1, t2 = V_T, V_T + 1, V_T + 2
        A(f"v_lshrrev_b32 v{t0}, 2, v{L}")
        A(f"v_mul_u32_u24 v{t0}, 1152, v{t0}")
        A(f"v_lshrrev_b32 v{t1}, 4, v{L}")
        A(f"v_sub_u32 v{t1}, 0, v{t1}")
        A(f"v_and_b32 v{t1}, 3, v{t1}")
        A(f"v_and_b32 v{t2}, 3, v{L}")
        A(f"v_xor_b32 v{t1}, v{t1}, v{t2}")
        A(f"v_lshl_add_u32 v{V_XDMA}, v{t1}, 4, v{t0}")
        A(f"v_lshrrev_b32 v{t0}, 5, v{L}")
        A(f"v_lshlrev_b32 v{t0}, 16, v{t0}")
        A(f"v_and_b32 v{t1}, 31, v{L}")
        A(f"v_lshl_add_u32 v{V_WDMA}, v{t1}, 4, v{t0}")
        A("s_waitcnt lgkmcnt(0)")
        if self.o.get("fused") or self.o.get("k2b"):
            A(f"s_or_b32 s14, s2, s{S_W}")
            A("s_cmp_lg_u32 s14, 0")
            A("s_cbranch_scc1 K1_NONON")
            A("s_memrealtime s[44:45]")
            A("s_waitcnt lgkmcnt(0)")
            A("s_or_b32 s44, s44, 1")
            A(f"v_mov_b32 v{V_T}, 0\nv_mov_b32 v{V_T+1}, s44")
            A(f"global_store_dword v{V_T}, v{V_T+1}, s[100:101] sc1")
            A("K1_NONON:")
        if self.o.get("fused") and self.o.get("xccfast", False):
            A(f"s_cmp_lg_u32 s{S_W}, 0")
            A("s_cbranch_scc1 K1_NOXCC")
            A("s_getreg_b32 s44, hwreg(HW_REG_XCC_ID, 0, 3)")
            A(f"s_lshl_b32 s45, s{S_BR}, 3\ns_add_u32 s45, s45, s{S_B}\ns_lshl_b32 s45, s45, 4\ns_add_u32 s45, s45, s{S_H}")
            A("s_or_b32 s44, s44, 8")
            A("s_and_b32 s46, s45, 7\ns_lshl_b32 s46, s46, 2\ns_lshl_b32 s44, s44, s46")
            A("s_lshr_b32 s45, s45, 3\ns_lshl_b32 s45, s45, 2\ns_add_u32 s45, s45, 16")
            A(f"v_mov_b32 v{V_T}, s45\nv_mov_b32 v{V_T+1}, s44")
            A("s_mov_b64 s[44:45], exec\ns_mov_b64 exec, 1")
            A(f"global_atomic_or v{V_T}, v{V_T+1}, s[100:101] sc1")
            A("s_mov_b64 exec, s[44:45]")
            A("K1_NOXCC:")
        w, b, h, br = S_W, S_B, S_H, S_BR
        A(f"s_mul_i32 s3, s{b}, 184320")
        A(f"s_add_u32 s{S_X}, s4, s3\ns_addc_u32 s{S_X+1}, s5, 0\ns_mov_b32 s{S_X+2}, 184320\ns_mov_b32 s{S_X+3}, 0x20000")
        A(f"s_lshl_b32 s3, s{h}, 9")
        A(f"s_add_u32 s{S_WQ}, s10, s3\ns_addc_u32 s{S_WQ+1}, s11, 0")
        A(f"s_sub_u32 s{S_WQ+2}, {576*8192}, s3\ns_mov_b32 s{S_WQ+3}, 0x20000")
        A(f"s_lshl_b32 s3, s{b}, 4\ns_add_u32 s3, s3, s{h}")
        A("s_lshr_b32 s14, s3, 14\ns_lshl_b32 s3, s3, 18")
        for (srd, lo) in ((S_K, 6), (S_V, 8)):
            A(f"s_add_u32 s{srd}, s{lo}, s3\ns_addc_u32 s{srd+1}, s{lo+1}, s14")
            A(f"s_sub_u32 s{srd}, s{srd}, {BIAS}\ns_subb_u32 s{srd+1}, s{srd+1}, 0")
            A(f"s_mov_b32 s{srd+2}, {262144+BIAS}\ns_mov_b32 s{srd+3}, 0x20000")
        A(f"s_lshl_b32 s3, s{br}, 3\ns_add_u32 s3, s3, s{b}")
        A(f"s_mul_i32 s3, s3, {10*self.QS}")
        A(f"s_lshl_b32 s14, s{h}, 1\ns_lshr_b32 s15, s{w}, 1\ns_add_u32 s14, s14, s15")
        A("s_lshl_b32 s14, s14, 12")
        A("s_add_u32 s3, s3, s14")
        A(f"s_and_b32 s15, s{w}, 1\ns_mul_i32 s15, s15, {5*self.QS}")
        A("s_add_u32 s3, s3, s15")
        A(f"s_add_u32 s{S_O}, s12, s3\ns_addc_u32 s{S_O+1}, s13, 0")
        A(f"s_mov_b32 s{S_O+2}, {4*self.QS+4096}\ns_mov_b32 s{S_O+3}, 0x20000")
        A(f"s_mul_i32 s3, s{w}, 3\ns_lshl_b32 s14, s{w}, 1\ns_add_u32 s14, s14, 1")
        A(f"s_cmp_lt_u32 s{w}, 2\ns_cselect_b32 s3, s3, s14")
        A(f"s_mul_i32 s{S_XSO}, s3, 18432\ns_lshl_b32 s{S_XM0}, s3, 10")
        A(f"s_and_b32 s3, s{w}, 1\ns_lshl_b32 s3, s3, 2\ns_lshr_b32 s14, s{w}, 1\ns_lshl_b32 s14, s14, 4\ns_add_u32 s3, s3, s14")
        A(f"s_lshl_b32 s{S_WSO}, s3, 13")
        A(f"s_mul_i32 s{S_WM0}, s{w}, {4*WBLK}\ns_add_u32 s{S_WM0}, s{S_WM0}, {WOFF}")
        A(f"s_mul_i32 s{S_KM0W}, s{w}, {4*BLK}")

    def dma_chunk(self, cc, inter=None):
        st = STAGE[cc % 3]
        G = []
        for i in range(3):
            g = [f"s_add_u32 s{S_T0}, s{S_XSO}, {i*18432 + cc*64}",
                 f"s_add_u32 m0, s{S_XM0}, {st + XOFF + i*1024}",
                 "s_nop 0",
                 f"buffer_load_dwordx4 v{V_XDMA}, s[{S_X}:{S_X+3}], s{S_T0} offen{self.o.get('ntq','')} lds"]
            G.append(("x", i, g))
        for i in range(4):
            g = [f"s_add_u32 s{S_T1}, s{S_WSO}, {(32*cc + i)*8192}",
                 f"s_add_u32 m0, s{S_WM0}, {st + i*WBLK}",
                 "s_nop 0",
                 f"buffer_load_dwordx4 v{V_WDMA}, s[{S_WQ}:{S_WQ+3}], s{S_T1} offen{self.o.get('ntq','')} lds"]
            G.append(("w", i, g))
        return G

    def emit_chunk_dma_group(self, kind, i, g, cc, uid):
        A = self.A
        if kind == "x" and i == 2:
            A(f"s_cmp_ge_u32 s{S_W}, 2")
            A(f"s_cbranch_scc1 K1_SKX_{uid}")
            for l in g: A(l)
            A(f"K1_SKX_{uid}:")
        else:
            for l in g: A(l)
            self.vm_issue(("c", cc))

    def kv_dma(self, kind, tile_imm=None, slot_imm=None):
        nt = " nt" if self.o.get("nt", True) else ""
        srd = S_K if kind == "K" else S_V
        vd = V_KDMA if kind == "K" else V_VDMA
        ring = KRING if kind == "K" else VRING
        L = []
        L.append(f"s_add_u32 m0, s{S_KM0W}, {ring + slot_imm*TILE}")
        L.append(f"s_mov_b32 s{S_T2}, {tile_imm*16384}")
        for i in range(4):
            L.append(f"buffer_load_dwordx4 v{vd+i}, s[{srd}:{srd+3}], s{S_T2} offen offset:{i*BLK}{nt} lds")
        return L

    def setup2(self):
        A = self.A
        L = V_LANE
        t0, t1, t2, t3 = V_T, V_T + 1, V_T + 2, V_T + 3
        w = S_W
        A(f"v_and_b32 v{t0}, 15, v{L}")
        A(f"v_lshrrev_b32 v{t1}, 2, v{t0}")
        A(f"v_sub_u32 v{t1}, 0, v{t1}")
        A(f"v_and_b32 v{t1}, 3, v{t1}")
        A(f"v_lshrrev_b32 v{t2}, 4, v{L}")
        A(f"v_xor_b32 v{t1}, v{t1}, v{t2}")
        A(f"v_lshlrev_b32 v{t1}, 4, v{t1}")
        A(f"v_lshl_add_u32 v{t1}, v{t0}, 6, v{t1}")
        A(f"s_and_b32 s3, s{w}, 1\ns_mul_i32 s3, s3, 5120")
        A(f"v_add_u32 v{t1}, s3, v{t1}")
        for st in range(3): A(f"v_add_u32 v{V_XRD+st}, {STAGE[st]+XOFF}, v{t1}")
        A(f"v_lshrrev_b32 v{t0}, 2, v{L}\nv_and_b32 v{t0}, 3, v{t0}")
        A(f"v_lshrrev_b32 v{t1}, 5, v{L}")
        A(f"v_lshl_add_u32 v{t0}, v{t1}, 3, v{t0}")
        A(f"v_mul_u32_u24 v{t0}, {WBLK}, v{t0}")
        A(f"v_lshrrev_b32 v{t1}, 4, v{L}\nv_and_b32 v{t1}, 1, v{t1}")
        A(f"v_lshl_add_u32 v{t0}, v{t1}, 9, v{t0}")
        A(f"v_and_b32 v{t1}, 3, v{L}")
        A(f"v_lshl_add_u32 v{t0}, v{t1}, 4, v{t0}")
        A(f"s_lshr_b32 s3, s{w}, 1\ns_lshl_b32 s3, s3, 8")
        A(f"v_add_u32 v{t0}, s3, v{t0}")
        for st in range(3): A(f"v_add_u32 v{V_WRD+st}, {STAGE[st]+WOFF}, v{t0}")

    def setup_kv(self):
        A = self.A
        L = V_LANE
        t0, t1, t2, t3 = V_T, V_T + 1, V_T + 2, V_T + 3
        w = S_W
        A(f"v_lshrrev_b32 v{t0}, 4, v{L}\nv_and_b32 v{t1}, 15, v{L}\nv_lshlrev_b32 v{t1}, 4, v{t1}")
        A(f"v_lshl_add_u32 v{t2}, v{t0}, 12, v{t1}")
        A(f"s_lshl_b32 s3, s{w}, 10")
        A(f"v_add_u32 v{t2}, s3, v{t2}")
        for i in range(4):
            A(f"v_add_u32 v{V_KDMA+i}, {BIAS - 800*i}, v{t2}")
        A(f"v_lshl_add_u32 v{t2}, v{t0}, 11, v{t1}")
        A(f"s_lshr_b32 s3, s{w}, 1\ns_lshl_b32 s3, s3, 13\ns_and_b32 s14, s{w}, 1\ns_lshl_b32 s14, s14, 10\ns_add_u32 s3, s3, s14")
        A(f"v_add_u32 v{t2}, s3, v{t2}")
        for i in range(4):
            A(f"v_add_u32 v{V_VDMA+i}, {BIAS - 800*i}, v{t2}")
        A(f"v_and_b32 v{t1}, 15, v{L}\nv_mul_u32_u24 v{t1}, {BLK}, v{t1}")
        A(f"v_lshl_add_u32 v{V_KLANE}, v{t0}, 4, v{t1}")
        A(f"v_lshrrev_b32 v{t1}, 2, v{L}\nv_and_b32 v{t1}, 7, v{t1}")
        A(f"v_mul_u32_u24 v{t1}, {BLK}, v{t1}")
        A(f"v_lshrrev_b32 v{t2}, 5, v{L}")
        A(f"v_lshl_add_u32 v{t1}, v{t2}, 8, v{t1}")
        A(f"v_and_b32 v{t2}, 3, v{L}")
        A(f"v_lshl_add_u32 v{V_VLANE}, v{t2}, 3, v{t1}")

    def warm(self):
        mode = self.o.get("warm", None)
        if mode is None: return
        A = self.A
        gran = self.o.get("wgran", 128)
        pol = mode
        A(f"s_mov_b32 s84, s4\ns_mov_b32 s85, s5\ns_mov_b32 s86, {8*184320}\ns_mov_b32 s87, 0x20000")
        A(f"s_and_b32 s3, s2, 3\ns_lshl_b32 s3, s3, 11")
        A(f"s_add_u32 s88, s10, s3\ns_addc_u32 s89, s11, 0\ns_sub_u32 s90, {576*8192}, s3\ns_mov_b32 s91, 0x20000")
        A(f"s_lshr_b32 s3, s2, 3\ns_lshl_b32 s3, s3, 8")
        t0, t1, t2 = 72, 73, 74
        A(f"v_add_u32 v{t0}, s3, v0")
        nx = (8*184320 // gran + 8191) // 8192
        nw = (576*2048 // gran + 8191) // 8192
        lg = {128: 7, 64: 6}[gran]
        per_row = 2048 // gran
        lgr = {16: 4, 32: 5}[per_row]
        d = 76
        for i in range(max(nx, nw)):
            if i < nw:
                A(f"v_add_u32 v{t1}, {8192*i}, v{t0}")
                A(f"v_lshrrev_b32 v{t2}, {lgr}, v{t1}\nv_lshlrev_b32 v{t2}, 13, v{t2}")
                A(f"v_and_b32 v{t1}, {per_row-1}, v{t1}\nv_lshl_add_u32 v{t1}, v{t1}, {lg}, v{t2}")
                A(f"buffer_load_dword v{d}, v{t1}, s[88:91], 0 offen{pol}"); d += 1
                self.vm_issue(("warm",))
            if i < nx:
                A(f"v_add_u32 v{t1}, {8192*i}, v{t0}\nv_lshlrev_b32 v{t1}, {lg}, v{t1}")
                A(f"buffer_load_dword v{d}, v{t1}, s[84:87], 0 offen{pol}"); d += 1
                self.vm_issue(("warm",))

    def frag_reads(self, cc):
        st = cc % 3
        buf = cc & 1
        R = []
        for t in range(5):
            R.append(f"ds_read_b128 {vr(V_XF[buf]+4*t,4)}, v{V_XRD+st} offset:{t*1024}")
        for T in range(8):
            for hh in range(2):
                off = hh * 4 * WBLK + 64 * (T >> 1) + 8 * (T & 1)
                R.append(f"ds_read_b64_tr_b16 {ar(A_WF[buf]+4*T+2*hh,2)}, v{V_WRD+st} offset:{off}")
        return R

    def qproj(self):
        A = self.A
        NC = 18
        XS, WS, RC = 96, 97, 98
        XA = [V_XRD, V_XRD + 1, V_XRD + 2]
        WA = [V_WRD, V_WRD + 1, V_WRD + 2]
        XD = [V_XDMA, 62, 63]
        WD = [V_WDMA, 64, 65, 66]
        ntq = self.o.get('ntq', '')
        for n in (1, 2): A(f"v_add_u32 v{XD[n]}, {n*(18432-1024)}, v{V_XDMA}")
        for n in (1, 2, 3): A(f"v_add_u32 v{WD[n]}, {n*(8192-WBLK)}, v{V_WDMA}")
        def xdma(): return [f"buffer_load_dwordx4 v{XD[n]}, s[{S_X}:{S_X+3}], s{XS} offen offset:{n*1024}{ntq} lds" for n in range(3)]
        def wdma(): return [f"buffer_load_dwordx4 v{WD[n]}, s[{S_WQ}:{S_WQ+3}], s{WS} offen offset:{n*WBLK}{ntq} lds" for n in range(4)]
        if self.o.get("rot", True):
            A(f"s_and_b32 s3, s{S_H}, 3\ns_mul_i32 s3, s3, 5\ns_lshl_b32 s{RC}, s{S_B}, 1\ns_add_u32 s{RC}, s{RC}, s3")
            A(f"s_cmp_ge_u32 s{RC}, 18\ns_cselect_b32 s3, 18, 0\ns_sub_u32 s{RC}, s{RC}, s3")
        else:
            A(f"s_mov_b32 s{RC}, 0")
        def adv():
            return [f"s_add_u32 s{RC}, s{RC}, 1", f"s_cmp_ge_u32 s{RC}, 18", f"s_cselect_b32 s{RC}, 0, s{RC}",
                    f"s_lshl_b32 s{XS}, s{RC}, 6", f"s_add_u32 s{XS}, s{XS}, s{S_XSO}",
                    f"s_lshl_b32 s{WS}, s{RC}, 18", f"s_add_u32 s{WS}, s{WS}, s{S_WSO}"]
        for l in adv()[3:]: A(l)
        def chunk_dma_static(cc):
            A(f"s_add_u32 m0, s{S_XM0}, {STAGE[cc % 3]+XOFF}")
            A(f"s_nop 0")
            for l in xdma(): A(l)
            A(f"s_add_u32 m0, s{S_WM0}, {STAGE[cc % 3]}")
            A(f"s_nop 0")
            for l in wdma(): A(l)
            for l in adv(): A(l)
            self.vm_issue(("c", cc), 7)
        chunk_dma_static(0)
        if self.o.get("codewarm", True):
            A("s_getpc_b64 s[14:15]")
            A("K1_PC:")
            A("s_sub_u32 s14, s14, K1_PC-K1_START\ns_subb_u32 s15, s15, 0")
            A(f"s_lshr_b32 s3, s2, 3\ns_lshl_b32 s3, s3, 2\ns_add_u32 s3, s3, s{S_W}\ns_lshl_b32 s3, s3, 6")
            A(f"v_add_u32 v72, s3, v{V_LANE}\nv_lshlrev_b32 v72, 7, v72")
            A("v_min_u32 v72, K1_END-K1_START, v72")
            A("global_load_dword v73, v72, s[14:15]")
            self.vm_issue(("code",), 1)
        self.setup2()
        self.setup_kv()
        if self.o.get("fused"):
            P2M.P2(A, self.o, self.QS, fused=True).lane_consts(V_T)
        z = 68
        for i in range(4): A(f"v_mov_b32 v{z+i}, 0")
        A("s_nop 1")
        for i in range(10):
            A(f"v_mfma_f32_32x32x16_bf16 {vr(V_QACC+16*i,16)}, {vr(z,4)}, {vr(z,4)}, 0")
        for i in range(10):
            A(f"v_mfma_f32_32x32x16_bf16 {ar(A_O+16*i,16)}, {vr(z,4)}, {vr(z,4)}, 0")
        chunk_dma_static(1)
        A(f"s_waitcnt vmcnt({self.vm_wait_n({('c',0)})})")
        A("s_barrier")
        self.stamp()
        def reads(cc):
            buf, st = cc & 1, cc % 3
            R = []
            for t in range(5):
                R.append(f"ds_read_b128 {vr(V_XF[buf]+4*t,4)}, v{XA[st]} offset:{t*1024}")
            for T in range(8):
                for hh in range(2):
                    off = hh * 4 * WBLK + 64 * (T >> 1) + 8 * (T & 1)
                    R.append(f"ds_read_b64_tr_b16 {ar(A_WF[buf]+4*T+2*hh,2)}, v{WA[st]} offset:{off}")
            return R
        for r in reads(0): A(r)
        chunk_dma_static(2)
        nt = " nt" if self.o.get("nt", True) else ""
        def kv_one(kind, tile, slot, i):
            srd = S_K if kind == "K" else S_V
            vd = V_KDMA if kind == "K" else V_VDMA
            ring = KRING if kind == "K" else VRING
            return ([f"s_add_u32 m0, s{S_KM0W}, {ring + slot*TILE}", f"s_mov_b32 s{S_T2}, {tile*16384}"],
                    f"buffer_load_dwordx4 v{vd+i}, s[{srd}:{srd+3}], s{S_T2} offen offset:{i*BLK}{nt} lds")
        k0 = self.o.get("kvstart", 2)
        early = [("K", 0, 0), ("V", 0, 0), ("K", 1, 1), ("V", 1, 1)]
        kvplan = {}
        for n in range(8):
            k, tile, slot = early[n >> 1]
            kvplan[k0 + n] = [(k, tile, slot, 2*(n & 1)), (k, tile, slot, 2*(n & 1) + 1)]
        kvplan[17] = [("K", 2, 2, i) for i in range(4)]
        self.late_kv = [("K", 3, 3), ("V", 2, 2)]
        if not self.o.get("kvearly"):
            kvplan = {15: [("K", 0, 0, i) for i in range(4)], 16: [("K", 1, 1, i) for i in range(4)],
                      17: [("V", 0, 0, i) for i in range(4)]}
            self.late_kv = [("K", 2, 2), ("V", 1, 1), ("K", 3, 3), ("V", 2, 2)]
        dpos = self.o.get("qdpos", [2, 7, 12, 17, 22, 27, 32])
        m0pos = (dpos[0] - 1, dpos[3] - 1)
        for c in range(NC):
            A.c(f"---- Q-proj chunk {c}")
            if c + 1 < NC:
                A(f"s_waitcnt vmcnt({self.vm_wait_n({('c',c+1)})}) lgkmcnt(0)")
            else:
                A("s_waitcnt lgkmcnt(0)")
            A("s_barrier")
            buf = c & 1
            M = []
            for T in range(8):
                for t in range(5):
                    d = vr(V_QACC + (T*5 + t)*4, 4)
                    M.append(mfma(d, ar(A_WF[buf]+4*T, 4), vr(V_XF[buf]+4*t, 4), d))
            fill = [[] for _ in range(40)]
            dma = c + 3 < NC
            kv = kvplan.get(c, [])
            kpos = [35, 38] if len(kv) == 2 else [5, 14, 23, 32]
            busy = set(kpos[:len(kv)]) | {g - 1 for g in kpos[:len(kv)]}
            if dma: busy |= set(dpos) | set(m0pos)
            R = reads(c + 1) if c + 1 < NC else []
            slots = [g for g in range(0, 34) if g not in busy]
            for i, r in enumerate(R):
                fill[slots[(i * len(slots)) // len(R)]].append(r)
            if dma:
                st = STAGE[c % 3]
                fill[m0pos[0]].append(f"s_add_u32 m0, s{S_XM0}, {st + XOFF}")
                xd, wd = xdma(), wdma()
                for n in range(3): fill[dpos[n]].append(xd[n])
                fill[m0pos[1]].append(f"s_add_u32 m0, s{S_WM0}, {st}")
                for n in range(4): fill[dpos[3+n]].append(wd[n])
                self.vm_issue(("c", c + 3), 7)
                sal = adv()
                fill[33] += sal[0:3]; fill[36] += sal[3:5]; fill[39] += sal[5:7]
            for n, (k, tile, slot, i) in enumerate(kv):
                pre, l = kv_one(k, tile, slot, i)
                fill[kpos[n] - 1] += pre
                fill[kpos[n]].append(l)
                self.vm_issue((k, tile), 1)
            for m in range(40):
                A(M[m])
                for l in fill[m]: A(l)
        self.qloop_lines = []

    def qconvert(self):
        A = self.A
        S0 = V_S[0]
        A(f"s_mov_b32 s{S_SCALE+1}, 0x3e0293ee\ns_mov_b32 s{S_SCALE+2}, 0x3e0293ee")
        A(f"s_waitcnt vmcnt({self.vm_wait_n({('K',0)})})")
        A("s_barrier")
        self.kslot = 0; self.vslot = 0
        for n in range(8): A(self.k_read(n, 0))
        late = list(self.late_kv)
        def conv(s):
            L = []
            for t in range(5):
                for half in range(2):
                    T = 2*s + half
                    src = V_QACC + (T*5 + t)*4
                    if s == 0:
                        L.append(f"v_pk_mul_f32 v[{src}:{src+1}], v[{src}:{src+1}], s[{S_SCALE+1}:{S_SCALE+2}]")
                        L.append(f"v_pk_mul_f32 v[{src+2}:{src+3}], v[{src+2}:{src+3}], s[{S_SCALE+1}:{S_SCALE+2}]")
                    else:
                        for r in range(4): L.append(f"v_mul_f32 v{src+r}, s{S_SCALE+1}, v{src+r}")
                    dst = V_Q + 16*t + 4*s + 2*half
                    L.append(f"v_cvt_pk_bf16_f32 v{dst}, v{src}, v{src+1}")
                    L.append(f"v_cvt_pk_bf16_f32 v{dst+1}, v{src+2}, v{src+3}")
            return L
        def qk(s):
            M = []
            for ktl in range(2):
                for t in range(5):
                    d = vr(S0 + 8*t + 4*ktl, 4)
                    M.append(mfma(d, ar(A_KF + 4*(ktl*4+s), 4), vr(V_Q + 16*t + 4*s, 4), "0" if s == 0 else d))
            return M
        def kvd(n):
            k, tile, slot = late[n]
            self.vm_issue((k, tile), 4)
            return self.kv_dma(k, tile, slot)
        for l in conv(0): A(l)
        for l in kvd(0): A(l)
        A("s_waitcnt lgkmcnt(0)")
        for s in range(4):
            M = qk(s)
            C = conv(s + 1) if s < 3 else []
            for i, m in enumerate(M):
                A(m)
                for l in C[6*i:6*i+6]: A(l)
            if s + 1 < len(late):
                for l in kvd(s + 1): A(l)

    def k_read(self, n, half, slot=0):
        kt = 2*half + (n >> 2); s = n & 3
        return f"ds_read_b128 {ar(A_KF+4*n,4)}, v{V_KLANE} offset:{KRING + slot*TILE + kt*256 + s*64}"
    def v_read(self, n, mb, slot=0):
        dt = n >> 1; hh = n & 1
        return f"ds_read_b64_tr_b16 {ar(A_VF+4*dt+2*hh,2)}, v{V_VAD} offset:{slot*TILE + mb*8*BLK + hh*512 + dt*32}"
    def qk_mfmas(self, sb, first_c=None):
        M = []
        for ktl in range(2):
            for s in range(4):
                for t in range(5):
                    d = vr(sb + 8*t + 4*ktl, 4)
                    if s == 0:
                        c = vr(V_CI + 4*t, 4) if first_c is None else first_c
                    else:
                        c = d
                    M.append(mfma(d, ar(A_KF + 4*(ktl*4+s), 4), vr(V_Q + 16*t + 4*s, 4), c))
        return M
    def pv_mfmas(self, sb):
        M = []
        for dt in range(8):
            for t in range(5):
                d = ar(A_O + (dt*5 + t)*4, 4)
                M.append(mfma(d, ar(A_VF + 4*dt, 4), vr(sb + 8*t, 4), d))
        return M
    def item(self, it, sb, khalf, vmb, dma):
        k = it[0]
        if k == 'exp':
            r = sb + 8*it[1] + it[2]
            return [f"v_exp_f32 v{r}, v{r}"]
        if k == 'add':
            r = sb + 8*it[1] + it[2]
            return [f"v_add_f32 v{V_L+it[1]}, v{V_L+it[1]}, v{r}"]
        if k == 'cvt':
            r = sb + 8*it[1]
            p = it[2]
            return [f"v_cvt_pk_bf16_f32 v{r+p}, v{r+2*p}, v{r+2*p+1}"]
        if k == 'K':
            return [self.k_read(it[1], khalf, self.kslot)] if khalf is not None else []
        if k == 'V':
            return [self.v_read(it[1], vmb, self.vslot)] if vmb is not None else []
        if k == 'DMA':
            if not dma: return []
            n = len(dma) // it[2]
            return dma[it[1]*n:(it[1]+1)*n]
    def phase(self, M, gaps, sb, khalf=None, vmb=None, dma=None, pre=None, head=None):
        A = self.A
        for i in range(40):
            if M is not None:
                A(M[i])
            elif gaps is not None and A.lines[-1].startswith("v_exp_f32") and gaps[i] and gaps[i][0][0] != 'exp':
                A("s_nop 0")
            if head and i in head:
                for l in head[i]: A(l)
            if gaps is not None:
                for it in gaps[i]:
                    for l in self.item(it, sb, khalf, vmb, dma): A(l)

    def loop_dma(self, kind):
        if self.o.get("loop_nodma"): return []
        nt = " nt" if self.o.get("nt", True) else ""
        srd = S_K if kind == "K" else S_V
        vd = V_KDMA if kind == "K" else V_VDMA
        so = S_KSOFF if kind == "K" else S_VSOFF
        return [f"buffer_load_dwordx4 v{vd+i}, s[{srd}:{srd+3}], s{so} offen offset:{i*BLK}{nt} lds" for i in range(4)]

    def slot_adv(self, s, base):
        return [f"s_add_u32 s{s}, s{s}, {TILE}",
                f"s_cmp_ge_u32 s{s}, s{S_T0}" if False else None]

    def warmwo(self):
        A = self.A
        if self.o.get("warmwo") is not None:
            pol = self.o.get("warmwo")
            if self.o.get("fused"):
                A(f"s_lshr_b32 s3, s{S_H}, 2\ns_lshl_b32 s3, s3, 5\ns_lshl_b32 s14, s{S_B}, 2\ns_add_u32 s3, s3, s14\ns_and_b32 s14, s{S_H}, 3\ns_add_u32 s3, s3, s14\ns_mul_i32 s3, s3, {288*128}")
            else:
                A(f"s_lshl_b32 s3, s{S_B}, 4\ns_add_u32 s3, s3, s{S_H}\ns_mul_i32 s3, s3, {288*128}")
            g = self.o.get("wogran", 128)
            sh = {128: 7, 64: 6}[g]
            A(f"v_lshlrev_b32 v{V_T+12}, {sh}, v0\nv_add_u32 v{V_T+12}, s3, v{V_T+12}")
            A(f"s_add_u32 s14, s3, {288*128}")
            A(f"s_mov_b32 s90, s14\ns_mov_b32 s91, 0x20000")
            n = (288*128 + 256*g - 1) // (256*g)
            for i in range(n):
                if i: A(f"v_add_u32 v{V_T+12}, {256*g}, v{V_T+12}")
                A(f"buffer_load_dword v{V_T+14}, v{V_T+12}, s[88:91], 0 offen{pol}")

    def attention(self):
        A = self.A
        W = best_schedule(tuple(self.o.get("dmagaps", (41,51,61,71))))[1]
        GA, GB = W[:40], W[40:]
        S0, S1 = V_S
        A.c("---- attention prologue")
        A(f"v_add_u32 v{V_VAD}, {VRING}, v{V_VLANE}")
        for n in range(8): A(self.k_read(n, 1))
        for t in range(5): A(f"v_mov_b32 v{V_L+t}, 0")
        A("s_nop 4")
        T = V_T
        for t in range(5):
            r = S0 + 8*t
            A(f"v_max3_f32 v{T+t}, v{r}, v{r+1}, v{r+2}")
            A(f"v_max3_f32 v{T+t}, v{T+t}, v{r+3}, v{r+4}")
            A(f"v_max3_f32 v{T+t}, v{T+t}, v{r+5}, v{r+6}")
            A(f"v_max_f32 v{T+t}, v{T+t}, v{r+7}")
        for sw in ("v_permlane32_swap_b32", "v_permlane16_swap_b32"):
            for t in range(5): A(f"v_mov_b32 v{T+5+t}, v{T+t}")
            A("s_nop 1")
            for t in range(5): A(f"{sw} v{T+t}, v{T+5+t}")
            A("s_nop 1")
            for t in range(5): A(f"v_max_f32 v{T+t}, v{T+t}, v{T+5+t}")
        for t in range(5):
            for i in range(4):
                A(f"v_sub_f32 v{V_CI+4*t+i}, 0, v{T+t}")
            for i in range(0, 8, 2):
                A(f"v_pk_add_f32 v[{S0+8*t+i}:{S0+8*t+i+1}], v[{S0+8*t+i}:{S0+8*t+i+1}], v[{V_CI+4*t}:{V_CI+4*t+1}]")
        self.phase(None, GA, S0, khalf=None)
        if not self.o.get("latewarm", True): self.warmwo()
        if self.o.get("fused"):
            A(f"v_mov_b32 v219, 0")
            A(f"global_load_dword v218, v219, s[100:101] sc1")
        A(f"s_mov_b32 s{S_KSOFF}, {4*16384}")
        A(f"s_mov_b32 s{S_VSOFF}, {3*16384}")
        A(f"s_mov_b32 s{S_LOOP}, 4")
        WL = "s_waitcnt lgkmcnt(0)"
        def ph1(jm):
            self.vslot = jm
            head = {0: [f"s_add_u32 m0, s{S_KM0W}, {KRING + jm*TILE}"], 36: [f"s_add_u32 s{S_KSOFF}, s{S_KSOFF}, {0 if self.o.get('loop_l2') else 16384}"], 38: [WL]}
            self.phase(self.qk_mfmas(S1), GB, S0, vmb=0, dma=self.loop_dma("K"), head=head)
        def ph2(jm, head_extra=None):
            self.kslot = (jm + 1) % 4
            head = {38: [WL]}
            head.update(head_extra or {})
            self.phase(self.pv_mfmas(S0), GA, S1, khalf=0, head=head)
        def ph3(jm):
            self.vslot = jm
            head = {0: [f"s_add_u32 m0, s{S_KM0W}, {VRING + ((jm+3)%4)*TILE}"], 36: [f"s_add_u32 s{S_VSOFF}, s{S_VSOFF}, {0 if self.o.get('loop_l2') else 16384}"], 38: [WL]}
            self.phase(self.qk_mfmas(S0), GB, S1, vmb=1, dma=self.loop_dma("V"), head=head)
        def ph4(jm, head_extra=None):
            self.kslot = (jm + 1) % 4
            head = {38: ["s_waitcnt vmcnt(16) lgkmcnt(0)" if not self.o.get("loop_novm") else "s_waitcnt lgkmcnt(0)"], 39: ["s_barrier"] if not self.o.get("loop_nobar") else []}
            for k, v in (head_extra or {}).items(): head[k] = v + head.get(k, [])
            self.phase(self.pv_mfmas(S1), GA, S0, khalf=1, head=head)
        A("s_waitcnt vmcnt(16) lgkmcnt(0)")
        A("s_barrier")
        self.stamp()
        A(".p2align 6")
        A("K1_LOOP:")
        start = len(A.lines)
        for jm in range(4):
            if jm == self.o.get("latewarm_jm", 1) and self.o.get("latewarm", True) and self.o.get("warmwo") is not None:
                A(f"s_cmp_eq_u32 s{S_LOOP}, 1")
                A("s_cbranch_scc1 K1_WARM")
                A("K1_WARMRET:")
            ph1(jm)
            if jm == 3:
                ph2(jm, {30: [f"s_cmp_eq_u32 s{S_LOOP}, 1"]})
                A("s_cbranch_scc1 K1_TAIL")
            else:
                ph2(jm)
            ph3(jm)
            if jm == 3:
                ph4(jm, {30: [f"s_sub_u32 s{S_LOOP}, s{S_LOOP}, 1"]})
            else:
                ph4(jm)
        A("s_branch K1_LOOP")
        self.loop_lines = A.lines[start:]
        if self.o.get("latewarm", True) and self.o.get("warmwo") is not None:
            A("K1_WARM:")
            self.warmwo()
            A("s_branch K1_WARMRET")
        A("K1_TAIL:")
        if self.o.get("fused") and self.o.get("xccfast", False):
            A(f"s_lshl_b32 s3, s{S_BR}, 3\ns_add_u32 s3, s3, s{S_B}\ns_lshl_b32 s3, s3, 4\ns_add_u32 s3, s3, s{S_H}\ns_lshr_b32 s3, s3, 3\ns_lshl_b32 s3, s3, 2\ns_add_u32 s3, s3, 16")
            A("v_mov_b32 v219, s3")
            A("global_load_dword v217, v219, s[100:101] sc1") if False else A("global_load_dword v220, v219, s[100:101] sc1")
        self.vslot = 3
        self.phase(None, GB, S1, vmb=1, dma=None)
        fused = self.o.get("fused")
        T = V_T
        for sw in ("v_permlane32_swap_b32", "v_permlane16_swap_b32"):
            for t in range(5): A(f"v_mov_b32 v{T+t}, v{V_L+t}")
            A("s_nop 1")
            for t in range(5): A(f"{sw} v{V_L+t}, v{T+t}")
            A("s_nop 1")
            for t in range(5): A(f"v_add_f32 v{V_L+t}, v{V_L+t}, v{T+t}")
        RC, LO, OWN = 24, 29, 176
        for t in range(5): A(f"v_rcp_f32 v{RC+t}, v{V_L+t}")
        A(f"v_lshlrev_b32 v{LO}, 4, v{V_LANE}")
        A("s_waitcnt vmcnt(0) lgkmcnt(0)")
        if fused:
            A("s_barrier")
            self.p2 = P2M.P2(A, self.o, self.QS, fused=True)
            A(f"v_readfirstlane_b32 s{P2M.S_NONCE}, v218")
            A("s_nop 3")
            A(f"s_cmp_lg_u32 s{P2M.S_NONCE}, 0")
            A("s_cbranch_scc1 K1_HAVENONCE")
            self.p2.get_nonce("f")
            A("K1_HAVENONCE:")
            if self.o.get("xccfast", False):
                A(f"v_readfirstlane_b32 s14, v220")
                A("s_nop 3")
                A(f"s_and_b32 s15, s{S_H}, 4\ns_lshl_b32 s15, s15, 2\ns_lshr_b32 s14, s14, s15\ns_and_b32 s14, s14, 0xffff")
                A("s_and_b32 s15, s14, 15\ns_mul_i32 s15, s15, 0x1111")
                A("s_cmp_eq_u32 s14, s15\ns_cselect_b32 s3, 1, 0")
                A("s_and_b32 s15, s14, 8\ns_lshr_b32 s15, s15, 3\ns_and_b32 s3, s3, s15")
                A(f"s_mov_b32 s{P2M.S_FAST}, s3")
            self.p2.setup()
            self.p2.prefetch_w()
        self.stamp()
        pol = ' sc1' if fused else self.o.get('nto', '')
        M = self.pv_mfmas(S1)
        def norm(t, s, n):
            b = 32 + (n % 3) * 8
            d = OWN + 16*t + 4*s
            L = []
            for half in range(2):
                a0 = A_O + ((2*s+half)*5 + t)*4
                for r in range(4): L.append(f"v_accvgpr_read_b32 v{b+4*half+r}, a{a0+r}")
            for r in range(8): L.append(f"v_mul_f32 v{b+r}, v{RC+t}, v{b+r}")
            for p in range(4): L.append(f"v_cvt_pk_bf16_f32 v{d+p}, v{b+2*p}, v{b+2*p+1}")
            st = [f"s_mov_b32 s14, {t*self.QS + s*1024}",
                  f"buffer_store_dwordx4 {vr(d,4)}, v{LO}, s[{S_O}:{S_O+3}], s14 offen{pol}"]
            return L, st
        stores = []
        work = []
        n = 0
        for s in range(4):
            for t in range(5):
                L, st = norm(t, s, n); n += 1
                work.append((s, L if fused else L + st))
                stores.append(st)
        wi = 0
        pend = []
        for m in range(40):
            A(M[m])
            while wi < len(work) and m >= 10*work[wi][0] + 9 + 4 and len(pend) < 8:
                pend += work[wi][1]; wi += 1
            for l in pend[:6]: A(l)
            pend = pend[6:]
        A("s_nop 7")
        for l in pend: A(l)
        while wi < len(work):
            for l in work[wi][1]: A(l)
            wi += 1
        if fused:
            if self.o.get("xccfast", False):
                A(f"s_cmp_lg_u32 s{P2M.S_FAST}, 0")
                A("s_cbranch_scc1 K1_OFAST")
                for st in stores:
                    for l in st: A(l)
                A("s_branch K1_ODONE")
                A("K1_OFAST:")
                for st in stores:
                    for l in st: A(l.replace(" sc1", ""))
                A("K1_ODONE:")
            else:
                A(f"s_mov_b32 s{P2M.S_FAST}, 0")
                for st in stores:
                    for l in st: A(l)

    def epilogue(self):
        pass

    def build(self):
        A = self.A
        A(".p2align 8\n.type k1_kernel,@function\nk1_kernel:")
        A("K1_START:")
        self.stamp()
        self.setup()
        self.qproj()
        self.stamp()
        self.qconvert()
        self.attention()
        self.stamp()
        self.epilogue()
        self.stamp()
        if self.o.get("fused"):
            p = self.p2
            self.in_p2 = True
            p.main(self.stamp)
            p.reduce(self.stamp)
            self.stamp()
        self.dump_stamps()
        A("K1_END:")
        A("s_endpgm")
        return A
```

```python
from asmlib import *

S_W, S_BR, S_B, S_H = 36, 37, 38, 39
S_OF, S_WO, S_PT, S_OUT, S_DBG = 16, 20, 24, 28, 32
S_I, S_J, S_RH, S_KH = 40, 41, 42, 43
S_IT = 44
S_OSO, S_WSO = 45, 46
S_M0 = 47
S_T0, S_T1, S_T2, S_T3 = 48, 49, 50, 51
S_CNT = 52
S_CNT2 = 53
V_LANE = 1
V_WD = 2
V_OB = 12
V_CA, V_CB = 13, 14
V_NA, V_NB = 15, 16
V_LA, V_LB = 17, 18
V_T = 19
V_B = 56
V_OWN = 176
A_ACC = 0
A_A = [180, 216]
CH = 10240
NW = 10
STG = 4 * CH
NST = 3
PART_OFF = 32 << 20
FLAG_OFF = 60 << 20
S_FLG = 92
S_NONCE = 99
S_FAST = 98

def mfma(d, a, b, c):
    return f"v_mfma_f32_16x16x32_bf16 {d}, {a}, {b}, {c}"

class P2:
    def __init__(self, A, opts, QS, fused):
        self.A, self.o, self.QS, self.fused = A, opts, QS, fused
        self.ostores = None

    PARK = 224
    def lane_consts(self, T):
        A = self.A
        L = V_LANE
        t0, t1, t2 = T, T+1, T+2
        for i in range(NW):
            A(f"v_add_u32 v{t0}, {64*i}, v{L}")
            A(f"v_mul_u32_u24 v{t1}, 52429, v{t0}\nv_lshrrev_b32 v{t1}, 20, v{t1}")
            A(f"v_mul_u32_u24 v{t2}, 20, v{t1}\nv_sub_u32 v{t2}, v{t0}, v{t2}")
            A(f"v_lshrrev_b32 v{t0}, 1, v{t1}\nv_and_b32 v{t0}, 2, v{t0}\nv_xor_b32 v{t2}, v{t2}, v{t0}")
            A(f"v_mul_u32_u24 v{t1}, 1152, v{t1}")
            A(f"v_lshl_add_u32 v{t1}, v{t2}, 4, v{t1}")
            A(f"v_add_u32 v{t1}, {8192 - 1024*(i % 4)}, v{t1}")
            A(f"v_accvgpr_write_b32 a{self.PARK+i}, v{t1}")
        A(f"v_lshrrev_b32 v{t0}, 2, v{L}\nv_mul_u32_u24 v{t0}, 320, v{t0}")
        A(f"v_and_b32 v{t1}, 3, v{L}\nv_lshl_add_u32 v{t0}, v{t1}, 3, v{t0}")
        A(f"s_lshr_b32 s3, s{S_W}, 1\ns_mul_i32 s3, s3, {2*CH}\ns_and_b32 s14, s{S_H}, 1\ns_lshl_b32 s15, s14, 5\ns_add_u32 s3, s3, s15")
        A(f"v_add_u32 v{t0}, s3, v{t0}")
        A(f"v_lshrrev_b32 v{t1}, 4, v{L}\nv_and_b32 v{t1}, 1, v{t1}\nv_lshlrev_b32 v{t1}, 5, v{t1}")
        A(f"v_add_u32 v{t2}, v{t0}, v{t1}\nv_sub_u32 v{t0}, v{t0}, v{t1}")
        A(f"s_cmp_eq_u32 s14, 0\ns_cselect_b64 vcc, -1, 0")
        A(f"v_cndmask_b32 v{t1}, v{t0}, v{t2}, vcc")
        A(f"v_accvgpr_write_b32 a{self.PARK+NW}, v{t1}")
        A(f"v_cndmask_b32 v{t1}, v{t2}, v{t0}, vcc")
        A(f"v_accvgpr_write_b32 a{self.PARK+NW+1}, v{t1}")

    def setup(self):
        A = self.A
        if not self.fused:
            A(f"s_mul_i32 s3, s{S_BR}, 40\ns_add_u32 s14, s0, s3\ns_addc_u32 s15, s1, 0")
            A("s_load_dwordx2 s[88:89], s[14:15], 32")
            A("s_load_dwordx2 s[58:59], s[0:1], 80")
            A("s_load_dwordx2 s[12:13], s[0:1], 96")
            A(f"v_and_b32 v{V_LANE}, 63, v0")
            self.lane_consts(V_T)
            A("s_waitcnt lgkmcnt(0)")
        A(f"s_and_b32 s{S_I}, s{S_H}, 3\ns_lshr_b32 s{S_J}, s{S_H}, 2")
        A(f"s_and_b32 s{S_RH}, s{S_W}, 1\ns_lshr_b32 s{S_KH}, s{S_W}, 1")
        for i in range(NW): A(f"v_accvgpr_read_b32 v{V_WD+i}, a{self.PARK+i}")
        A(f"v_accvgpr_read_b32 v{V_LA}, a{self.PARK+NW}\nv_accvgpr_read_b32 v{V_LB}, a{self.PARK+NW+1}")
        A(f"v_lshlrev_b32 v{V_OB}, 4, v{V_LANE}")
        A(f"s_lshl_b32 s3, s{S_BR}, 3\ns_add_u32 s3, s3, s{S_B}\ns_mul_i32 s14, s3, 10\ns_mul_i32 s15, s{S_RH}, 5\ns_add_u32 s14, s14, s15")
        A(f"s_mul_i32 s14, s14, {self.QS}")
        A(f"s_add_u32 s{S_OF}, s12, s14\ns_addc_u32 s{S_OF+1}, s13, 0\ns_mov_b32 s{S_OF+2}, {4*self.QS+131072}\ns_mov_b32 s{S_OF+3}, 0x20000")
        A(f"s_mul_i32 s14, s{S_I}, 288\ns_and_b32 s15, s{S_I}, 1\ns_lshl_b32 s15, s15, 5\ns_sub_u32 s14, s14, s15")
        A(f"s_add_u32 s{S_WO}, s88, s14\ns_addc_u32 s{S_WO+1}, s89, 0\ns_sub_u32 s{S_WO}, s{S_WO}, 8192\ns_subb_u32 s{S_WO+1}, s{S_WO+1}, 0")
        A(f"s_sub_u32 s{S_WO+2}, {4096*1152+8192}, s14\ns_mov_b32 s{S_WO+3}, 0x20000")
        A(f"s_lshl_b32 s14, s3, 2\ns_add_u32 s14, s14, s{S_I}\ns_mul_i32 s14, s14, {16*12*1024}\ns_add_u32 s14, s14, {PART_OFF}")
        A(f"s_add_u32 s{S_PT}, s12, s14\ns_addc_u32 s{S_PT+1}, s13, 0\ns_mov_b32 s{S_PT+2}, {16*12*1024}\ns_mov_b32 s{S_PT+3}, 0x20000")
        A(f"s_mul_i32 s14, s{S_B}, {160*2304}\ns_mul_i32 s15, s{S_BR}, 1152\ns_add_u32 s14, s14, s15\ns_mul_i32 s15, s{S_I}, 288\ns_add_u32 s14, s14, s15")
        A(f"s_add_u32 s{S_OUT}, s58, s14\ns_addc_u32 s{S_OUT+1}, s59, 0\ns_sub_u32 s{S_OUT+2}, {1280*2304}, s14\ns_mov_b32 s{S_OUT+3}, 0x20000")
        A(f"s_add_u32 s{S_FLG}, s12, {FLAG_OFF}\ns_addc_u32 s{S_FLG+1}, s13, 0\ns_mov_b32 s{S_FLG+2}, {2*256*128}\ns_mov_b32 s{S_FLG+3}, 0x20000")
        A(f"s_lshl_b32 s3, s3, 4")
        A(f"s_add_u32 s14, s3, s{S_H}\ns_lshl_b32 s{S_CNT}, s14, 7")
        A(f"s_lshl_b32 s{S_CNT2}, s3, 7")
        A(f"s_mov_b32 s{S_IT}, 0")
        A(f"s_mul_i32 s{S_M0}, s{S_W}, 0")
        A(f"s_lshl_b32 s{S_CNT+5}, s{S_J}, 5\ns_lshl_b32 s14, s{S_KH}, 2\ns_add_u32 s{S_CNT+5}, s{S_CNT+5}, s14")
        A(f"s_lshl_b32 s14, s{S_KH}, 1\ns_add_u32 s14, s14, s{S_RH}\ns_mul_i32 s{S_M0}, s14, {CH}")

    def offs(self):
        return [f"s_lshr_b32 s{S_T0}, s{S_IT}, 1", f"s_add_u32 s{S_T0}, s{S_T0}, s{S_I}",
                f"s_and_b32 s{S_T0}, s{S_T0}, 3", f"s_lshl_b32 s{S_T0}, s{S_T0}, 3",
                f"s_add_u32 s{S_T0}, s{S_T0}, s{S_CNT+5}", f"s_and_b32 s{S_T1}, s{S_IT}, 1",
                f"s_lshl_b32 s{S_T1}, s{S_T1}, 1", f"s_add_u32 s{S_T0}, s{S_T0}, s{S_T1}",
                f"s_lshl_b32 s{S_OSO}, s{S_T0}, 10", f"s_add_u32 s{S_T0}, s{S_T0}, s{S_RH}",
                f"s_mul_i32 s{S_WSO}, s{S_T0}, {32*1152}", f"s_add_u32 s{S_IT}, s{S_IT}, 1"]
    def wdma(self, stage):
        pol = self.o.get("p2w", "")
        G = []
        for grp, idx in enumerate(([0,1,2,3], [4,5,6,7], [8,9])):
            g = [f"s_add_u32 m0, s{S_M0}, {stage*STG + grp*4096}"]
            for n, i in enumerate(idx):
                g.append(f"buffer_load_dwordx4 v{V_WD+i}, s[{S_WO}:{S_WO+3}], s{S_WSO} offen offset:{n*1024}{pol} lds")
            G.append(g)
        return G
    def bloads(self, stage):
        pol = self.o.get("p2o", " sc1")
        L = []
        for st in range(2):
            for qi in range(5):
                L.append([f"s_add_u32 s{S_T2}, s{S_OSO}, {qi*self.QS + st*1024}",
                          f"buffer_load_dwordx4 {vr(V_B+40*stage+20*st+4*qi,4)}, v{V_OB}, s[{S_OF}:{S_OF+3}], s{S_T2} offen{pol}"])
        return L
    def a_reads(self, st, buf, nxt=False):
        R = []
        ra, rb = (V_NA, V_NB) if nxt else (V_CA, V_CB)
        for nt in range(9):
            for hh in range(2):
                R.append(f"ds_read_b64_tr_b16 {ar(A_A[buf]+4*nt+2*hh,2)}, v{ra if nt % 2 == 0 else rb} offset:{st*CH + hh*16*320 + nt*32}")
        return R

    def issue_w(self, stage):
        for g in self.wdma(stage):
            self.A(g[0]); self.A("s_nop 0")
            for l in g[1:]: self.A(l)
    def issue_b(self, stage):
        for g in self.bloads(stage):
            for l in g: self.A(l)

    def get_nonce(self, uid):
        A = self.A
        A(f"s_load_dwordx2 s[14:15], s[0:1], 88")
        A("s_waitcnt lgkmcnt(0)")
        A(f"v_mov_b32 v{V_T}, 0")
        A(f"s_mov_b32 s{S_T3}, 0x40000")
        A(f"P2_NON_{uid}:")
        A(f"global_load_dword v{V_T+1}, v{V_T}, s[14:15] sc1")
        A("s_waitcnt vmcnt(0)")
        A(f"v_readfirstlane_b32 s{S_NONCE}, v{V_T+1}")
        A("s_nop 3")
        A(f"s_cmp_lg_u32 s{S_NONCE}, 0")
        A(f"s_cbranch_scc1 P2_NOND_{uid}")
        A(f"s_sub_u32 s{S_T3}, s{S_T3}, 1\ns_cmp_eq_u32 s{S_T3}, 0")
        A(f"s_cbranch_scc1 P2_NOND_{uid}")
        A("s_sleep 1")
        A(f"s_branch P2_NON_{uid}")
        A(f"P2_NOND_{uid}:")
    def poll(self, kind, uid):
        A = self.A
        A(f"s_cmp_lg_u32 s{S_W}, 0")
        A(f"s_cbranch_scc1 P2_POLLED_{uid}")
        A(f"v_and_b32 v{V_T}, 3, v{V_LANE}")
        if kind == 0:
            A(f"s_lshl_b32 s{S_T0}, s{S_J}, 9\ns_add_u32 s{S_T0}, s{S_T0}, s{S_CNT2}")
            A(f"v_lshlrev_b32 v{V_T}, 7, v{V_T}")
        else:
            A(f"s_lshl_b32 s{S_T0}, s{S_I}, 7\ns_add_u32 s{S_T0}, s{S_T0}, s{S_CNT2}\ns_add_u32 s{S_T0}, s{S_T0}, {256*128}")
            A(f"v_lshlrev_b32 v{V_T}, 9, v{V_T}")
        A(f"s_mov_b32 s{S_T3}, 0x40000")
        A(f"P2_POLL_{uid}:")
        A(f"buffer_load_dword v{V_T+1}, v{V_T}, s[{S_FLG}:{S_FLG+3}], s{S_T0} offen sc1")
        A("s_waitcnt vmcnt(0)")
        A(f"v_cmp_ne_u32 vcc, s{S_NONCE}, v{V_T+1}")
        A("s_nop 4")
        A(f"s_cbranch_vccz P2_POLLED_{uid}")
        A(f"s_sub_u32 s{S_T3}, s{S_T3}, 1")
        A(f"s_cmp_eq_u32 s{S_T3}, 0")
        A(f"s_cbranch_scc1 P2_TMO_{uid}" if self.o.get("diag") else f"s_cbranch_scc1 P2_POLLED_{uid}")
        if not self.o.get("nosleep"): A("s_sleep 1")
        A(f"s_branch P2_POLL_{uid}")
        if self.o.get("diag"):
            A(f"P2_TMO_{uid}:")
            A(f"v_mov_b32 v{V_T}, {4*(1+kind)}\nv_mov_b32 v{V_T+1}, 1")
            A("s_mov_b64 s[14:15], exec\ns_mov_b64 exec, 1")
            A(f"global_atomic_add v{V_T}, v{V_T+1}, s[100:101] sc1")
            A("s_mov_b64 exec, s[14:15]")
        A(f"P2_POLLED_{uid}:")
        A("s_barrier")
    def signal(self, kind, uid, drain=True):
        A = self.A
        if drain:
            A("s_waitcnt vmcnt(0)")
            A("s_barrier")
        A(f"s_cmp_lg_u32 s{S_W}, 0")
        A(f"s_cbranch_scc1 P2_SIG_{uid}")
        A(f"s_add_u32 s{S_T0}, s{S_CNT}, {kind*256*128}")
        A(f"v_mov_b32 v{V_T}, 0\nv_mov_b32 v{V_T+1}, s{S_NONCE}")
        A("s_mov_b64 s[14:15], exec\ns_mov_b64 exec, 1")
        if kind == 0 and self.fused and self.o.get("xccfast", False):
            A(f"s_cmp_lg_u32 s{S_FAST}, 0")
            A(f"s_cbranch_scc1 P2_SIGF_{uid}")
            A(f"buffer_store_dword v{V_T+1}, v{V_T}, s[{S_FLG}:{S_FLG+3}], s{S_T0} offen sc1")
            A(f"s_branch P2_SIGE_{uid}")
            A(f"P2_SIGF_{uid}:")
            A(f"buffer_store_dword v{V_T+1}, v{V_T}, s[{S_FLG}:{S_FLG+3}], s{S_T0} offen")
            A(f"P2_SIGE_{uid}:")
        else:
            A(f"buffer_store_dword v{V_T+1}, v{V_T}, s[{S_FLG}:{S_FLG+3}], s{S_T0} offen sc1")
        A("s_mov_b64 exec, s[14:15]")
        A(f"P2_SIG_{uid}:")

    def prefetch_w(self):
        A = self.A
        self.vm = []
        for it in range(2):
            for l in self.offs(): A(l)
            A(f"s_mov_b32 s{54+it}, s{S_OSO}")
            self.issue_w(it); self.vm += [("w", it)] * NW

    def main(self, stamp=None):
        A = self.A
        NIT = 8
        fused = self.fused
        if not fused:
            self.prefetch_w()
        vm = self.vm
        def wait_n(tags):
            last = max(i for i, t in enumerate(vm) if t in tags)
            return len(vm) - 1 - last
        if fused and not self.ostores:
            vm += [("o",)] * 20
        else:
            for it in range(2):
                A(f"s_mov_b32 s{S_OSO}, s{54+it}")
                self.issue_b(it); vm += [("b", it)] * 10
        z = V_T + 1
        for i in range(4): A(f"v_mov_b32 v{z+i}, 0")
        A("s_nop 1")
        for i in range(11):
            A(f"v_mfma_f32_32x32x16_bf16 {ar(16*i,16)}, {vr(z,4)}, {vr(z,4)}, 0")
        for i in range(176, 180): A(f"v_accvgpr_write_b32 a{i}, 0")
        A(f"s_waitcnt vmcnt({wait_n({('w',0)})})")
        A("s_barrier")
        if stamp: stamp()
        A(f"v_mov_b32 v{V_CA}, v{V_LA}\nv_mov_b32 v{V_CB}, v{V_LB}")
        for r in self.a_reads(0, 0): A(r)
        for it in range(NIT):
            stg = it % NST
            nstg = (it + 1) % NST
            own = fused and it < 2
            for st in range(2):
                buf = st
                M = []
                for nt in range(9):
                    for qi in range(5):
                        d = ar(A_ACC + (nt*5+qi)*4, 4)
                        bsrc = vr(V_OWN + 16*qi + 4*(2*it + st), 4) if own else vr(V_B+40*stg+20*st+4*qi, 4)
                        M.append(mfma(d, ar(A_A[buf]+4*nt, 4), bsrc, d))
                fill = [[] for _ in range(45)]
                if st == 0:
                    if own:
                        A("s_waitcnt lgkmcnt(0)")
                    else:
                        A(f"s_waitcnt vmcnt({wait_n({('b',it)})}) lgkmcnt(0)")
                    R = self.a_reads(1, 1)
                    for n, r in enumerate(R): fill[1 + 2*n].append(r)
                    if own and it == 0 and self.ostores:
                        for n in range(10): fill[3 + 4*n] += self.ostores[n]
                        vm += [("o",)] * 10
                    if it + 2 < NIT and self.o.get("p2_now"):
                        vm += [("w", it + 2)] * 0 + [("w", it + 2)]
                        vm.pop(); vm.append(("w", it + 2))
                    if it + 2 < NIT and not self.o.get("p2_now"):
                        o = self.offs()
                        for n in range(6): fill[2*n] += o[2*n:2*n+2]
                        G = self.wdma((it + 2) % NST)
                        pos = [13, 16, 19, 22, 25, 28, 31, 34, 37, 40]
                        k = 0
                        for g in G:
                            fill[pos[k] - 1].append(g[0])
                            for l in g[1:]:
                                fill[pos[k]].append(l); k += 1
                        vm += [("w", it + 2)] * NW
                        fill[42].append(f"s_mov_b32 s{54 + (it & 1)}, s{S_OSO}")
                else:
                    if it + 1 < NIT:
                        if self.o.get("proffine") and stamp and it in (1, 2): stamp()
                        A(f"s_waitcnt vmcnt({wait_n({('w',it+1)})}) lgkmcnt(0)")
                        A("s_barrier")
                        if self.o.get("proffine") and stamp and it in (1, 2): stamp()
                        R = self.a_reads(0, 0, nxt=True)
                        A(f"v_add_u32 v{V_NA}, {nstg*STG}, v{V_LA}\nv_add_u32 v{V_NB}, {nstg*STG}, v{V_LB}")
                        for n, r in enumerate(R): fill[1 + 2*n].append(r)
                    else:
                        A("s_waitcnt lgkmcnt(0)")
                    if own and it == 0 and self.ostores:
                        for n in range(10): fill[3 + 4*n] += self.ostores[10 + n]
                        vm += [("o",)] * 10
                    if it + 2 < NIT and not (fused and it < 2):
                        B = self.bloads((it + 2) % NST)
                        if not self.o.get("p2_nob"):
                            for n, g in enumerate(B): fill[2 + 4*n] += g
                        vm += [("b", it + 2)] * 10
                for m in range(45):
                    A(M[m])
                    for l in fill[m]: A(l)
                if st == 1 and it + 1 < NIT:
                    A(f"v_mov_b32 v{V_CA}, v{V_NA}\nv_mov_b32 v{V_CB}, v{V_NB}")
            if self.o.get("profp2") and stamp and it >= 1 and it <= self.o.get("profit", 7): stamp()
            if fused and it == 0:
                A(f"s_waitcnt vmcnt({wait_n({('o',)})})")
                A("s_barrier")
                self.signal(0, "a", drain=False)
                if stamp: stamp()
                self.poll(0, "a")
                if stamp: stamp()
                A(f"s_mov_b32 s{S_OSO}, s54")
                self.issue_b(2 % NST); vm += [("b", 2)] * 10
                if self.o.get("proffine") and stamp: stamp()
            if fused and it == 1:
                A(f"s_mov_b32 s{S_OSO}, s55")
                self.issue_b(3 % NST); vm += [("b", 3)] * 10
        if stamp and not self.o.get("profp2"): stamp()

    def reduce(self, stamp=None):
        A = self.A
        T = V_T
        PK = V_B + 192 - 48
        A("s_barrier")
        A(f"s_mul_i32 s{S_T0}, s{S_RH}, {46*1024}")
        A(f"v_add_u32 v{T}, s{S_T0}, v{V_OB}")
        A("s_nop 4")
        def red(send, keep):
            for tl in send:
                A(f"ds_write_b128 v{T}, {ar(A_ACC+4*tl,4)} offset:{tl*1024}")
            for n, tl in enumerate(keep):
                for r in range(4): A(f"v_accvgpr_read_b32 v{V_B+4*n+r}, a{A_ACC+4*tl+r}")
            A("s_waitcnt lgkmcnt(0)")
            A("s_barrier")
            RB = V_B + 92
            for base in (0, 12):
                batch = list(enumerate(keep))[base:base+12]
                for m, (n, tl) in enumerate(batch):
                    A(f"ds_read_b128 {vr(RB+4*m,4)}, v{T} offset:{tl*1024}")
                A("s_waitcnt lgkmcnt(0)")
                for m, (n, tl) in enumerate(batch):
                    for r in range(0, 4, 2):
                        A(f"v_pk_add_f32 v[{V_B+4*n+r}:{V_B+4*n+r+1}], v[{V_B+4*n+r}:{V_B+4*n+r+1}], v[{RB+4*m+r}:{RB+4*m+r+1}]")
                    pr, hf = n // 2, n % 2
                    A(f"v_cvt_pk_bf16_f32 v{PK+4*pr+2*hf}, v{V_B+4*n}, v{V_B+4*n+1}")
                    A(f"v_cvt_pk_bf16_f32 v{PK+4*pr+2*hf+1}, v{V_B+4*n+2}, v{V_B+4*n+3}")
                for pr in range(base // 2, base // 2 + 6):
                    A(f"s_add_u32 s{S_T1}, s{S_T0}, {pr*1024}")
                    A(f"buffer_store_dwordx4 {vr(PK+4*pr,4)}, v{V_OB}, s[{S_PT}:{S_PT+3}], s{S_T1} offen sc1")
        A(f"s_lshl_b32 s{S_T0}, s{S_J}, 2\ns_add_u32 s{S_T0}, s{S_T0}, s{S_W}\ns_mul_i32 s{S_T0}, s{S_T0}, {12*1024}")
        A(f"s_cmp_eq_u32 s{S_KH}, 0")
        A("s_cbranch_scc0 P2_RED1")
        red(list(range(23, 45)), list(range(0, 23)))
        A("s_branch P2_RED2")
        A("P2_RED1:")
        red(list(range(0, 23)), list(range(23, 45)))
        A("P2_RED2:")
        self.signal(1, "b")
        if stamp: stamp()
        self.poll(1, "b")
        if stamp and not self.o.get("profp2"): stamp()
        A(f"v_and_b32 v{T+2}, 15, v{V_LANE}\nv_mul_u32_u24 v{T+2}, 2304, v{T+2}")
        A(f"v_lshrrev_b32 v{T+3}, 4, v{V_LANE}\nv_lshl_add_u32 v{T+2}, v{T+3}, 3, v{T+2}")
        for m in range(3):
            A(f"s_add_u32 s{S_T0}, s{S_J}, {4*m}\ns_mul_i32 s{S_T1}, s{S_W}, 12\ns_add_u32 s{S_T0}, s{S_T0}, s{S_T1}\ns_lshl_b32 s{S_T0}, s{S_T0}, 10")
            for src in range(4):
                A(f"s_add_u32 s{S_T1}, s{S_T0}, {src*4*12*1024}")
                A(f"buffer_load_dwordx4 {vr(V_B+16*m+4*src,4)}, v{V_OB}, s[{S_PT}:{S_PT+3}], s{S_T1} offen sc1")
        F = V_B + 64
        nst = 0
        for m in range(3):
            b = V_B + 16*m
            A(f"s_waitcnt vmcnt({(2-m)*4 + nst})")
            for hf in range(2):
                f = F + 8*hf
                for src in range(4):
                    for d in range(2):
                        x = b + 4*src + 2*hf + d
                        if src == 0:
                            A(f"v_lshlrev_b32 v{f+2*d}, 16, v{x}\nv_and_b32 v{f+2*d+1}, 0xffff0000, v{x}")
                        else:
                            A(f"v_lshlrev_b32 v{f+4}, 16, v{x}\nv_and_b32 v{f+5}, 0xffff0000, v{x}")
                            A(f"v_add_f32 v{f+2*d}, v{f+2*d}, v{f+4}\nv_add_f32 v{f+2*d+1}, v{f+2*d+1}, v{f+5}")
                A(f"v_cvt_pk_bf16_f32 v{f+6}, v{f}, v{f+1}\nv_cvt_pk_bf16_f32 v{f+7}, v{f+2}, v{f+3}")
                A(f"s_add_u32 s{S_T0}, s{S_J}, {4*m}\ns_lshl_b32 s{S_T0}, s{S_T0}, 1\ns_add_u32 s{S_T0}, s{S_T0}, {hf}")
                A(f"s_mul_i32 s{S_T1}, s{S_KH}, 23\ns_add_u32 s{S_T1}, s{S_T1}, s{S_T0}")
                A(f"s_mul_i32 s{S_T2}, s{S_T1}, 52\ns_lshr_b32 s{S_T2}, s{S_T2}, 8")
                A(f"s_mul_i32 s{S_T3}, s{S_T2}, 5\ns_sub_u32 s{S_T3}, s{S_T1}, s{S_T3}")
                A(f"s_lshl_b32 s{S_T3}, s{S_T3}, 4\ns_mul_i32 s56, s{S_RH}, 80\ns_add_u32 s{S_T3}, s{S_T3}, s56\ns_mul_i32 s{S_T3}, s{S_T3}, 2304")
                A(f"s_lshl_b32 s{S_T2}, s{S_T2}, 5\ns_add_u32 s{S_T3}, s{S_T3}, s{S_T2}")
                A(f"s_sub_u32 s56, 23, s{S_KH}\ns_cmp_ge_u32 s{S_T0}, s56\ns_cselect_b32 s{S_T3}, {1<<30}, s{S_T3}")
                A(f"buffer_store_dwordx2 {vr(f+6,2)}, v{T+2}, s[{S_OUT}:{S_OUT+3}], s{S_T3} offen{self.o.get('outpol', '')}")
                nst += 1


class K2B:
    def __init__(self, opts=None):
        self.o = opts or {}
        self.A = Asm()
        self.QS = 131072 + self.o.get("qpad", 0)
        self.LDS = NST * STG
        self.nst = 0
    def stamp(self):
        if not self.o.get("prof"): return
        i = self.nst = self.nst + 1
        b = 64 + (i-1)*4
        self.A(f"s_memtime s[{b}:{b+1}]")
        self.A(f"s_memrealtime s[{b+2}:{b+3}]")
    def dump_stamps(self):
        if not self.o.get("prof"): return
        A = self.A
        A("s_waitcnt lgkmcnt(0) vmcnt(0)")
        A("s_load_dwordx2 s[4:5], s[0:1], 96")
        A("s_waitcnt lgkmcnt(0)")
        A(f"s_add_u32 s4, s4, {(129<<20)}\ns_addc_u32 s5, s5, 0\ns_mov_b32 s6, 0x100000\ns_mov_b32 s7, 0x20000")
        A(f"s_lshl_b32 s3, s2, 2\ns_add_u32 s3, s3, s{S_W}\ns_lshl_b32 s3, s3, 7")
        A("s_mov_b64 exec, 1")
        for i in range(self.nst):
            b = 64 + i*4
            A(f"v_mov_b32 v2, s{b}\nv_mov_b32 v3, s{b+2}\nv_mov_b32 v4, s3")
            A(f"buffer_store_dwordx2 v[2:3], v4, s[4:7], 0 offen offset:{i*8}")
            A("s_nop 1")
    def build(self):
        A = self.A
        A(".p2align 8\n.type k2_kernel,@function\nk2_kernel:")
        A("s_cmp_ge_u32 s2, 256")
        A("s_cbranch_scc1 K2_END")
        self.stamp()
        A("s_and_b32 s3, s2, 7\ns_lshr_b32 s14, s2, 3")
        A(f"s_lshr_b32 s{S_BR}, s3, 2\ns_and_b32 s3, s3, 3\ns_lshl_b32 s3, s3, 2")
        A(f"s_and_b32 s{S_H}, s14, 3\ns_add_u32 s{S_H}, s{S_H}, s3\ns_lshr_b32 s{S_B}, s14, 2")
        A(f"v_lshrrev_b32 v{V_T}, 6, v0\ns_nop 0\nv_readfirstlane_b32 s{S_W}, v{V_T}\ns_nop 3")
        p = P2(A, self.o, self.QS, fused=False)
        p.get_nonce("k")
        p.setup()
        p.main(self.stamp)
        p.reduce(self.stamp)
        self.stamp()
        self.dump_stamps()
        A("K2_END:")
        A("s_endpgm")
        self.loop_lines = []
        return A
```

```python
def window_schedule(NT=5, nK=8, nV=16, dma_gaps=(41,), exp_end=75, ds_end_a=32, ds_end_b=72, verbose=False, extra_first=6):
    exps = [(t, i) for i0 in (0, 4) for t in range(NT) for i in range(i0, i0 + 4)]
    exp_gap = {}
    add_gap = {}
    cvt_gap = {}
    gaps = [[] for _ in range(80)]
    ne = 0
    adds_pending = []
    cvt_done = set()
    kdone = vdone = 0
    def cvt_ready(g):
        out = []
        for t in range(NT):
            for p in range(4):
                if (t, p) in cvt_gap: continue
                if p > 0 and (t, p - 1) not in cvt_gap: break
                a, b = (t, 2 * p), (t, 2 * p + 1)
                if a in exp_gap and b in exp_gap and exp_gap[a] < g and exp_gap[b] < g:
                    if (t, p) in add_gap:
                        out.append((t, p))
                break
        return out
    for g in range(80):
        if g in dma_gaps:
            gaps[g].append(('DMA', list(dma_gaps).index(g), len(dma_gaps)))
            continue
        phaseA = g < 40
        if phaseA:
            ds_left = nK - kdone
            ds_target = min(nK, int((g + 1) * nK / ds_end_a + 0.999))
            ds_due = kdone < ds_target
        else:
            ds_left = nV - vdone
            ds_target = min(nV, int((g - 39) * nV / (ds_end_b - 39) + 0.999))
            ds_due = vdone < ds_target
        exp_target = min(len(exps), int((g + 1) * len(exps) / exp_end + 0.999))
        exp_avail = ne < len(exps) and (exps[ne][1] < 4 or g >= extra_first)
        ready4 = [('cvt',) + c for c in cvt_ready(g)] + [('add',) + a for a in adds_pending if exp_gap[a] < g]
        nslots_fill = len(ready4) + (1 if ds_due else 0)
        do_exp = exp_avail and (ne < exp_target or nslots_fill < 2)
        if do_exp:
            if ds_due and ((phaseA and kdone + 1 < ds_target) or ((not phaseA) and vdone + 1 < ds_target)):
                if phaseA: gaps[g].append(('K', kdone)); kdone += 1
                else: gaps[g].append(('V', vdone)); vdone += 1
            e = exps[ne]; ne += 1
            exp_gap[e] = g
            adds_pending.append(e)
            gaps[g].append(('exp',) + e)
        else:
            slots = 2
            if ds_due:
                if phaseA: gaps[g].append(('K', kdone)); kdone += 1
                else: gaps[g].append(('V', vdone)); vdone += 1
                slots -= 1
            while slots > 0:
                ready4 = [('cvt',) + c for c in cvt_ready(g)] + [('add',) + a for a in adds_pending if exp_gap[a] < g]
                if not ready4: break
                it = ready4[0]
                gaps[g].append(it)
                if it[0] == 'cvt': cvt_gap[(it[1], it[2])] = g
                else:
                    add_gap[(it[1], it[2])] = g; adds_pending.remove((it[1], it[2]))
                slots -= 1
    g = 79
    left = True
    tail_g = 76
    while True:
        ready4 = [('cvt',) + c for c in cvt_ready(80)] + [('add',) + a for a in adds_pending]
        if not ready4: break
        it = ready4[0]
        gaps[78].append(it)
        if it[0] == 'cvt': cvt_gap[(it[1], it[2])] = 78
        else:
            add_gap[(it[1], it[2])] = 78; adds_pending.remove((it[1], it[2]))
    assert ne == len(exps) and kdone == nK and vdone == nV, (ne, kdone, vdone)
    assert len(cvt_gap) == NT * 4 and len(add_gap) == NT * 8
    if verbose:
        tot = 0
        for g in range(80):
            c = gap_cost(gaps[g]); tot += c
            print(g, c, gaps[g])
        print("total", tot)
    return gaps

def gap_cost(items):
    t = 4
    vfree = 8
    cur = 4
    for it in items:
        k = it[0]
        if k in ('K', 'V'):
            vfree = max(vfree, cur + 8); mf = cur + 12; cur += 4
        elif k == 'DMA':
            return 16 + (18 if it[2] == 1 else (10 if it[2] == 2 else 5))
        else:
            st = max(cur, vfree)
            d = 8 if k == 'exp' else 4
            vfree = st + d; cur = st + 4
    end = max(16, vfree)
    ds = [i for i, it in enumerate(items) if it[0] in ('K', 'V')]
    if ds:
        end = max(end, 4 + 4 * ds[-1] + 12)
    return end

def best_schedule(dma_gaps):
    best = None
    for exp_end in range(60, 79):
        for ds_end_a in (24, 28, 32, 36):
            for ds_end_b in (64, 68, 72, 74):
                try:
                    gs = window_schedule(exp_end=exp_end, ds_end_a=ds_end_a, ds_end_b=ds_end_b, dma_gaps=dma_gaps)
                except AssertionError:
                    continue
                tot = sum(gap_cost(x) for x in gs)
                lastcvt = max(g for g in range(80) for it in gs[g] if it[0] == 'cvt')
                if lastcvt > 77: continue
                if best is None or tot < best[0]:
                    best = (tot, gs, exp_end, ds_end_a, ds_end_b)
    return best

if __name__ == "__main__":
    for dg in ((41,), (41, 61), (41, 51, 61, 71), (3, 23, 43, 63), (9, 29, 49, 69)):
        b = best_schedule(dg)
        print(dg, b[0], b[2:])
    import itertools
    best = None
    for exp_end in range(66, 79):
        for ds_end_a in (24, 28, 32, 36):
            for ds_end_b in (64, 68, 72, 74):
                try:
                    gs = window_schedule(exp_end=exp_end, ds_end_a=ds_end_a, ds_end_b=ds_end_b)
                except AssertionError:
                    continue
                tot = sum(gap_cost(x) for x in gs)
                if best is None or tot < best[0]:
                    best = (tot, exp_end, ds_end_a, ds_end_b)
    print(best)
    window_schedule(exp_end=best[1], ds_end_a=best[2], ds_end_b=best[3], verbose=True)
```

```python
from asmlib import *
from sched import window_schedule, best_schedule
import p2 as P2M

BLK = 1056
TILE = 16 * BLK
KRING = 0
VRING = 4 * TILE
SPARE = 8 * TILE
LDS_TOTAL = 163840
STAGE = [SPARE, VRING + 2 * TILE, KRING + 2 * TILE]
XOFF = 0
WOFF = 10240
WBLK = 1088
BIAS = 2400

V_TID, V_LANE = 0, 1
V_XDMA, V_WDMA = 2, 3
V_KDMA = 6
V_VDMA = 10
V_KLANE, V_VLANE = 14, 15
V_Q = 16
V_S = [96, 136]
V_CI = 176
V_L = 196
V_T = 201
V_KAD, V_VAD = 216, 217
V_QACC = 96
V_XF = [16, 36]
V_XRD = 56
V_WRD = 59
A_O = 0
A_KF = 160
A_VF = 192
A_WF = [160, 192]

S_X, S_WQ, S_K, S_V, S_O = 16, 20, 24, 28, 32
S_W, S_BR, S_B, S_H = 36, 37, 38, 39
S_XSO, S_XM0, S_WSO, S_WM0 = 40, 41, 42, 43
S_T0, S_T1, S_T2 = 44, 45, 46
S_KM0W = 47
S_KSLOT, S_VSLOT = 48, 49
S_KDSLOT, S_VDSLOT = 50, 51
S_KSOFF, S_VSOFF = 52, 53
S_LOOP = 54
S_SCALE = 55
S_FLAG = 56

def mfma(d, a, b, c):
    return f"v_mfma_f32_16x16x32_bf16 {d}, {a}, {b}, {c}"

class K1:
    def __init__(self, opts=None):
        self.o = opts or {}
        self.A = Asm()
        self.QS = 131072 + self.o.get("qpad", 0)
        self.vm = []
    def stamp(self, force=False):
        if not self.o.get("prof"): return
        if self.o.get("profp2") and not force and not getattr(self, "in_p2", False) and getattr(self, "nst", 0) >= 1: return
        i = self.nst = getattr(self, "nst", 0) + 1
        b = 60 + (i-1)*2
        assert b + 1 <= 87
        self.A(f"{'s_memtime' if self.o.get('profcyc') else 's_memrealtime'} s[{b}:{b+1}]")
    def dump_stamps(self, wgs="s2"):
        if not self.o.get("prof"): return
        A = self.A
        if self.o.get("profdbg") is not None:
            A("s_waitcnt lgkmcnt(0) vmcnt(0)")
            A(f"s_or_b32 s3, s{S_W}, 0\ns_cmp_lg_u32 s3, 0\ns_cbranch_scc1 K1_NODBG")
            A(f"s_cmp_lg_u32 s2, {self.o.get('profdbg')}\ns_cbranch_scc1 K1_NODBG")
            A("s_mov_b64 exec, 1")
            for i in range(1, self.nst):
                A(f"s_sub_u32 s3, s{60+2*i}, s60")
                A(f"v_mov_b32 v2, s3\nv_mov_b32 v4, {4*i}")
                A("global_store_dword v4, v2, s[100:101]")
                A("s_nop 1")
            A("K1_NODBG:")
            return
        A("s_waitcnt lgkmcnt(0) vmcnt(0)")
        A("s_load_dwordx2 s[4:5], s[0:1], 96")
        A("s_waitcnt lgkmcnt(0)")
        A(f"s_add_u32 s4, s4, {self.o.get('profoff', 128<<20)}\ns_addc_u32 s5, s5, 0\ns_mov_b32 s6, 0x100000\ns_mov_b32 s7, 0x20000")
        A(f"s_lshl_b32 s3, s2, 2\ns_add_u32 s3, s3, s{S_W}\ns_lshl_b32 s3, s3, 7")
        A("s_mov_b64 exec, 1")
        for i in range(self.nst):
            b = 60 + i*2
            A(f"v_mov_b32 v2, s{b}\nv_mov_b32 v3, s{b}\nv_mov_b32 v4, s3")
            A(f"buffer_store_dwordx2 v[2:3], v4, s[4:7], 0 offen offset:{i*8}")
            A("s_nop 1")
    def vm_issue(self, tag, n=1):
        self.vm += [tag] * n
    def vm_wait_n(self, tags):
        last = max(i for i, t in enumerate(self.vm) if t in tags)
        return min(63, len(self.vm) - 1 - last)

    def setup(self):
        A = self.A
        A("s_cmp_ge_u32 s2, 256")
        A("s_cbranch_scc1 K1_END")
        if self.o.get("badmap"):
            A("s_lshr_b32 s3, s2, 5")
            A("s_and_b32 s14, s2, 31")
        else:
            A("s_and_b32 s3, s2, 7")
            A("s_lshr_b32 s14, s2, 3")
        A(f"s_lshr_b32 s{S_BR}, s3, 2")
        A("s_and_b32 s3, s3, 3")
        A("s_lshl_b32 s3, s3, 2")
        A(f"s_and_b32 s{S_H}, s14, 3")
        A(f"s_add_u32 s{S_H}, s{S_H}, s3")
        A(f"s_lshr_b32 s{S_B}, s14, 2")
        A(f"s_mul_i32 s3, s{S_BR}, 40")
        A("s_add_u32 s14, s0, s3")
        A("s_addc_u32 s15, s1, 0")
        A("s_load_dwordx8 s[4:11], s[14:15], 0")
        A("s_load_dwordx2 s[12:13], s[0:1], 96")
        A("s_load_dwordx2 s[88:89], s[14:15], 32")
        A("s_load_dwordx2 s[100:101], s[0:1], 88")
        A("s_load_dwordx2 s[58:59], s[0:1], 80")
        A(f"v_and_b32 v{V_LANE}, 63, v0")
        A(f"v_lshrrev_b32 v{V_T}, 6, v0")
        A("s_nop 0")
        A(f"v_readfirstlane_b32 s{S_W}, v{V_T}")
        L = V_LANE
        t0, t1, t2 = V_T, V_T + 1, V_T + 2
        A(f"v_lshrrev_b32 v{t0}, 2, v{L}")
        A(f"v_mul_u32_u24 v{t0}, 1152, v{t0}")
        A(f"v_lshrrev_b32 v{t1}, 4, v{L}")
        A(f"v_sub_u32 v{t1}, 0, v{t1}")
        A(f"v_and_b32 v{t1}, 3, v{t1}")
        A(f"v_and_b32 v{t2}, 3, v{L}")
        A(f"v_xor_b32 v{t1}, v{t1}, v{t2}")
        A(f"v_lshl_add_u32 v{V_XDMA}, v{t1}, 4, v{t0}")
        A(f"v_lshrrev_b32 v{t0}, 5, v{L}")
        A(f"v_lshlrev_b32 v{t0}, 16, v{t0}")
        A(f"v_and_b32 v{t1}, 31, v{L}")
        A(f"v_lshl_add_u32 v{V_WDMA}, v{t1}, 4, v{t0}")
        A("s_waitcnt lgkmcnt(0)")
        if self.o.get("fused") or self.o.get("k2b"):
            A(f"s_or_b32 s14, s2, s{S_W}")
            A("s_cmp_lg_u32 s14, 0")
            A("s_cbranch_scc1 K1_NONON")
            A("s_memrealtime s[44:45]")
            A("s_waitcnt lgkmcnt(0)")
            A("s_or_b32 s44, s44, 1")
            A(f"v_mov_b32 v{V_T}, 0\nv_mov_b32 v{V_T+1}, s44")
            A(f"global_store_dword v{V_T}, v{V_T+1}, s[100:101] sc1")
            A("K1_NONON:")
        if self.o.get("fused") and self.o.get("xccfast", False):
            A(f"s_cmp_lg_u32 s{S_W}, 0")
            A("s_cbranch_scc1 K1_NOXCC")
            A("s_getreg_b32 s44, hwreg(HW_REG_XCC_ID, 0, 3)")
            A(f"s_lshl_b32 s45, s{S_BR}, 3\ns_add_u32 s45, s45, s{S_B}\ns_lshl_b32 s45, s45, 4\ns_add_u32 s45, s45, s{S_H}")
            A("s_or_b32 s44, s44, 8")
            A("s_and_b32 s46, s45, 7\ns_lshl_b32 s46, s46, 2\ns_lshl_b32 s44, s44, s46")
            A("s_lshr_b32 s45, s45, 3\ns_lshl_b32 s45, s45, 2\ns_add_u32 s45, s45, 16")
            A(f"v_mov_b32 v{V_T}, s45\nv_mov_b32 v{V_T+1}, s44")
            A("s_mov_b64 s[44:45], exec\ns_mov_b64 exec, 1")
            A(f"global_atomic_or v{V_T}, v{V_T+1}, s[100:101] sc1")
            A("s_mov_b64 exec, s[44:45]")
            A("K1_NOXCC:")
        w, b, h, br = S_W, S_B, S_H, S_BR
        A(f"s_mul_i32 s3, s{b}, 184320")
        A(f"s_add_u32 s{S_X}, s4, s3\ns_addc_u32 s{S_X+1}, s5, 0\ns_mov_b32 s{S_X+2}, 184320\ns_mov_b32 s{S_X+3}, 0x20000")
        A(f"s_lshl_b32 s3, s{h}, 9")
        A(f"s_add_u32 s{S_WQ}, s10, s3\ns_addc_u32 s{S_WQ+1}, s11, 0")
        A(f"s_sub_u32 s{S_WQ+2}, {576*8192}, s3\ns_mov_b32 s{S_WQ+3}, 0x20000")
        A(f"s_lshl_b32 s3, s{b}, 4\ns_add_u32 s3, s3, s{h}")
        A("s_lshr_b32 s14, s3, 14\ns_lshl_b32 s3, s3, 18")
        for (srd, lo) in ((S_K, 6), (S_V, 8)):
            A(f"s_add_u32 s{srd}, s{lo}, s3\ns_addc_u32 s{srd+1}, s{lo+1}, s14")
            A(f"s_sub_u32 s{srd}, s{srd}, {BIAS}\ns_subb_u32 s{srd+1}, s{srd+1}, 0")
            A(f"s_mov_b32 s{srd+2}, {262144+BIAS}\ns_mov_b32 s{srd+3}, 0x20000")
        A(f"s_lshl_b32 s3, s{br}, 3\ns_add_u32 s3, s3, s{b}")
        A(f"s_mul_i32 s3, s3, {10*self.QS}")
        A(f"s_lshl_b32 s14, s{h}, 1\ns_lshr_b32 s15, s{w}, 1\ns_add_u32 s14, s14, s15")
        A("s_lshl_b32 s14, s14, 12")
        A("s_add_u32 s3, s3, s14")
        A(f"s_and_b32 s15, s{w}, 1\ns_mul_i32 s15, s15, {5*self.QS}")
        A("s_add_u32 s3, s3, s15")
        A(f"s_add_u32 s{S_O}, s12, s3\ns_addc_u32 s{S_O+1}, s13, 0")
        A(f"s_mov_b32 s{S_O+2}, {4*self.QS+4096}\ns_mov_b32 s{S_O+3}, 0x20000")
        A(f"s_mul_i32 s3, s{w}, 3\ns_lshl_b32 s14, s{w}, 1\ns_add_u32 s14, s14, 1")
        A(f"s_cmp_lt_u32 s{w}, 2\ns_cselect_b32 s3, s3, s14")
        A(f"s_mul_i32 s{S_XSO}, s3, 18432\ns_lshl_b32 s{S_XM0}, s3, 10")
        A(f"s_and_b32 s3, s{w}, 1\ns_lshl_b32 s3, s3, 2\ns_lshr_b32 s14, s{w}, 1\ns_lshl_b32 s14, s14, 4\ns_add_u32 s3, s3, s14")
        A(f"s_lshl_b32 s{S_WSO}, s3, 13")
        A(f"s_mul_i32 s{S_WM0}, s{w}, {4*WBLK}\ns_add_u32 s{S_WM0}, s{S_WM0}, {WOFF}")
        A(f"s_mul_i32 s{S_KM0W}, s{w}, {4*BLK}")

    def dma_chunk(self, cc, inter=None):
        st = STAGE[cc % 3]
        G = []
        for i in range(3):
            g = [f"s_add_u32 s{S_T0}, s{S_XSO}, {i*18432 + cc*64}",
                 f"s_add_u32 m0, s{S_XM0}, {st + XOFF + i*1024}",
                 "s_nop 0",
                 f"buffer_load_dwordx4 v{V_XDMA}, s[{S_X}:{S_X+3}], s{S_T0} offen{self.o.get('ntq','')} lds"]
            G.append(("x", i, g))
        for i in range(4):
            g = [f"s_add_u32 s{S_T1}, s{S_WSO}, {(32*cc + i)*8192}",
                 f"s_add_u32 m0, s{S_WM0}, {st + i*WBLK}",
                 "s_nop 0",
                 f"buffer_load_dwordx4 v{V_WDMA}, s[{S_WQ}:{S_WQ+3}], s{S_T1} offen{self.o.get('ntq','')} lds"]
            G.append(("w", i, g))
        return G

    def emit_chunk_dma_group(self, kind, i, g, cc, uid):
        A = self.A
        if kind == "x" and i == 2:
            A(f"s_cmp_ge_u32 s{S_W}, 2")
            A(f"s_cbranch_scc1 K1_SKX_{uid}")
            for l in g: A(l)
            A(f"K1_SKX_{uid}:")
        else:
            for l in g: A(l)
            self.vm_issue(("c", cc))

    def kv_dma(self, kind, tile_imm=None, slot_imm=None):
        nt = " nt" if self.o.get("nt", True) else ""
        srd = S_K if kind == "K" else S_V
        vd = V_KDMA if kind == "K" else V_VDMA
        ring = KRING if kind == "K" else VRING
        L = []
        L.append(f"s_add_u32 m0, s{S_KM0W}, {ring + slot_imm*TILE}")
        L.append(f"s_mov_b32 s{S_T2}, {tile_imm*16384}")
        for i in range(4):
            L.append(f"buffer_load_dwordx4 v{vd+i}, s[{srd}:{srd+3}], s{S_T2} offen offset:{i*BLK}{nt} lds")
        return L

    def setup2(self):
        A = self.A
        L = V_LANE
        t0, t1, t2, t3 = V_T, V_T + 1, V_T + 2, V_T + 3
        w = S_W
        A(f"v_and_b32 v{t0}, 15, v{L}")
        A(f"v_lshrrev_b32 v{t1}, 2, v{t0}")
        A(f"v_sub_u32 v{t1}, 0, v{t1}")
        A(f"v_and_b32 v{t1}, 3, v{t1}")
        A(f"v_lshrrev_b32 v{t2}, 4, v{L}")
        A(f"v_xor_b32 v{t1}, v{t1}, v{t2}")
        A(f"v_lshlrev_b32 v{t1}, 4, v{t1}")
        A(f"v_lshl_add_u32 v{t1}, v{t0}, 6, v{t1}")
        A(f"s_and_b32 s3, s{w}, 1\ns_mul_i32 s3, s3, 5120")
        A(f"v_add_u32 v{t1}, s3, v{t1}")
        for st in range(3): A(f"v_add_u32 v{V_XRD+st}, {STAGE[st]+XOFF}, v{t1}")
        A(f"v_lshrrev_b32 v{t0}, 2, v{L}\nv_and_b32 v{t0}, 3, v{t0}")
        A(f"v_lshrrev_b32 v{t1}, 5, v{L}")
        A(f"v_lshl_add_u32 v{t0}, v{t1}, 3, v{t0}")
        A(f"v_mul_u32_u24 v{t0}, {WBLK}, v{t0}")
        A(f"v_lshrrev_b32 v{t1}, 4, v{L}\nv_and_b32 v{t1}, 1, v{t1}")
        A(f"v_lshl_add_u32 v{t0}, v{t1}, 9, v{t0}")
        A(f"v_and_b32 v{t1}, 3, v{L}")
        A(f"v_lshl_add_u32 v{t0}, v{t1}, 4, v{t0}")
        A(f"s_lshr_b32 s3, s{w}, 1\ns_lshl_b32 s3, s3, 8")
        A(f"v_add_u32 v{t0}, s3, v{t0}")
        for st in range(3): A(f"v_add_u32 v{V_WRD+st}, {STAGE[st]+WOFF}, v{t0}")

    def setup_kv(self):
        A = self.A
        L = V_LANE
        t0, t1, t2, t3 = V_T, V_T + 1, V_T + 2, V_T + 3
        w = S_W
        A(f"v_lshrrev_b32 v{t0}, 4, v{L}\nv_and_b32 v{t1}, 15, v{L}\nv_lshlrev_b32 v{t1}, 4, v{t1}")
        A(f"v_lshl_add_u32 v{t2}, v{t0}, 12, v{t1}")
        A(f"s_lshl_b32 s3, s{w}, 10")
        A(f"v_add_u32 v{t2}, s3, v{t2}")
        for i in range(4):
            A(f"v_add_u32 v{V_KDMA+i}, {BIAS - 800*i}, v{t2}")
        A(f"v_lshl_add_u32 v{t2}, v{t0}, 11, v{t1}")
        A(f"s_lshr_b32 s3, s{w}, 1\ns_lshl_b32 s3, s3, 13\ns_and_b32 s14, s{w}, 1\ns_lshl_b32 s14, s14, 10\ns_add_u32 s3, s3, s14")
        A(f"v_add_u32 v{t2}, s3, v{t2}")
        for i in range(4):
            A(f"v_add_u32 v{V_VDMA+i}, {BIAS - 800*i}, v{t2}")
        A(f"v_and_b32 v{t1}, 15, v{L}\nv_mul_u32_u24 v{t1}, {BLK}, v{t1}")
        A(f"v_lshl_add_u32 v{V_KLANE}, v{t0}, 4, v{t1}")
        A(f"v_lshrrev_b32 v{t1}, 2, v{L}\nv_and_b32 v{t1}, 7, v{t1}")
        A(f"v_mul_u32_u24 v{t1}, {BLK}, v{t1}")
        A(f"v_lshrrev_b32 v{t2}, 5, v{L}")
        A(f"v_lshl_add_u32 v{t1}, v{t2}, 8, v{t1}")
        A(f"v_and_b32 v{t2}, 3, v{L}")
        A(f"v_lshl_add_u32 v{V_VLANE}, v{t2}, 3, v{t1}")

    def warm(self):
        mode = self.o.get("warm", None)
        if mode is None: return
        A = self.A
        gran = self.o.get("wgran", 128)
        pol = mode
        A(f"s_mov_b32 s84, s4\ns_mov_b32 s85, s5\ns_mov_b32 s86, {8*184320}\ns_mov_b32 s87, 0x20000")
        A(f"s_and_b32 s3, s2, 3\ns_lshl_b32 s3, s3, 11")
        A(f"s_add_u32 s88, s10, s3\ns_addc_u32 s89, s11, 0\ns_sub_u32 s90, {576*8192}, s3\ns_mov_b32 s91, 0x20000")
        A(f"s_lshr_b32 s3, s2, 3\ns_lshl_b32 s3, s3, 8")
        t0, t1, t2 = 72, 73, 74
        A(f"v_add_u32 v{t0}, s3, v0")
        nx = (8*184320 // gran + 8191) // 8192
        nw = (576*2048 // gran + 8191) // 8192
        lg = {128: 7, 64: 6}[gran]
        per_row = 2048 // gran
        lgr = {16: 4, 32: 5}[per_row]
        d = 76
        for i in range(max(nx, nw)):
            if i < nw:
                A(f"v_add_u32 v{t1}, {8192*i}, v{t0}")
                A(f"v_lshrrev_b32 v{t2}, {lgr}, v{t1}\nv_lshlrev_b32 v{t2}, 13, v{t2}")
                A(f"v_and_b32 v{t1}, {per_row-1}, v{t1}\nv_lshl_add_u32 v{t1}, v{t1}, {lg}, v{t2}")
                A(f"buffer_load_dword v{d}, v{t1}, s[88:91], 0 offen{pol}"); d += 1
                self.vm_issue(("warm",))
            if i < nx:
                A(f"v_add_u32 v{t1}, {8192*i}, v{t0}\nv_lshlrev_b32 v{t1}, {lg}, v{t1}")
                A(f"buffer_load_dword v{d}, v{t1}, s[84:87], 0 offen{pol}"); d += 1
                self.vm_issue(("warm",))

    def frag_reads(self, cc):
        st = cc % 3
        buf = cc & 1
        R = []
        for t in range(5):
            R.append(f"ds_read_b128 {vr(V_XF[buf]+4*t,4)}, v{V_XRD+st} offset:{t*1024}")
        for T in range(8):
            for hh in range(2):
                off = hh * 4 * WBLK + 64 * (T >> 1) + 8 * (T & 1)
                R.append(f"ds_read_b64_tr_b16 {ar(A_WF[buf]+4*T+2*hh,2)}, v{V_WRD+st} offset:{off}")
        return R

    def qproj(self):
        A = self.A
        NC = 18
        XS, WS, RC = 96, 97, 98
        XA = [V_XRD, V_XRD + 1, V_XRD + 2]
        WA = [V_WRD, V_WRD + 1, V_WRD + 2]
        XD = [V_XDMA, 62, 63]
        WD = [V_WDMA, 64, 65, 66]
        ntq = self.o.get('ntq', '')
        for n in (1, 2): A(f"v_add_u32 v{XD[n]}, {n*(18432-1024)}, v{V_XDMA}")
        for n in (1, 2, 3): A(f"v_add_u32 v{WD[n]}, {n*(8192-WBLK)}, v{V_WDMA}")
        def xdma(): return [f"buffer_load_dwordx4 v{XD[n]}, s[{S_X}:{S_X+3}], s{XS} offen offset:{n*1024}{ntq} lds" for n in range(3)]
        def wdma(): return [f"buffer_load_dwordx4 v{WD[n]}, s[{S_WQ}:{S_WQ+3}], s{WS} offen offset:{n*WBLK}{ntq} lds" for n in range(4)]
        if self.o.get("rot", True):
            A(f"s_and_b32 s3, s{S_H}, 3\ns_mul_i32 s3, s3, 5\ns_lshl_b32 s{RC}, s{S_B}, 1\ns_add_u32 s{RC}, s{RC}, s3")
            A(f"s_cmp_ge_u32 s{RC}, 18\ns_cselect_b32 s3, 18, 0\ns_sub_u32 s{RC}, s{RC}, s3")
        else:
            A(f"s_mov_b32 s{RC}, 0")
        def adv():
            return [f"s_add_u32 s{RC}, s{RC}, 1", f"s_cmp_ge_u32 s{RC}, 18", f"s_cselect_b32 s{RC}, 0, s{RC}",
                    f"s_lshl_b32 s{XS}, s{RC}, 6", f"s_add_u32 s{XS}, s{XS}, s{S_XSO}",
                    f"s_lshl_b32 s{WS}, s{RC}, 18", f"s_add_u32 s{WS}, s{WS}, s{S_WSO}"]
        for l in adv()[3:]: A(l)
        def chunk_dma_static(cc):
            A(f"s_add_u32 m0, s{S_XM0}, {STAGE[cc % 3]+XOFF}")
            A(f"s_nop 0")
            for l in xdma(): A(l)
            A(f"s_add_u32 m0, s{S_WM0}, {STAGE[cc % 3]}")
            A(f"s_nop 0")
            for l in wdma(): A(l)
            for l in adv(): A(l)
            self.vm_issue(("c", cc), 7)
        chunk_dma_static(0)
        if self.o.get("codewarm", True):
            A("s_getpc_b64 s[14:15]")
            A("K1_PC:")
            A("s_sub_u32 s14, s14, K1_PC-K1_START\ns_subb_u32 s15, s15, 0")
            A(f"s_lshr_b32 s3, s2, 3\ns_lshl_b32 s3, s3, 2\ns_add_u32 s3, s3, s{S_W}\ns_lshl_b32 s3, s3, 6")
            A(f"v_add_u32 v72, s3, v{V_LANE}\nv_lshlrev_b32 v72, 7, v72")
            A("v_min_u32 v72, K1_END-K1_START, v72")
            A("global_load_dword v73, v72, s[14:15]")
            self.vm_issue(("code",), 1)
        self.setup2()
        self.setup_kv()
        if self.o.get("fused"):
            P2M.P2(A, self.o, self.QS, fused=True).lane_consts(V_T)
        z = 68
        for i in range(4): A(f"v_mov_b32 v{z+i}, 0")
        A("s_nop 1")
        for i in range(10):
            A(f"v_mfma_f32_32x32x16_bf16 {vr(V_QACC+16*i,16)}, {vr(z,4)}, {vr(z,4)}, 0")
        for i in range(10):
            A(f"v_mfma_f32_32x32x16_bf16 {ar(A_O+16*i,16)}, {vr(z,4)}, {vr(z,4)}, 0")
        chunk_dma_static(1)
        A(f"s_waitcnt vmcnt({self.vm_wait_n({('c',0)})})")
        A("s_barrier")
        self.stamp()
        def reads(cc):
            buf, st = cc & 1, cc % 3
            R = []
            for t in range(5):
                R.append(f"ds_read_b128 {vr(V_XF[buf]+4*t,4)}, v{XA[st]} offset:{t*1024}")
            for T in range(8):
                for hh in range(2):
                    off = hh * 4 * WBLK + 64 * (T >> 1) + 8 * (T & 1)
                    R.append(f"ds_read_b64_tr_b16 {ar(A_WF[buf]+4*T+2*hh,2)}, v{WA[st]} offset:{off}")
            return R
        for r in reads(0): A(r)
        chunk_dma_static(2)
        nt = " nt" if self.o.get("nt", True) else ""
        def kv_one(kind, tile, slot, i):
            srd = S_K if kind == "K" else S_V
            vd = V_KDMA if kind == "K" else V_VDMA
            ring = KRING if kind == "K" else VRING
            return ([f"s_add_u32 m0, s{S_KM0W}, {ring + slot*TILE}", f"s_mov_b32 s{S_T2}, {tile*16384}"],
                    f"buffer_load_dwordx4 v{vd+i}, s[{srd}:{srd+3}], s{S_T2} offen offset:{i*BLK}{nt} lds")
        k0 = self.o.get("kvstart", 2)
        early = [("K", 0, 0), ("V", 0, 0), ("K", 1, 1), ("V", 1, 1)]
        kvplan = {}
        for n in range(8):
            k, tile, slot = early[n >> 1]
            kvplan[k0 + n] = [(k, tile, slot, 2*(n & 1)), (k, tile, slot, 2*(n & 1) + 1)]
        kvplan[17] = [("K", 2, 2, i) for i in range(4)]
        self.late_kv = [("K", 3, 3), ("V", 2, 2)]
        if not self.o.get("kvearly"):
            kvplan = {15: [("K", 0, 0, i) for i in range(4)], 16: [("K", 1, 1, i) for i in range(4)],
                      17: [("V", 0, 0, i) for i in range(4)]}
            self.late_kv = [("K", 2, 2), ("V", 1, 1), ("K", 3, 3), ("V", 2, 2)]
        dpos = self.o.get("qdpos", [2, 7, 12, 17, 22, 27, 32])
        m0pos = (dpos[0] - 1, dpos[3] - 1)
        for c in range(NC):
            A.c(f"---- Q-proj chunk {c}")
            if c + 1 < NC:
                A(f"s_waitcnt vmcnt({self.vm_wait_n({('c',c+1)})}) lgkmcnt(0)")
            else:
                A("s_waitcnt lgkmcnt(0)")
            A("s_barrier")
            buf = c & 1
            M = []
            for T in range(8):
                for t in range(5):
                    d = vr(V_QACC + (T*5 + t)*4, 4)
                    M.append(mfma(d, ar(A_WF[buf]+4*T, 4), vr(V_XF[buf]+4*t, 4), d))
            fill = [[] for _ in range(40)]
            dma = c + 3 < NC
            kv = kvplan.get(c, [])
            kpos = [35, 38] if len(kv) == 2 else [5, 14, 23, 32]
            busy = set(kpos[:len(kv)]) | {g - 1 for g in kpos[:len(kv)]}
            if dma: busy |= set(dpos) | set(m0pos)
            R = reads(c + 1) if c + 1 < NC else []
            slots = [g for g in range(0, 34) if g not in busy]
            for i, r in enumerate(R):
                fill[slots[(i * len(slots)) // len(R)]].append(r)
            if dma:
                st = STAGE[c % 3]
                fill[m0pos[0]].append(f"s_add_u32 m0, s{S_XM0}, {st + XOFF}")
                xd, wd = xdma(), wdma()
                for n in range(3): fill[dpos[n]].append(xd[n])
                fill[m0pos[1]].append(f"s_add_u32 m0, s{S_WM0}, {st}")
                for n in range(4): fill[dpos[3+n]].append(wd[n])
                self.vm_issue(("c", c + 3), 7)
                sal = adv()
                fill[33] += sal[0:3]; fill[36] += sal[3:5]; fill[39] += sal[5:7]
            for n, (k, tile, slot, i) in enumerate(kv):
                pre, l = kv_one(k, tile, slot, i)
                fill[kpos[n] - 1] += pre
                fill[kpos[n]].append(l)
                self.vm_issue((k, tile), 1)
            for m in range(40):
                A(M[m])
                for l in fill[m]: A(l)
        self.qloop_lines = []

    def qconvert(self):
        A = self.A
        S0 = V_S[0]
        A(f"s_mov_b32 s{S_SCALE+1}, 0x3e0293ee\ns_mov_b32 s{S_SCALE+2}, 0x3e0293ee")
        A(f"s_waitcnt vmcnt({self.vm_wait_n({('K',0)})})")
        A("s_barrier")
        self.kslot = 0; self.vslot = 0
        for n in range(8): A(self.k_read(n, 0))
        late = list(self.late_kv)
        def conv(s):
            L = []
            for t in range(5):
                for half in range(2):
                    T = 2*s + half
                    src = V_QACC + (T*5 + t)*4
                    if s == 0:
                        L.append(f"v_pk_mul_f32 v[{src}:{src+1}], v[{src}:{src+1}], s[{S_SCALE+1}:{S_SCALE+2}]")
                        L.append(f"v_pk_mul_f32 v[{src+2}:{src+3}], v[{src+2}:{src+3}], s[{S_SCALE+1}:{S_SCALE+2}]")
                    else:
                        for r in range(4): L.append(f"v_mul_f32 v{src+r}, s{S_SCALE+1}, v{src+r}")
                    dst = V_Q + 16*t + 4*s + 2*half
                    L.append(f"v_cvt_pk_bf16_f32 v{dst}, v{src}, v{src+1}")
                    L.append(f"v_cvt_pk_bf16_f32 v{dst+1}, v{src+2}, v{src+3}")
            return L
        def qk(s):
            M = []
            for ktl in range(2):
                for t in range(5):
                    d = vr(S0 + 8*t + 4*ktl, 4)
                    M.append(mfma(d, ar(A_KF + 4*(ktl*4+s), 4), vr(V_Q + 16*t + 4*s, 4), "0" if s == 0 else d))
            return M
        def kvd(n):
            k, tile, slot = late[n]
            self.vm_issue((k, tile), 4)
            return self.kv_dma(k, tile, slot)
        for l in conv(0): A(l)
        for l in kvd(0): A(l)
        A("s_waitcnt lgkmcnt(0)")
        for s in range(4):
            M = qk(s)
            C = conv(s + 1) if s < 3 else []
            for i, m in enumerate(M):
                A(m)
                for l in C[6*i:6*i+6]: A(l)
            if s + 1 < len(late):
                for l in kvd(s + 1): A(l)

    def k_read(self, n, half, slot=0):
        kt = 2*half + (n >> 2); s = n & 3
        return f"ds_read_b128 {ar(A_KF+4*n,4)}, v{V_KLANE} offset:{KRING + slot*TILE + kt*256 + s*64}"
    def v_read(self, n, mb, slot=0):
        dt = n >> 1; hh = n & 1
        return f"ds_read_b64_tr_b16 {ar(A_VF+4*dt+2*hh,2)}, v{V_VAD} offset:{slot*TILE + mb*8*BLK + hh*512 + dt*32}"
    def qk_mfmas(self, sb, first_c=None):
        M = []
        for ktl in range(2):
            for s in range(4):
                for t in range(5):
                    d = vr(sb + 8*t + 4*ktl, 4)
                    if s == 0:
                        c = vr(V_CI + 4*t, 4) if first_c is None else first_c
                    else:
                        c = d
                    M.append(mfma(d, ar(A_KF + 4*(ktl*4+s), 4), vr(V_Q + 16*t + 4*s, 4), c))
        return M
    def pv_mfmas(self, sb):
        M = []
        for dt in range(8):
            for t in range(5):
                d = ar(A_O + (dt*5 + t)*4, 4)
                M.append(mfma(d, ar(A_VF + 4*dt, 4), vr(sb + 8*t, 4), d))
        return M
    def item(self, it, sb, khalf, vmb, dma):
        k = it[0]
        if k == 'exp':
            r = sb + 8*it[1] + it[2]
            return [f"v_exp_f32 v{r}, v{r}"]
        if k == 'add':
            r = sb + 8*it[1] + it[2]
            return [f"v_add_f32 v{V_L+it[1]}, v{V_L+it[1]}, v{r}"]
        if k == 'cvt':
            r = sb + 8*it[1]
            p = it[2]
            return [f"v_cvt_pk_bf16_f32 v{r+p}, v{r+2*p}, v{r+2*p+1}"]
        if k == 'K':
            return [self.k_read(it[1], khalf, self.kslot)] if khalf is not None else []
        if k == 'V':
            return [self.v_read(it[1], vmb, self.vslot)] if vmb is not None else []
        if k == 'DMA':
            if not dma: return []
            n = len(dma) // it[2]
            return dma[it[1]*n:(it[1]+1)*n]
    def phase(self, M, gaps, sb, khalf=None, vmb=None, dma=None, pre=None, head=None):
        A = self.A
        for i in range(40):
            if M is not None:
                A(M[i])
            elif gaps is not None and A.lines[-1].startswith("v_exp_f32") and gaps[i] and gaps[i][0][0] != 'exp':
                A("s_nop 0")
            if head and i in head:
                for l in head[i]: A(l)
            if gaps is not None:
                for it in gaps[i]:
                    for l in self.item(it, sb, khalf, vmb, dma): A(l)

    def loop_dma(self, kind):
        if self.o.get("loop_nodma"): return []
        nt = " nt" if self.o.get("nt", True) else ""
        srd = S_K if kind == "K" else S_V
        vd = V_KDMA if kind == "K" else V_VDMA
        so = S_KSOFF if kind == "K" else S_VSOFF
        return [f"buffer_load_dwordx4 v{vd+i}, s[{srd}:{srd+3}], s{so} offen offset:{i*BLK}{nt} lds" for i in range(4)]

    def slot_adv(self, s, base):
        return [f"s_add_u32 s{s}, s{s}, {TILE}",
                f"s_cmp_ge_u32 s{s}, s{S_T0}" if False else None]

    def warmwo(self):
        A = self.A
        if self.o.get("warmwo") is not None:
            pol = self.o.get("warmwo")
            if self.o.get("fused"):
                A(f"s_lshr_b32 s3, s{S_H}, 2\ns_lshl_b32 s3, s3, 5\ns_lshl_b32 s14, s{S_B}, 2\ns_add_u32 s3, s3, s14\ns_and_b32 s14, s{S_H}, 3\ns_add_u32 s3, s3, s14\ns_mul_i32 s3, s3, {288*128}")
            else:
                A(f"s_lshl_b32 s3, s{S_B}, 4\ns_add_u32 s3, s3, s{S_H}\ns_mul_i32 s3, s3, {288*128}")
            g = self.o.get("wogran", 128)
            sh = {128: 7, 64: 6}[g]
            A(f"v_lshlrev_b32 v{V_T+12}, {sh}, v0\nv_add_u32 v{V_T+12}, s3, v{V_T+12}")
            A(f"s_add_u32 s14, s3, {288*128}")
            A(f"s_mov_b32 s90, s14\ns_mov_b32 s91, 0x20000")
            n = (288*128 + 256*g - 1) // (256*g)
            for i in range(n):
                if i: A(f"v_add_u32 v{V_T+12}, {256*g}, v{V_T+12}")
                A(f"buffer_load_dword v{V_T+14}, v{V_T+12}, s[88:91], 0 offen{pol}")

    def attention(self):
        A = self.A
        W = best_schedule(tuple(self.o.get("dmagaps", (41,51,61,71))))[1]
        GA, GB = W[:40], W[40:]
        S0, S1 = V_S
        A.c("---- attention prologue")
        A(f"v_add_u32 v{V_VAD}, {VRING}, v{V_VLANE}")
        for n in range(8): A(self.k_read(n, 1))
        for t in range(5): A(f"v_mov_b32 v{V_L+t}, 0")
        A("s_nop 4")
        T = V_T
        for t in range(5):
            r = S0 + 8*t
            A(f"v_max3_f32 v{T+t}, v{r}, v{r+1}, v{r+2}")
            A(f"v_max3_f32 v{T+t}, v{T+t}, v{r+3}, v{r+4}")
            A(f"v_max3_f32 v{T+t}, v{T+t}, v{r+5}, v{r+6}")
            A(f"v_max_f32 v{T+t}, v{T+t}, v{r+7}")
        for sw in ("v_permlane32_swap_b32", "v_permlane16_swap_b32"):
            for t in range(5): A(f"v_mov_b32 v{T+5+t}, v{T+t}")
            A("s_nop 1")
            for t in range(5): A(f"{sw} v{T+t}, v{T+5+t}")
            A("s_nop 1")
            for t in range(5): A(f"v_max_f32 v{T+t}, v{T+t}, v{T+5+t}")
        for t in range(5):
            for i in range(4):
                A(f"v_sub_f32 v{V_CI+4*t+i}, 0, v{T+t}")
            for i in range(0, 8, 2):
                A(f"v_pk_add_f32 v[{S0+8*t+i}:{S0+8*t+i+1}], v[{S0+8*t+i}:{S0+8*t+i+1}], v[{V_CI+4*t}:{V_CI+4*t+1}]")
        self.phase(None, GA, S0, khalf=None)
        if not self.o.get("latewarm", True): self.warmwo()
        if self.o.get("fused"):
            A(f"v_mov_b32 v219, 0")
            A(f"global_load_dword v218, v219, s[100:101] sc1")
        A(f"s_mov_b32 s{S_KSOFF}, {4*16384}")
        A(f"s_mov_b32 s{S_VSOFF}, {3*16384}")
        A(f"s_mov_b32 s{S_LOOP}, 4")
        WL = "s_waitcnt lgkmcnt(0)"
        def ph1(jm):
            self.vslot = jm
            head = {0: [f"s_add_u32 m0, s{S_KM0W}, {KRING + jm*TILE}"], 36: [f"s_add_u32 s{S_KSOFF}, s{S_KSOFF}, {0 if self.o.get('loop_l2') else 16384}"], 38: [WL]}
            self.phase(self.qk_mfmas(S1), GB, S0, vmb=0, dma=self.loop_dma("K"), head=head)
        def ph2(jm, head_extra=None):
            self.kslot = (jm + 1) % 4
            head = {38: [WL]}
            head.update(head_extra or {})
            self.phase(self.pv_mfmas(S0), GA, S1, khalf=0, head=head)
        def ph3(jm):
            self.vslot = jm
            head = {0: [f"s_add_u32 m0, s{S_KM0W}, {VRING + ((jm+3)%4)*TILE}"], 36: [f"s_add_u32 s{S_VSOFF}, s{S_VSOFF}, {0 if self.o.get('loop_l2') else 16384}"], 38: [WL]}
            self.phase(self.qk_mfmas(S0), GB, S1, vmb=1, dma=self.loop_dma("V"), head=head)
        def ph4(jm, head_extra=None):
            self.kslot = (jm + 1) % 4
            head = {38: ["s_waitcnt vmcnt(16) lgkmcnt(0)" if not self.o.get("loop_novm") else "s_waitcnt lgkmcnt(0)"], 39: ["s_barrier"] if not self.o.get("loop_nobar") else []}
            for k, v in (head_extra or {}).items(): head[k] = v + head.get(k, [])
            self.phase(self.pv_mfmas(S1), GA, S0, khalf=1, head=head)
        A("s_waitcnt vmcnt(16) lgkmcnt(0)")
        A("s_barrier")
        self.stamp()
        A(".p2align 6")
        A("K1_LOOP:")
        start = len(A.lines)
        for jm in range(4):
            if jm == self.o.get("latewarm_jm", 1) and self.o.get("latewarm", True) and self.o.get("warmwo") is not None:
                A(f"s_cmp_eq_u32 s{S_LOOP}, 1")
                A("s_cbranch_scc1 K1_WARM")
                A("K1_WARMRET:")
            ph1(jm)
            if jm == 3:
                ph2(jm, {30: [f"s_cmp_eq_u32 s{S_LOOP}, 1"]})
                A("s_cbranch_scc1 K1_TAIL")
            else:
                ph2(jm)
            ph3(jm)
            if jm == 3:
                ph4(jm, {30: [f"s_sub_u32 s{S_LOOP}, s{S_LOOP}, 1"]})
            else:
                ph4(jm)
        A("s_branch K1_LOOP")
        self.loop_lines = A.lines[start:]
        if self.o.get("latewarm", True) and self.o.get("warmwo") is not None:
            A("K1_WARM:")
            self.warmwo()
            A("s_branch K1_WARMRET")
        A("K1_TAIL:")
        if self.o.get("fused") and self.o.get("xccfast", False):
            A(f"s_lshl_b32 s3, s{S_BR}, 3\ns_add_u32 s3, s3, s{S_B}\ns_lshl_b32 s3, s3, 4\ns_add_u32 s3, s3, s{S_H}\ns_lshr_b32 s3, s3, 3\ns_lshl_b32 s3, s3, 2\ns_add_u32 s3, s3, 16")
            A("v_mov_b32 v219, s3")
            A("global_load_dword v217, v219, s[100:101] sc1") if False else A("global_load_dword v220, v219, s[100:101] sc1")
        self.vslot = 3
        self.phase(None, GB, S1, vmb=1, dma=None)
        fused = self.o.get("fused")
        T = V_T
        for sw in ("v_permlane32_swap_b32", "v_permlane16_swap_b32"):
            for t in range(5): A(f"v_mov_b32 v{T+t}, v{V_L+t}")
            A("s_nop 1")
            for t in range(5): A(f"{sw} v{V_L+t}, v{T+t}")
            A("s_nop 1")
            for t in range(5): A(f"v_add_f32 v{V_L+t}, v{V_L+t}, v{T+t}")
        RC, LO, OWN = 24, 29, 176
        for t in range(5): A(f"v_rcp_f32 v{RC+t}, v{V_L+t}")
        A(f"v_lshlrev_b32 v{LO}, 4, v{V_LANE}")
        A("s_waitcnt vmcnt(0) lgkmcnt(0)")
        if fused:
            A("s_barrier")
            self.p2 = P2M.P2(A, self.o, self.QS, fused=True)
            A(f"v_readfirstlane_b32 s{P2M.S_NONCE}, v218")
            A("s_nop 3")
            A(f"s_cmp_lg_u32 s{P2M.S_NONCE}, 0")
            A("s_cbranch_scc1 K1_HAVENONCE")
            self.p2.get_nonce("f")
            A("K1_HAVENONCE:")
            if self.o.get("xccfast", False):
                A(f"v_readfirstlane_b32 s14, v220")
                A("s_nop 3")
                A(f"s_and_b32 s15, s{S_H}, 4\ns_lshl_b32 s15, s15, 2\ns_lshr_b32 s14, s14, s15\ns_and_b32 s14, s14, 0xffff")
                A("s_and_b32 s15, s14, 15\ns_mul_i32 s15, s15, 0x1111")
                A("s_cmp_eq_u32 s14, s15\ns_cselect_b32 s3, 1, 0")
                A("s_and_b32 s15, s14, 8\ns_lshr_b32 s15, s15, 3\ns_and_b32 s3, s3, s15")
                A(f"s_mov_b32 s{P2M.S_FAST}, s3")
            self.p2.setup()
            self.p2.prefetch_w()
        self.stamp()
        pol = ' sc1' if fused else self.o.get('nto', '')
        M = self.pv_mfmas(S1)
        def norm(t, s, n):
            b = 32 + (n % 3) * 8
            d = OWN + 16*t + 4*s
            L = []
            for half in range(2):
                a0 = A_O + ((2*s+half)*5 + t)*4
                for r in range(4): L.append(f"v_accvgpr_read_b32 v{b+4*half+r}, a{a0+r}")
            for r in range(8): L.append(f"v_mul_f32 v{b+r}, v{RC+t}, v{b+r}")
            for p in range(4): L.append(f"v_cvt_pk_bf16_f32 v{d+p}, v{b+2*p}, v{b+2*p+1}")
            st = [f"s_mov_b32 s14, {t*self.QS + s*1024}",
                  f"buffer_store_dwordx4 {vr(d,4)}, v{LO}, s[{S_O}:{S_O+3}], s14 offen{pol}"]
            return L, st
        stores = []
        work = []
        n = 0
        for s in range(4):
            for t in range(5):
                L, st = norm(t, s, n); n += 1
                work.append((s, L if fused else L + st))
                stores.append(st)
        wi = 0
        pend = []
        for m in range(40):
            A(M[m])
            while wi < len(work) and m >= 10*work[wi][0] + 9 + 4 and len(pend) < 8:
                pend += work[wi][1]; wi += 1
            for l in pend[:6]: A(l)
            pend = pend[6:]
        A("s_nop 7")
        for l in pend: A(l)
        while wi < len(work):
            for l in work[wi][1]: A(l)
            wi += 1
        if fused:
            if self.o.get("xccfast", False):
                A(f"s_cmp_lg_u32 s{P2M.S_FAST}, 0")
                A("s_cbranch_scc1 K1_OFAST")
                for st in stores:
                    for l in st: A(l)
                A("s_branch K1_ODONE")
                A("K1_OFAST:")
                for st in stores:
                    for l in st: A(l.replace(" sc1", ""))
                A("K1_ODONE:")
            else:
                A(f"s_mov_b32 s{P2M.S_FAST}, 0")
                for st in stores:
                    for l in st: A(l)

    def epilogue(self):
        pass

    def build(self):
        A = self.A
        A(".p2align 8\n.type k1_kernel,@function\nk1_kernel:")
        A("K1_START:")
        self.stamp()
        self.setup()
        self.qproj()
        self.stamp()
        self.qconvert()
        self.attention()
        self.stamp()
        self.epilogue()
        self.stamp()
        if self.o.get("fused"):
            p = self.p2
            self.in_p2 = True
            p.main(self.stamp)
            p.reduce(self.stamp)
            self.stamp()
        self.dump_stamps()
        A("K1_END:")
        A("s_endpgm")
        return A
```

```python
from asmlib import *
from sched import window_schedule, best_schedule
import p2 as P2M

BLK = 1056
TILE = 16 * BLK
KRING = 0
VRING = 4 * TILE
SPARE = 8 * TILE
LDS_TOTAL = 163840
STAGE = [SPARE, VRING + 2 * TILE, KRING + 2 * TILE]
XOFF = 0
WOFF = 10240
WBLK = 1088
BIAS = 2400

V_TID, V_LANE = 0, 1
V_XDMA, V_WDMA = 2, 3
V_KDMA = 6
V_VDMA = 10
V_KLANE, V_VLANE = 14, 15
V_Q = 16
V_S = [96, 136]
V_CI = 176
V_L = 196
V_T = 201
V_KAD, V_VAD = 216, 217
V_QACC = 96
V_XF = [16, 36]
V_XRD = 56
V_WRD = 59
A_O = 0
A_KF = 160
A_VF = 192
A_WF = [160, 192]

S_X, S_WQ, S_K, S_V, S_O = 16, 20, 24, 28, 32
S_W, S_BR, S_B, S_H = 36, 37, 38, 39
S_XSO, S_XM0, S_WSO, S_WM0 = 40, 41, 42, 43
S_T0, S_T1, S_T2 = 44, 45, 46
S_KM0W = 47
S_KSLOT, S_VSLOT = 48, 49
S_KDSLOT, S_VDSLOT = 50, 51
S_KSOFF, S_VSOFF = 52, 53
S_LOOP = 54
S_SCALE = 55
S_FLAG = 56

def mfma(d, a, b, c):
    return f"v_mfma_f32_16x16x32_bf16 {d}, {a}, {b}, {c}"

class K1:
    def __init__(self, opts=None):
        self.o = opts or {}
        self.A = Asm()
        self.QS = 131072 + self.o.get("qpad", 0)
        self.vm = []
    def stamp(self, force=False):
        if not self.o.get("prof"): return
        if self.o.get("profp2") and not force and not getattr(self, "in_p2", False) and getattr(self, "nst", 0) >= 1: return
        i = self.nst = getattr(self, "nst", 0) + 1
        b = 60 + (i-1)*2
        assert b + 1 <= 87
        self.A(f"{'s_memtime' if self.o.get('profcyc') else 's_memrealtime'} s[{b}:{b+1}]")
    def dump_stamps(self, wgs="s2"):
        if not self.o.get("prof"): return
        A = self.A
        if self.o.get("profdbg") is not None:
            A("s_waitcnt lgkmcnt(0) vmcnt(0)")
            A(f"s_or_b32 s3, s{S_W}, 0\ns_cmp_lg_u32 s3, 0\ns_cbranch_scc1 K1_NODBG")
            A(f"s_cmp_lg_u32 s2, {self.o.get('profdbg')}\ns_cbranch_scc1 K1_NODBG")
            A("s_mov_b64 exec, 1")
            for i in range(1, self.nst):
                A(f"s_sub_u32 s3, s{60+2*i}, s60")
                A(f"v_mov_b32 v2, s3\nv_mov_b32 v4, {4*i}")
                A("global_store_dword v4, v2, s[100:101]")
                A("s_nop 1")
            A("K1_NODBG:")
            return
        A("s_waitcnt lgkmcnt(0) vmcnt(0)")
        A("s_load_dwordx2 s[4:5], s[0:1], 96")
        A("s_waitcnt lgkmcnt(0)")
        A(f"s_add_u32 s4, s4, {self.o.get('profoff', 128<<20)}\ns_addc_u32 s5, s5, 0\ns_mov_b32 s6, 0x100000\ns_mov_b32 s7, 0x20000")
        A(f"s_lshl_b32 s3, s2, 2\ns_add_u32 s3, s3, s{S_W}\ns_lshl_b32 s3, s3, 7")
        A("s_mov_b64 exec, 1")
        for i in range(self.nst):
            b = 60 + i*2
            A(f"v_mov_b32 v2, s{b}\nv_mov_b32 v3, s{b}\nv_mov_b32 v4, s3")
            A(f"buffer_store_dwordx2 v[2:3], v4, s[4:7], 0 offen offset:{i*8}")
            A("s_nop 1")
    def vm_issue(self, tag, n=1):
        self.vm += [tag] * n
    def vm_wait_n(self, tags):
        last = max(i for i, t in enumerate(self.vm) if t in tags)
        return min(63, len(self.vm) - 1 - last)

    def setup(self):
        A = self.A
        A("s_cmp_ge_u32 s2, 256")
        A("s_cbranch_scc1 K1_END")
        if self.o.get("badmap"):
            A("s_lshr_b32 s3, s2, 5")
            A("s_and_b32 s14, s2, 31")
        else:
            A("s_and_b32 s3, s2, 7")
            A("s_lshr_b32 s14, s2, 3")
        A(f"s_lshr_b32 s{S_BR}, s3, 2")
        A("s_and_b32 s3, s3, 3")
        A("s_lshl_b32 s3, s3, 2")
        A(f"s_and_b32 s{S_H}, s14, 3")
        A(f"s_add_u32 s{S_H}, s{S_H}, s3")
        A(f"s_lshr_b32 s{S_B}, s14, 2")
        A(f"s_mul_i32 s3, s{S_BR}, 40")
        A("s_add_u32 s14, s0, s3")
        A("s_addc_u32 s15, s1, 0")
        A("s_load_dwordx8 s[4:11], s[14:15], 0")
        A("s_load_dwordx2 s[12:13], s[0:1], 96")
        A("s_load_dwordx2 s[88:89], s[14:15], 32")
        A("s_load_dwordx2 s[100:101], s[0:1], 88")
        A("s_load_dwordx2 s[58:59], s[0:1], 80")
        A(f"v_and_b32 v{V_LANE}, 63, v0")
        A(f"v_lshrrev_b32 v{V_T}, 6, v0")
        A("s_nop 0")
        A(f"v_readfirstlane_b32 s{S_W}, v{V_T}")
        L = V_LANE
        t0, t1, t2 = V_T, V_T + 1, V_T + 2
        A(f"v_lshrrev_b32 v{t0}, 2, v{L}")
        A(f"v_mul_u32_u24 v{t0}, 1152, v{t0}")
        A(f"v_lshrrev_b32 v{t1}, 4, v{L}")
        A(f"v_sub_u32 v{t1}, 0, v{t1}")
        A(f"v_and_b32 v{t1}, 3, v{t1}")
        A(f"v_and_b32 v{t2}, 3, v{L}")
        A(f"v_xor_b32 v{t1}, v{t1}, v{t2}")
        A(f"v_lshl_add_u32 v{V_XDMA}, v{t1}, 4, v{t0}")
        A(f"v_lshrrev_b32 v{t0}, 5, v{L}")
        A(f"v_lshlrev_b32 v{t0}, 16, v{t0}")
        A(f"v_and_b32 v{t1}, 31, v{L}")
        A(f"v_lshl_add_u32 v{V_WDMA}, v{t1}, 4, v{t0}")
        A("s_waitcnt lgkmcnt(0)")
        if self.o.get("fused") or self.o.get("k2b"):
            A(f"s_or_b32 s14, s2, s{S_W}")
            A("s_cmp_lg_u32 s14, 0")
            A("s_cbranch_scc1 K1_NONON")
            A("s_memrealtime s[44:45]")
            A("s_waitcnt lgkmcnt(0)")
            A("s_or_b32 s44, s44, 1")
            A(f"v_mov_b32 v{V_T}, 0\nv_mov_b32 v{V_T+1}, s44")
            A(f"global_store_dword v{V_T}, v{V_T+1}, s[100:101] sc1")
            A("K1_NONON:")
        if self.o.get("fused") and self.o.get("xccfast", False):
            A(f"s_cmp_lg_u32 s{S_W}, 0")
            A("s_cbranch_scc1 K1_NOXCC")
            A("s_getreg_b32 s44, hwreg(HW_REG_XCC_ID, 0, 3)")
            A(f"s_lshl_b32 s45, s{S_BR}, 3\ns_add_u32 s45, s45, s{S_B}\ns_lshl_b32 s45, s45, 4\ns_add_u32 s45, s45, s{S_H}")
            A("s_or_b32 s44, s44, 8")
            A("s_and_b32 s46, s45, 7\ns_lshl_b32 s46, s46, 2\ns_lshl_b32 s44, s44, s46")
            A("s_lshr_b32 s45, s45, 3\ns_lshl_b32 s45, s45, 2\ns_add_u32 s45, s45, 16")
            A(f"v_mov_b32 v{V_T}, s45\nv_mov_b32 v{V_T+1}, s44")
            A("s_mov_b64 s[44:45], exec\ns_mov_b64 exec, 1")
            A(f"global_atomic_or v{V_T}, v{V_T+1}, s[100:101] sc1")
            A("s_mov_b64 exec, s[44:45]")
            A("K1_NOXCC:")
        w, b, h, br = S_W, S_B, S_H, S_BR
        A(f"s_mul_i32 s3, s{b}, 184320")
        A(f"s_add_u32 s{S_X}, s4, s3\ns_addc_u32 s{S_X+1}, s5, 0\ns_mov_b32 s{S_X+2}, 184320\ns_mov_b32 s{S_X+3}, 0x20000")
        A(f"s_lshl_b32 s3, s{h}, 9")
        A(f"s_add_u32 s{S_WQ}, s10, s3\ns_addc_u32 s{S_WQ+1}, s11, 0")
        A(f"s_sub_u32 s{S_WQ+2}, {576*8192}, s3\ns_mov_b32 s{S_WQ+3}, 0x20000")
        A(f"s_lshl_b32 s3, s{b}, 4\ns_add_u32 s3, s3, s{h}")
        A("s_lshr_b32 s14, s3, 14\ns_lshl_b32 s3, s3, 18")
        for (srd, lo) in ((S_K, 6), (S_V, 8)):
            A(f"s_add_u32 s{srd}, s{lo}, s3\ns_addc_u32 s{srd+1}, s{lo+1}, s14")
            A(f"s_sub_u32 s{srd}, s{srd}, {BIAS}\ns_subb_u32 s{srd+1}, s{srd+1}, 0")
            A(f"s_mov_b32 s{srd+2}, {262144+BIAS}\ns_mov_b32 s{srd+3}, 0x20000")
        A(f"s_lshl_b32 s3, s{br}, 3\ns_add_u32 s3, s3, s{b}")
        A(f"s_mul_i32 s3, s3, {10*self.QS}")
        A(f"s_lshl_b32 s14, s{h}, 1\ns_lshr_b32 s15, s{w}, 1\ns_add_u32 s14, s14, s15")
        A("s_lshl_b32 s14, s14, 12")
        A("s_add_u32 s3, s3, s14")
        A(f"s_and_b32 s15, s{w}, 1\ns_mul_i32 s15, s15, {5*self.QS}")
        A("s_add_u32 s3, s3, s15")
        A(f"s_add_u32 s{S_O}, s12, s3\ns_addc_u32 s{S_O+1}, s13, 0")
        A(f"s_mov_b32 s{S_O+2}, {4*self.QS+4096}\ns_mov_b32 s{S_O+3}, 0x20000")
        A(f"s_mul_i32 s3, s{w}, 3\ns_lshl_b32 s14, s{w}, 1\ns_add_u32 s14, s14, 1")
        A(f"s_cmp_lt_u32 s{w}, 2\ns_cselect_b32 s3, s3, s14")
        A(f"s_mul_i32 s{S_XSO}, s3, 18432\ns_lshl_b32 s{S_XM0}, s3, 10")
        A(f"s_and_b32 s3, s{w}, 1\ns_lshl_b32 s3, s3, 2\ns_lshr_b32 s14, s{w}, 1\ns_lshl_b32 s14, s14, 4\ns_add_u32 s3, s3, s14")
        A(f"s_lshl_b32 s{S_WSO}, s3, 13")
        A(f"s_mul_i32 s{S_WM0}, s{w}, {4*WBLK}\ns_add_u32 s{S_WM0}, s{S_WM0}, {WOFF}")
        A(f"s_mul_i32 s{S_KM0W}, s{w}, {4*BLK}")

    def dma_chunk(self, cc, inter=None):
        st = STAGE[cc % 3]
        G = []
        for i in range(3):
            g = [f"s_add_u32 s{S_T0}, s{S_XSO}, {i*18432 + cc*64}",
                 f"s_add_u32 m0, s{S_XM0}, {st + XOFF + i*1024}",
                 "s_nop 0",
                 f"buffer_load_dwordx4 v{V_XDMA}, s[{S_X}:{S_X+3}], s{S_T0} offen{self.o.get('ntq','')} lds"]
            G.append(("x", i, g))
        for i in range(4):
            g = [f"s_add_u32 s{S_T1}, s{S_WSO}, {(32*cc + i)*8192}",
                 f"s_add_u32 m0, s{S_WM0}, {st + i*WBLK}",
                 "s_nop 0",
                 f"buffer_load_dwordx4 v{V_WDMA}, s[{S_WQ}:{S_WQ+3}], s{S_T1} offen{self.o.get('ntq','')} lds"]
            G.append(("w", i, g))
        return G

    def emit_chunk_dma_group(self, kind, i, g, cc, uid):
        A = self.A
        if kind == "x" and i == 2:
            A(f"s_cmp_ge_u32 s{S_W}, 2")
            A(f"s_cbranch_scc1 K1_SKX_{uid}")
            for l in g: A(l)
            A(f"K1_SKX_{uid}:")
        else:
            for l in g: A(l)
            self.vm_issue(("c", cc))

    def kv_dma(self, kind, tile_imm=None, slot_imm=None):
        nt = " nt" if self.o.get("nt", True) else ""
        srd = S_K if kind == "K" else S_V
        vd = V_KDMA if kind == "K" else V_VDMA
        ring = KRING if kind == "K" else VRING
        L = []
        L.append(f"s_add_u32 m0, s{S_KM0W}, {ring + slot_imm*TILE}")
        L.append(f"s_mov_b32 s{S_T2}, {tile_imm*16384}")
        for i in range(4):
            L.append(f"buffer_load_dwordx4 v{vd+i}, s[{srd}:{srd+3}], s{S_T2} offen offset:{i*BLK}{nt} lds")
        return L

    def setup2(self):
        A = self.A
        L = V_LANE
        t0, t1, t2, t3 = V_T, V_T + 1, V_T + 2, V_T + 3
        w = S_W
        A(f"v_and_b32 v{t0}, 15, v{L}")
        A(f"v_lshrrev_b32 v{t1}, 2, v{t0}")
        A(f"v_sub_u32 v{t1}, 0, v{t1}")
        A(f"v_and_b32 v{t1}, 3, v{t1}")
        A(f"v_lshrrev_b32 v{t2}, 4, v{L}")
        A(f"v_xor_b32 v{t1}, v{t1}, v{t2}")
        A(f"v_lshlrev_b32 v{t1}, 4, v{t1}")
        A(f"v_lshl_add_u32 v{t1}, v{t0}, 6, v{t1}")
        A(f"s_and_b32 s3, s{w}, 1\ns_mul_i32 s3, s3, 5120")
        A(f"v_add_u32 v{t1}, s3, v{t1}")
        for st in range(3): A(f"v_add_u32 v{V_XRD+st}, {STAGE[st]+XOFF}, v{t1}")
        A(f"v_lshrrev_b32 v{t0}, 2, v{L}\nv_and_b32 v{t0}, 3, v{t0}")
        A(f"v_lshrrev_b32 v{t1}, 5, v{L}")
        A(f"v_lshl_add_u32 v{t0}, v{t1}, 3, v{t0}")
        A(f"v_mul_u32_u24 v{t0}, {WBLK}, v{t0}")
        A(f"v_lshrrev_b32 v{t1}, 4, v{L}\nv_and_b32 v{t1}, 1, v{t1}")
        A(f"v_lshl_add_u32 v{t0}, v{t1}, 9, v{t0}")
        A(f"v_and_b32 v{t1}, 3, v{L}")
        A(f"v_lshl_add_u32 v{t0}, v{t1}, 4, v{t0}")
        A(f"s_lshr_b32 s3, s{w}, 1\ns_lshl_b32 s3, s3, 8")
        A(f"v_add_u32 v{t0}, s3, v{t0}")
        for st in range(3): A(f"v_add_u32 v{V_WRD+st}, {STAGE[st]+WOFF}, v{t0}")

    def setup_kv(self):
        A = self.A
        L = V_LANE
        t0, t1, t2, t3 = V_T, V_T + 1, V_T + 2, V_T + 3
        w = S_W
        A(f"v_lshrrev_b32 v{t0}, 4, v{L}\nv_and_b32 v{t1}, 15, v{L}\nv_lshlrev_b32 v{t1}, 4, v{t1}")
        A(f"v_lshl_add_u32 v{t2}, v{t0}, 12, v{t1}")
        A(f"s_lshl_b32 s3, s{w}, 10")
        A(f"v_add_u32 v{t2}, s3, v{t2}")
        for i in range(4):
            A(f"v_add_u32 v{V_KDMA+i}, {BIAS - 800*i}, v{t2}")
        A(f"v_lshl_add_u32 v{t2}, v{t0}, 11, v{t1}")
        A(f"s_lshr_b32 s3, s{w}, 1\ns_lshl_b32 s3, s3, 13\ns_and_b32 s14, s{w}, 1\ns_lshl_b32 s14, s14, 10\ns_add_u32 s3, s3, s14")
        A(f"v_add_u32 v{t2}, s3, v{t2}")
        for i in range(4):
            A(f"v_add_u32 v{V_VDMA+i}, {BIAS - 800*i}, v{t2}")
        A(f"v_and_b32 v{t1}, 15, v{L}\nv_mul_u32_u24 v{t1}, {BLK}, v{t1}")
        A(f"v_lshl_add_u32 v{V_KLANE}, v{t0}, 4, v{t1}")
        A(f"v_lshrrev_b32 v{t1}, 2, v{L}\nv_and_b32 v{t1}, 7, v{t1}")
        A(f"v_mul_u32_u24 v{t1}, {BLK}, v{t1}")
        A(f"v_lshrrev_b32 v{t2}, 5, v{L}")
        A(f"v_lshl_add_u32 v{t1}, v{t2}, 8, v{t1}")
        A(f"v_and_b32 v{t2}, 3, v{L}")
        A(f"v_lshl_add_u32 v{V_VLANE}, v{t2}, 3, v{t1}")

    def warm(self):
        mode = self.o.get("warm", None)
        if mode is None: return
        A = self.A
        gran = self.o.get("wgran", 128)
        pol = mode
        A(f"s_mov_b32 s84, s4\ns_mov_b32 s85, s5\ns_mov_b32 s86, {8*184320}\ns_mov_b32 s87, 0x20000")
        A(f"s_and_b32 s3, s2, 3\ns_lshl_b32 s3, s3, 11")
        A(f"s_add_u32 s88, s10, s3\ns_addc_u32 s89, s11, 0\ns_sub_u32 s90, {576*8192}, s3\ns_mov_b32 s91, 0x20000")
        A(f"s_lshr_b32 s3, s2, 3\ns_lshl_b32 s3, s3, 8")
        t0, t1, t2 = 72, 73, 74
        A(f"v_add_u32 v{t0}, s3, v0")
        nx = (8*184320 // gran + 8191) // 8192
        nw = (576*2048 // gran + 8191) // 8192
        lg = {128: 7, 64: 6}[gran]
        per_row = 2048 // gran
        lgr = {16: 4, 32: 5}[per_row]
        d = 76
        for i in range(max(nx, nw)):
            if i < nw:
                A(f"v_add_u32 v{t1}, {8192*i}, v{t0}")
                A(f"v_lshrrev_b32 v{t2}, {lgr}, v{t1}\nv_lshlrev_b32 v{t2}, 13, v{t2}")
                A(f"v_and_b32 v{t1}, {per_row-1}, v{t1}\nv_lshl_add_u32 v{t1}, v{t1}, {lg}, v{t2}")
                A(f"buffer_load_dword v{d}, v{t1}, s[88:91], 0 offen{pol}"); d += 1
                self.vm_issue(("warm",))
            if i < nx:
                A(f"v_add_u32 v{t1}, {8192*i}, v{t0}\nv_lshlrev_b32 v{t1}, {lg}, v{t1}")
                A(f"buffer_load_dword v{d}, v{t1}, s[84:87], 0 offen{pol}"); d += 1
                self.vm_issue(("warm",))

    def frag_reads(self, cc):
        st = cc % 3
        buf = cc & 1
        R = []
        for t in range(5):
            R.append(f"ds_read_b128 {vr(V_XF[buf]+4*t,4)}, v{V_XRD+st} offset:{t*1024}")
        for T in range(8):
            for hh in range(2):
                off = hh * 4 * WBLK + 64 * (T >> 1) + 8 * (T & 1)
                R.append(f"ds_read_b64_tr_b16 {ar(A_WF[buf]+4*T+2*hh,2)}, v{V_WRD+st} offset:{off}")
        return R

    def qproj(self):
        A = self.A
        NC = 18
        XS, WS, RC = 96, 97, 98
        XA = [V_XRD, V_XRD + 1, V_XRD + 2]
        WA = [V_WRD, V_WRD + 1, V_WRD + 2]
        XD = [V_XDMA, 62, 63]
        WD = [V_WDMA, 64, 65, 66]
        ntq = self.o.get('ntq', '')
        for n in (1, 2): A(f"v_add_u32 v{XD[n]}, {n*(18432-1024)}, v{V_XDMA}")
        for n in (1, 2, 3): A(f"v_add_u32 v{WD[n]}, {n*(8192-WBLK)}, v{V_WDMA}")
        def xdma(): return [f"buffer_load_dwordx4 v{XD[n]}, s[{S_X}:{S_X+3}], s{XS} offen offset:{n*1024}{ntq} lds" for n in range(3)]
        def wdma(): return [f"buffer_load_dwordx4 v{WD[n]}, s[{S_WQ}:{S_WQ+3}], s{WS} offen offset:{n*WBLK}{ntq} lds" for n in range(4)]
        if self.o.get("rot", True):
            A(f"s_and_b32 s3, s{S_H}, 3\ns_mul_i32 s3, s3, 5\ns_lshl_b32 s{RC}, s{S_B}, 1\ns_add_u32 s{RC}, s{RC}, s3")
            A(f"s_cmp_ge_u32 s{RC}, 18\ns_cselect_b32 s3, 18, 0\ns_sub_u32 s{RC}, s{RC}, s3")
        else:
            A(f"s_mov_b32 s{RC}, 0")
        def adv():
            return [f"s_add_u32 s{RC}, s{RC}, 1", f"s_cmp_ge_u32 s{RC}, 18", f"s_cselect_b32 s{RC}, 0, s{RC}",
                    f"s_lshl_b32 s{XS}, s{RC}, 6", f"s_add_u32 s{XS}, s{XS}, s{S_XSO}",
                    f"s_lshl_b32 s{WS}, s{RC}, 18", f"s_add_u32 s{WS}, s{WS}, s{S_WSO}"]
        for l in adv()[3:]: A(l)
        def chunk_dma_static(cc):
            A(f"s_add_u32 m0, s{S_XM0}, {STAGE[cc % 3]+XOFF}")
            A(f"s_nop 0")
            for l in xdma(): A(l)
            A(f"s_add_u32 m0, s{S_WM0}, {STAGE[cc % 3]}")
            A(f"s_nop 0")
            for l in wdma(): A(l)
            for l in adv(): A(l)
            self.vm_issue(("c", cc), 7)
        chunk_dma_static(0)
        if self.o.get("codewarm", True):
            A("s_getpc_b64 s[14:15]")
            A("K1_PC:")
            A("s_sub_u32 s14, s14, K1_PC-K1_START\ns_subb_u32 s15, s15, 0")
            A(f"s_lshr_b32 s3, s2, 3\ns_lshl_b32 s3, s3, 2\ns_add_u32 s3, s3, s{S_W}\ns_lshl_b32 s3, s3, 6")
            A(f"v_add_u32 v72, s3, v{V_LANE}\nv_lshlrev_b32 v72, 7, v72")
            A("v_min_u32 v72, K1_END-K1_START, v72")
            A("global_load_dword v73, v72, s[14:15]")
            self.vm_issue(("code",), 1)
        self.setup2()
        self.setup_kv()
        if self.o.get("fused"):
            P2M.P2(A, self.o, self.QS, fused=True).lane_consts(V_T)
        z = 68
        for i in range(4): A(f"v_mov_b32 v{z+i}, 0")
        A("s_nop 1")
        for i in range(10):
            A(f"v_mfma_f32_32x32x16_bf16 {vr(V_QACC+16*i,16)}, {vr(z,4)}, {vr(z,4)}, 0")
        for i in range(10):
            A(f"v_mfma_f32_32x32x16_bf16 {ar(A_O+16*i,16)}, {vr(z,4)}, {vr(z,4)}, 0")
        chunk_dma_static(1)
        A(f"s_waitcnt vmcnt({self.vm_wait_n({('c',0)})})")
        A("s_barrier")
        self.stamp()
        def reads(cc):
            buf, st = cc & 1, cc % 3
            R = []
            for t in range(5):
                R.append(f"ds_read_b128 {vr(V_XF[buf]+4*t,4)}, v{XA[st]} offset:{t*1024}")
            for T in range(8):
                for hh in range(2):
                    off = hh * 4 * WBLK + 64 * (T >> 1) + 8 * (T & 1)
                    R.append(f"ds_read_b64_tr_b16 {ar(A_WF[buf]+4*T+2*hh,2)}, v{WA[st]} offset:{off}")
            return R
        for r in reads(0): A(r)
        chunk_dma_static(2)
        nt = " nt" if self.o.get("nt", True) else ""
        def kv_one(kind, tile, slot, i):
            srd = S_K if kind == "K" else S_V
            vd = V_KDMA if kind == "K" else V_VDMA
            ring = KRING if kind == "K" else VRING
            return ([f"s_add_u32 m0, s{S_KM0W}, {ring + slot*TILE}", f"s_mov_b32 s{S_T2}, {tile*16384}"],
                    f"buffer_load_dwordx4 v{vd+i}, s[{srd}:{srd+3}], s{S_T2} offen offset:{i*BLK}{nt} lds")
        k0 = self.o.get("kvstart", 2)
        early = [("K", 0, 0), ("V", 0, 0), ("K", 1, 1), ("V", 1, 1)]
        kvplan = {}
        for n in range(8):
            k, tile, slot = early[n >> 1]
            kvplan[k0 + n] = [(k, tile, slot, 2*(n & 1)), (k, tile, slot, 2*(n & 1) + 1)]
        kvplan[17] = [("K", 2, 2, i) for i in range(4)]
        self.late_kv = [("K", 3, 3), ("V", 2, 2)]
        if not self.o.get("kvearly"):
            kvplan = {15: [("K", 0, 0, i) for i in range(4)], 16: [("K", 1, 1, i) for i in range(4)],
                      17: [("V", 0, 0, i) for i in range(4)]}
            self.late_kv = [("K", 2, 2), ("V", 1, 1), ("K", 3, 3), ("V", 2, 2)]
        dpos = self.o.get("qdpos", [2, 7, 12, 17, 22, 27, 32])
        m0pos = (dpos[0] - 1, dpos[3] - 1)
        for c in range(NC):
            A.c(f"---- Q-proj chunk {c}")
            if c + 1 < NC:
                A(f"s_waitcnt vmcnt({self.vm_wait_n({('c',c+1)})}) lgkmcnt(0)")
            else:
                A("s_waitcnt lgkmcnt(0)")
            A("s_barrier")
            buf = c & 1
            M = []
            for T in range(8):
                for t in range(5):
                    d = vr(V_QACC + (T*5 + t)*4, 4)
                    M.append(mfma(d, ar(A_WF[buf]+4*T, 4), vr(V_XF[buf]+4*t, 4), d))
            fill = [[] for _ in range(40)]
            dma = c + 3 < NC
            kv = kvplan.get(c, [])
            kpos = [35, 38] if len(kv) == 2 else [5, 14, 23, 32]
            busy = set(kpos[:len(kv)]) | {g - 1 for g in kpos[:len(kv)]}
            if dma: busy |= set(dpos) | set(m0pos)
            R = reads(c + 1) if c + 1 < NC else []
            slots = [g for g in range(0, 34) if g not in busy]
            for i, r in enumerate(R):
                fill[slots[(i * len(slots)) // len(R)]].append(r)
            if dma:
                st = STAGE[c % 3]
                fill[m0pos[0]].append(f"s_add_u32 m0, s{S_XM0}, {st + XOFF}")
                xd, wd = xdma(), wdma()
                for n in range(3): fill[dpos[n]].append(xd[n])
                fill[m0pos[1]].append(f"s_add_u32 m0, s{S_WM0}, {st}")
                for n in range(4): fill[dpos[3+n]].append(wd[n])
                self.vm_issue(("c", c + 3), 7)
                sal = adv()
                fill[33] += sal[0:3]; fill[36] += sal[3:5]; fill[39] += sal[5:7]
            for n, (k, tile, slot, i) in enumerate(kv):
                pre, l = kv_one(k, tile, slot, i)
                fill[kpos[n] - 1] += pre
                fill[kpos[n]].append(l)
                self.vm_issue((k, tile), 1)
            for m in range(40):
                A(M[m])
                for l in fill[m]: A(l)
        self.qloop_lines = []

    def qconvert(self):
        A = self.A
        S0 = V_S[0]
        A(f"s_mov_b32 s{S_SCALE+1}, 0x3e0293ee\ns_mov_b32 s{S_SCALE+2}, 0x3e0293ee")
        A(f"s_waitcnt vmcnt({self.vm_wait_n({('K',0)})})")
        A("s_barrier")
        self.kslot = 0; self.vslot = 0
        for n in range(8): A(self.k_read(n, 0))
        late = list(self.late_kv)
        def conv(s):
            L = []
            for t in range(5):
                for half in range(2):
                    T = 2*s + half
                    src = V_QACC + (T*5 + t)*4
                    if s == 0:
                        L.append(f"v_pk_mul_f32 v[{src}:{src+1}], v[{src}:{src+1}], s[{S_SCALE+1}:{S_SCALE+2}]")
                        L.append(f"v_pk_mul_f32 v[{src+2}:{src+3}], v[{src+2}:{src+3}], s[{S_SCALE+1}:{S_SCALE+2}]")
                    else:
                        for r in range(4): L.append(f"v_mul_f32 v{src+r}, s{S_SCALE+1}, v{src+r}")
                    dst = V_Q + 16*t + 4*s + 2*half
                    L.append(f"v_cvt_pk_bf16_f32 v{dst}, v{src}, v{src+1}")
                    L.append(f"v_cvt_pk_bf16_f32 v{dst+1}, v{src+2}, v{src+3}")
            return L
        def qk(s):
            M = []
            for ktl in range(2):
                for t in range(5):
                    d = vr(S0 + 8*t + 4*ktl, 4)
                    M.append(mfma(d, ar(A_KF + 4*(ktl*4+s), 4), vr(V_Q + 16*t + 4*s, 4), "0" if s == 0 else d))
            return M
        def kvd(n):
            k, tile, slot = late[n]
            self.vm_issue((k, tile), 4)
            return self.kv_dma(k, tile, slot)
        for l in conv(0): A(l)
        for l in kvd(0): A(l)
        A("s_waitcnt lgkmcnt(0)")
        for s in range(4):
            M = qk(s)
            C = conv(s + 1) if s < 3 else []
            for i, m in enumerate(M):
                A(m)
                for l in C[6*i:6*i+6]: A(l)
            if s + 1 < len(late):
                for l in kvd(s + 1): A(l)

    def k_read(self, n, half, slot=0):
        kt = 2*half + (n >> 2); s = n & 3
        return f"ds_read_b128 {ar(A_KF+4*n,4)}, v{V_KLANE} offset:{KRING + slot*TILE + kt*256 + s*64}"
    def v_read(self, n, mb, slot=0):
        dt = n >> 1; hh = n & 1
        return f"ds_read_b64_tr_b16 {ar(A_VF+4*dt+2*hh,2)}, v{V_VAD} offset:{slot*TILE + mb*8*BLK + hh*512 + dt*32}"
    def qk_mfmas(self, sb, first_c=None):
        M = []
        for ktl in range(2):
            for s in range(4):
                for t in range(5):
                    d = vr(sb + 8*t + 4*ktl, 4)
                    if s == 0:
                        c = vr(V_CI + 4*t, 4) if first_c is None else first_c
                    else:
                        c = d
                    M.append(mfma(d, ar(A_KF + 4*(ktl*4+s), 4), vr(V_Q + 16*t + 4*s, 4), c))
        return M
    def pv_mfmas(self, sb):
        M = []
        for dt in range(8):
            for t in range(5):
                d = ar(A_O + (dt*5 + t)*4, 4)
                M.append(mfma(d, ar(A_VF + 4*dt, 4), vr(sb + 8*t, 4), d))
        return M
    def item(self, it, sb, khalf, vmb, dma):
        k = it[0]
        if k == 'exp':
            r = sb + 8*it[1] + it[2]
            return [f"v_exp_f32 v{r}, v{r}"]
        if k == 'add':
            r = sb + 8*it[1] + it[2]
            return [f"v_add_f32 v{V_L+it[1]}, v{V_L+it[1]}, v{r}"]
        if k == 'cvt':
            r = sb + 8*it[1]
            p = it[2]
            return [f"v_cvt_pk_bf16_f32 v{r+p}, v{r+2*p}, v{r+2*p+1}"]
        if k == 'K':
            return [self.k_read(it[1], khalf, self.kslot)] if khalf is not None else []
        if k == 'V':
            return [self.v_read(it[1], vmb, self.vslot)] if vmb is not None else []
        if k == 'DMA':
            if not dma: return []
            n = len(dma) // it[2]
            return dma[it[1]*n:(it[1]+1)*n]
    def phase(self, M, gaps, sb, khalf=None, vmb=None, dma=None, pre=None, head=None):
        A = self.A
        for i in range(40):
            if M is not None:
                A(M[i])
            elif gaps is not None and A.lines[-1].startswith("v_exp_f32") and gaps[i] and gaps[i][0][0] != 'exp':
                A("s_nop 0")
            if head and i in head:
                for l in head[i]: A(l)
            if gaps is not None:
                for it in gaps[i]:
                    for l in self.item(it, sb, khalf, vmb, dma): A(l)

    def loop_dma(self, kind):
        if self.o.get("loop_nodma"): return []
        nt = " nt" if self.o.get("nt", True) else ""
        srd = S_K if kind == "K" else S_V
        vd = V_KDMA if kind == "K" else V_VDMA
        so = S_KSOFF if kind == "K" else S_VSOFF
        return [f"buffer_load_dwordx4 v{vd+i}, s[{srd}:{srd+3}], s{so} offen offset:{i*BLK}{nt} lds" for i in range(4)]

    def slot_adv(self, s, base):
        return [f"s_add_u32 s{s}, s{s}, {TILE}",
                f"s_cmp_ge_u32 s{s}, s{S_T0}" if False else None]

    def warmwo(self):
        A = self.A
        if self.o.get("warmwo") is not None:
            pol = self.o.get("warmwo")
            if self.o.get("fused"):
                A(f"s_lshr_b32 s3, s{S_H}, 2\ns_lshl_b32 s3, s3, 5\ns_lshl_b32 s14, s{S_B}, 2\ns_add_u32 s3, s3, s14\ns_and_b32 s14, s{S_H}, 3\ns_add_u32 s3, s3, s14\ns_mul_i32 s3, s3, {288*128}")
            else:
                A(f"s_lshl_b32 s3, s{S_B}, 4\ns_add_u32 s3, s3, s{S_H}\ns_mul_i32 s3, s3, {288*128}")
            g = self.o.get("wogran", 128)
            sh = {128: 7, 64: 6}[g]
            A(f"v_lshlrev_b32 v{V_T+12}, {sh}, v0\nv_add_u32 v{V_T+12}, s3, v{V_T+12}")
            A(f"s_add_u32 s14, s3, {288*128}")
            A(f"s_mov_b32 s90, s14\ns_mov_b32 s91, 0x20000")
            n = (288*128 + 256*g - 1) // (256*g)
            for i in range(n):
                if i: A(f"v_add_u32 v{V_T+12}, {256*g}, v{V_T+12}")
                A(f"buffer_load_dword v{V_T+14}, v{V_T+12}, s[88:91], 0 offen{pol}")

    def attention(self):
        A = self.A
        W = best_schedule(tuple(self.o.get("dmagaps", (41,51,61,71))))[1]
        GA, GB = W[:40], W[40:]
        S0, S1 = V_S
        A.c("---- attention prologue")
        A(f"v_add_u32 v{V_VAD}, {VRING}, v{V_VLANE}")
        for n in range(8): A(self.k_read(n, 1))
        for t in range(5): A(f"v_mov_b32 v{V_L+t}, 0")
        A("s_nop 4")
        T = V_T
        for t in range(5):
            r = S0 + 8*t
            A(f"v_max3_f32 v{T+t}, v{r}, v{r+1}, v{r+2}")
            A(f"v_max3_f32 v{T+t}, v{T+t}, v{r+3}, v{r+4}")
            A(f"v_max3_f32 v{T+t}, v{T+t}, v{r+5}, v{r+6}")
            A(f"v_max_f32 v{T+t}, v{T+t}, v{r+7}")
        for sw in ("v_permlane32_swap_b32", "v_permlane16_swap_b32"):
            for t in range(5): A(f"v_mov_b32 v{T+5+t}, v{T+t}")
            A("s_nop 1")
            for t in range(5): A(f"{sw} v{T+t}, v{T+5+t}")
            A("s_nop 1")
            for t in range(5): A(f"v_max_f32 v{T+t}, v{T+t}, v{T+5+t}")
        for t in range(5):
            for i in range(4):
                A(f"v_sub_f32 v{V_CI+4*t+i}, 0, v{T+t}")
            for i in range(0, 8, 2):
                A(f"v_pk_add_f32 v[{S0+8*t+i}:{S0+8*t+i+1}], v[{S0+8*t+i}:{S0+8*t+i+1}], v[{V_CI+4*t}:{V_CI+4*t+1}]")
        self.phase(None, GA, S0, khalf=None)
        if not self.o.get("latewarm", True): self.warmwo()
        if self.o.get("fused"):
            A(f"v_mov_b32 v219, 0")
            A(f"global_load_dword v218, v219, s[100:101] sc1")
        A(f"s_mov_b32 s{S_KSOFF}, {4*16384}")
        A(f"s_mov_b32 s{S_VSOFF}, {3*16384}")
        A(f"s_mov_b32 s{S_LOOP}, 4")
        WL = "s_waitcnt lgkmcnt(0)"
        def ph1(jm):
            self.vslot = jm
            head = {0: [f"s_add_u32 m0, s{S_KM0W}, {KRING + jm*TILE}"], 36: [f"s_add_u32 s{S_KSOFF}, s{S_KSOFF}, {0 if self.o.get('loop_l2') else 16384}"], 38: [WL]}
            self.phase(self.qk_mfmas(S1), GB, S0, vmb=0, dma=self.loop_dma("K"), head=head)
        def ph2(jm, head_extra=None):
            self.kslot = (jm + 1) % 4
            head = {38: [WL]}
            head.update(head_extra or {})
            self.phase(self.pv_mfmas(S0), GA, S1, khalf=0, head=head)
        def ph3(jm):
            self.vslot = jm
            head = {0: [f"s_add_u32 m0, s{S_KM0W}, {VRING + ((jm+3)%4)*TILE}"], 36: [f"s_add_u32 s{S_VSOFF}, s{S_VSOFF}, {0 if self.o.get('loop_l2') else 16384}"], 38: [WL]}
            self.phase(self.qk_mfmas(S0), GB, S1, vmb=1, dma=self.loop_dma("V"), head=head)
        def ph4(jm, head_extra=None):
            self.kslot = (jm + 1) % 4
            head = {38: ["s_waitcnt vmcnt(16) lgkmcnt(0)" if not self.o.get("loop_novm") else "s_waitcnt lgkmcnt(0)"], 39: ["s_barrier"] if not self.o.get("loop_nobar") else []}
            for k, v in (head_extra or {}).items(): head[k] = v + head.get(k, [])
            self.phase(self.pv_mfmas(S1), GA, S0, khalf=1, head=head)
        A("s_waitcnt vmcnt(16) lgkmcnt(0)")
        A("s_barrier")
        self.stamp()
        A(".p2align 6")
        A("K1_LOOP:")
        start = len(A.lines)
        for jm in range(4):
            if jm == self.o.get("latewarm_jm", 1) and self.o.get("latewarm", True) and self.o.get("warmwo") is not None:
                A(f"s_cmp_eq_u32 s{S_LOOP}, 1")
                A("s_cbranch_scc1 K1_WARM")
                A("K1_WARMRET:")
            ph1(jm)
            if jm == 3:
                ph2(jm, {30: [f"s_cmp_eq_u32 s{S_LOOP}, 1"]})
                A("s_cbranch_scc1 K1_TAIL")
            else:
                ph2(jm)
            ph3(jm)
            if jm == 3:
                ph4(jm, {30: [f"s_sub_u32 s{S_LOOP}, s{S_LOOP}, 1"]})
            else:
                ph4(jm)
        A("s_branch K1_LOOP")
        self.loop_lines = A.lines[start:]
        if self.o.get("latewarm", True) and self.o.get("warmwo") is not None:
            A("K1_WARM:")
            self.warmwo()
            A("s_branch K1_WARMRET")
        A("K1_TAIL:")
        if self.o.get("fused") and self.o.get("xccfast", False):
            A(f"s_lshl_b32 s3, s{S_BR}, 3\ns_add_u32 s3, s3, s{S_B}\ns_lshl_b32 s3, s3, 4\ns_add_u32 s3, s3, s{S_H}\ns_lshr_b32 s3, s3, 3\ns_lshl_b32 s3, s3, 2\ns_add_u32 s3, s3, 16")
            A("v_mov_b32 v219, s3")
            A("global_load_dword v217, v219, s[100:101] sc1") if False else A("global_load_dword v220, v219, s[100:101] sc1")
        self.vslot = 3
        self.phase(None, GB, S1, vmb=1, dma=None)
        fused = self.o.get("fused")
        T = V_T
        for sw in ("v_permlane32_swap_b32", "v_permlane16_swap_b32"):
            for t in range(5): A(f"v_mov_b32 v{T+t}, v{V_L+t}")
            A("s_nop 1")
            for t in range(5): A(f"{sw} v{V_L+t}, v{T+t}")
            A("s_nop 1")
            for t in range(5): A(f"v_add_f32 v{V_L+t}, v{V_L+t}, v{T+t}")
        RC, LO, OWN = 24, 29, 176
        A("s_mov_b32 s14, 0x4e800000")
        A(f"v_cmp_nle_f32 s[44:45], v{V_L}, s14")
        for t in range(1, 5):
            A(f"v_cmp_nle_f32 vcc, v{V_L+t}, s14" if False else f"v_cmp_nle_f32 s[48:49], v{V_L+t}, s14")
            A("s_nop 1")
            A("s_or_b64 s[44:45], s[44:45], s[48:49]")
        A("s_cmp_lg_u64 s[44:45], 0\ns_cselect_b32 s14, 1, 0")
        if self.o.get("forceslow"): A("s_mov_b32 s14, 1")
        A(f"s_lshl_b32 s15, s{S_W}, 2\ns_add_u32 s15, s15, {SPARE}")
        A(f"v_mov_b32 v{T}, s15\nv_mov_b32 v{T+1}, s14")
        A(f"ds_write_b32 v{T}, v{T+1}")
        A("s_waitcnt vmcnt(0) lgkmcnt(0)")
        A("s_barrier")
        A(f"v_mov_b32 v{T}, {SPARE}")
        A(f"ds_read_b128 v[{T+3}:{T+6}], v{T}")
        A("s_waitcnt lgkmcnt(0)")
        A(f"v_or3_b32 v{T+3}, v{T+3}, v{T+4}, v{T+5}\nv_or_b32 v{T+3}, v{T+3}, v{T+6}")
        A("s_nop 0")
        A(f"v_readfirstlane_b32 s14, v{T+3}")
        A("s_nop 3")
        A("s_cmp_lg_u32 s14, 0")
        A("s_cbranch_scc1 K1_SLOW")
        A("K1_SLOWRET:")
        for t in range(5): A(f"v_rcp_f32 v{RC+t}, v{V_L+t}")
        A(f"v_lshlrev_b32 v{LO}, 4, v{V_LANE}")
        if fused:
            self.p2 = P2M.P2(A, self.o, self.QS, fused=True)
            A(f"v_readfirstlane_b32 s{P2M.S_NONCE}, v218")
            A("s_nop 3")
            A(f"s_cmp_lg_u32 s{P2M.S_NONCE}, 0")
            A("s_cbranch_scc1 K1_HAVENONCE")
            self.p2.get_nonce("f")
            A("K1_HAVENONCE:")
            if self.o.get("xccfast", False):
                A(f"v_readfirstlane_b32 s14, v220")
                A("s_nop 3")
                A(f"s_and_b32 s15, s{S_H}, 4\ns_lshl_b32 s15, s15, 2\ns_lshr_b32 s14, s14, s15\ns_and_b32 s14, s14, 0xffff")
                A("s_and_b32 s15, s14, 15\ns_mul_i32 s15, s15, 0x1111")
                A("s_cmp_eq_u32 s14, s15\ns_cselect_b32 s3, 1, 0")
                A("s_and_b32 s15, s14, 8\ns_lshr_b32 s15, s15, 3\ns_and_b32 s3, s3, s15")
                A(f"s_mov_b32 s{P2M.S_FAST}, s3")
            self.p2.setup()
            self.p2.prefetch_w()
        self.stamp()
        pol = ' sc1' if fused else self.o.get('nto', '')
        M = self.pv_mfmas(S1)
        def norm(t, s, n):
            b = 32 + (n % 3) * 8
            d = OWN + 16*t + 4*s
            L = []
            for half in range(2):
                a0 = A_O + ((2*s+half)*5 + t)*4
                for r in range(4): L.append(f"v_accvgpr_read_b32 v{b+4*half+r}, a{a0+r}")
            for r in range(8): L.append(f"v_mul_f32 v{b+r}, v{RC+t}, v{b+r}")
            for p in range(4): L.append(f"v_cvt_pk_bf16_f32 v{d+p}, v{b+2*p}, v{b+2*p+1}")
            st = [f"s_mov_b32 s14, {t*self.QS + s*1024}",
                  f"buffer_store_dwordx4 {vr(d,4)}, v{LO}, s[{S_O}:{S_O+3}], s14 offen{pol}"]
            return L, st
        stores = []
        work = []
        n = 0
        for s in range(4):
            for t in range(5):
                L, st = norm(t, s, n); n += 1
                work.append((s, L if fused else L + st))
                stores.append(st)
        wi = 0
        pend = []
        for m in range(40):
            A(M[m])
            while wi < len(work) and m >= 10*work[wi][0] + 9 + 4 and len(pend) < 8:
                pend += work[wi][1]; wi += 1
            for l in pend[:6]: A(l)
            pend = pend[6:]
        A("s_nop 7")
        for l in pend: A(l)
        while wi < len(work):
            for l in work[wi][1]: A(l)
            wi += 1
        if fused:
            if self.o.get("xccfast", False):
                A(f"s_cmp_lg_u32 s{P2M.S_FAST}, 0")
                A("s_cbranch_scc1 K1_OFAST")
                for st in stores:
                    for l in st: A(l)
                A("s_branch K1_ODONE")
                A("K1_OFAST:")
                for st in stores:
                    for l in st: A(l.replace(" sc1", ""))
                A("K1_ODONE:")
            else:
                A(f"s_mov_b32 s{P2M.S_FAST}, 0")
                for st in stores:
                    for l in st: A(l)

    def slow_path(self):
        A = self.A
        S0, S1 = V_S
        T = V_T
        M = V_CI
        KA, VA = V_CI + 8, V_CI + 9
        SU = 44
        nt = " nt" if self.o.get("nt", True) else ""
        A("K1_SLOW:")
        for i in range(4): A(f"v_mov_b32 v{S0+i}, 0")
        for t in range(5): A(f"v_mov_b32 v{V_L+t}, 0\nv_mov_b32 v{M+t}, 0xff7fffff")
        for i in range(10):
            A(f"v_mfma_f32_32x32x16_bf16 {ar(A_O+16*i,16)}, {vr(S0,4)}, {vr(S0,4)}, 0")
        A(f"s_mov_b32 s{SU}, 0")
        A("K1_SLOOP:")
        A(f"s_and_b32 s45, s{SU}, 1")
        A("s_cmp_lg_u32 s45, 0")
        A("s_cbranch_scc1 K1_SNODMA")
        A("s_barrier")
        A(f"s_lshr_b32 s46, s{SU}, 1\ns_lshl_b32 s46, s46, 14")
        A(f"s_add_u32 m0, s{S_KM0W}, {KRING}")
        A("s_nop 0")
        for i in range(4): A(f"buffer_load_dwordx4 v{V_KDMA+i}, s[{S_K}:{S_K+3}], s46 offen offset:{i*BLK}{nt} lds")
        A(f"s_add_u32 m0, s{S_KM0W}, {VRING}")
        A("s_nop 0")
        for i in range(4): A(f"buffer_load_dwordx4 v{V_VDMA+i}, s[{S_V}:{S_V+3}], s46 offen offset:{i*BLK}{nt} lds")
        A("s_waitcnt vmcnt(0)")
        A("s_barrier")
        A("K1_SNODMA:")
        A(f"s_lshl_b32 s46, s45, 9\ns_mul_i32 s48, s45, {8*BLK}")
        A(f"v_add_u32 v{KA}, s46, v{V_KLANE}\nv_add_u32 v{VA}, s48, v{V_VAD}")
        for n in range(8):
            A(f"ds_read_b128 {ar(A_KF+4*n,4)}, v{KA} offset:{KRING + (n >> 2)*256 + (n & 3)*64}")
        A("s_waitcnt lgkmcnt(0)")
        for n in range(16):
            A(f"ds_read_b64_tr_b16 {ar(A_VF+4*(n >> 1)+2*(n & 1),2)}, v{VA} offset:{(n & 1)*512 + (n >> 1)*32}")
        for m in self.qk_mfmas(S0, first_c="0"): A(m)
        A("s_nop 7\ns_nop 3")
        for t in range(5):
            r = S0 + 8*t
            A(f"v_max3_f32 v{T+t}, v{r}, v{r+1}, v{r+2}\nv_max3_f32 v{T+t}, v{T+t}, v{r+3}, v{r+4}")
            A(f"v_max3_f32 v{T+t}, v{T+t}, v{r+5}, v{r+6}\nv_max_f32 v{T+t}, v{T+t}, v{r+7}")
        for sw in ("v_permlane32_swap_b32", "v_permlane16_swap_b32"):
            for t in range(5): A(f"v_mov_b32 v{T+5+t}, v{T+t}")
            A("s_nop 1")
            for t in range(5): A(f"{sw} v{T+t}, v{T+5+t}")
            A("s_nop 1")
            for t in range(5): A(f"v_max_f32 v{T+t}, v{T+t}, v{T+5+t}")
        for t in range(5):
            A(f"v_max_f32 v{T+t}, v{T+t}, v{M+t}")
            A(f"v_sub_f32 v{T+5+t}, v{M+t}, v{T+t}")
            A(f"v_mov_b32 v{M+t}, v{T+t}")
        for t in range(5): A(f"v_exp_f32 v{T+5+t}, v{T+5+t}")
        A("s_nop 0")
        for t in range(5): A(f"v_mul_f32 v{V_L+t}, v{V_L+t}, v{T+5+t}")
        for dt in range(8):
            for t in range(5):
                a0 = A_O + (dt*5 + t)*4
                for r in range(4): A(f"v_accvgpr_read_b32 v{S1+r}, a{a0+r}")
                for r in range(4): A(f"v_mul_f32 v{S1+r}, v{S1+r}, v{T+5+t}")
                for r in range(4): A(f"v_accvgpr_write_b32 a{a0+r}, v{S1+r}")
        for t in range(5):
            r = S0 + 8*t
            for i in range(8): A(f"v_sub_f32 v{r+i}, v{r+i}, v{M+t}")
            for i in range(8): A(f"v_exp_f32 v{r+i}, v{r+i}")
            A("s_nop 0")
            for i in range(8): A(f"v_add_f32 v{V_L+t}, v{V_L+t}, v{r+i}")
            for p in range(4): A(f"v_cvt_pk_bf16_f32 v{r+p}, v{r+2*p}, v{r+2*p+1}")
        A("s_waitcnt lgkmcnt(0)")
        A("s_nop 1")
        for m in self.pv_mfmas(S0): A(m)
        A(f"s_add_u32 s{SU}, s{SU}, 1\ns_cmp_lt_u32 s{SU}, 32")
        A("s_cbranch_scc1 K1_SLOOP")
        for sw in ("v_permlane32_swap_b32", "v_permlane16_swap_b32"):
            for t in range(5): A(f"v_mov_b32 v{T+t}, v{V_L+t}")
            A("s_nop 1")
            for t in range(5): A(f"{sw} v{V_L+t}, v{T+t}")
            A("s_nop 1")
            for t in range(5): A(f"v_add_f32 v{V_L+t}, v{V_L+t}, v{T+t}")
        for t in range(5):
            for i in range(4): A(f"v_mov_b32 v{S1+8*t+i}, 0")
        A("s_barrier")
        A("s_branch K1_SLOWRET")

    def epilogue(self):
        pass

    def build(self):
        A = self.A
        A(".p2align 8\n.type k1_kernel,@function\nk1_kernel:")
        A("K1_START:")
        self.stamp()
        self.setup()
        self.qproj()
        self.stamp()
        self.qconvert()
        self.attention()
        self.stamp()
        self.epilogue()
        self.stamp()
        if self.o.get("fused"):
            p = self.p2
            self.in_p2 = True
            p.main(self.stamp)
            p.reduce(self.stamp)
            self.stamp()
        self.dump_stamps()
        A("s_endpgm")
        self.slow_path()
        A("K1_END:")
        A("s_endpgm")
        return A
```

```python
from asmlib import *
from sched import window_schedule, best_schedule
import p2 as P2M

BLK = 1056
TILE = 16 * BLK
KRING = 0
VRING = 4 * TILE
SPARE = 8 * TILE
LDS_TOTAL = 163840
STAGE = [SPARE, VRING + 2 * TILE, KRING + 2 * TILE]
XOFF = 0
WOFF = 10240
WBLK = 1088
BIAS = 2400

V_TID, V_LANE = 0, 1
V_XDMA, V_WDMA = 2, 3
V_KDMA = 6
V_VDMA = 10
V_KLANE, V_VLANE = 14, 15
V_Q = 16
V_S = [96, 136]
V_CI = 176
V_L = 196
V_T = 201
V_KAD, V_VAD = 216, 217
V_QACC = 96
V_XF = [16, 36]
V_XRD = 56
V_WRD = 59
A_O = 0
A_KF = 160
A_VF = 192
A_WF = [160, 192]
A_LACC = 236
A_ONES = 240

S_X, S_WQ, S_K, S_V, S_O = 16, 20, 24, 28, 32
S_W, S_BR, S_B, S_H = 36, 37, 38, 39
S_XSO, S_XM0, S_WSO, S_WM0 = 40, 41, 42, 43
S_T0, S_T1, S_T2 = 44, 45, 46
S_KM0W = 47
S_KSLOT, S_VSLOT = 48, 49
S_KDSLOT, S_VDSLOT = 50, 51
S_KSOFF, S_VSOFF = 52, 53
S_LOOP = 54
S_SCALE = 55
S_FLAG = 56

def mfma(d, a, b, c):
    return f"v_mfma_f32_16x16x32_bf16 {d}, {a}, {b}, {c}"

class K1:
    def __init__(self, opts=None):
        self.o = opts or {}
        self.A = Asm()
        self.QS = 131072 + self.o.get("qpad", 0)
        self.vm = []
    def stamp(self, force=False):
        if not self.o.get("prof"): return
        if self.o.get("profp2") and not force and not getattr(self, "in_p2", False) and getattr(self, "nst", 0) >= 1: return
        i = self.nst = getattr(self, "nst", 0) + 1
        b = 60 + (i-1)*2
        assert b + 1 <= 87
        self.A(f"{'s_memtime' if self.o.get('profcyc') else 's_memrealtime'} s[{b}:{b+1}]")
    def dump_stamps(self, wgs="s2"):
        if not self.o.get("prof"): return
        A = self.A
        if self.o.get("profdbg") is not None:
            A("s_waitcnt lgkmcnt(0) vmcnt(0)")
            A(f"s_or_b32 s3, s{S_W}, 0\ns_cmp_lg_u32 s3, 0\ns_cbranch_scc1 K1_NODBG")
            A(f"s_cmp_lg_u32 s2, {self.o.get('profdbg')}\ns_cbranch_scc1 K1_NODBG")
            A("s_mov_b64 exec, 1")
            for i in range(1, self.nst):
                A(f"s_sub_u32 s3, s{60+2*i}, s60")
                A(f"v_mov_b32 v2, s3\nv_mov_b32 v4, {4*i}")
                A("global_store_dword v4, v2, s[100:101]")
                A("s_nop 1")
            A("K1_NODBG:")
            return
        A("s_waitcnt lgkmcnt(0) vmcnt(0)")
        A("s_load_dwordx2 s[4:5], s[0:1], 96")
        A("s_waitcnt lgkmcnt(0)")
        A(f"s_add_u32 s4, s4, {self.o.get('profoff', 128<<20)}\ns_addc_u32 s5, s5, 0\ns_mov_b32 s6, 0x100000\ns_mov_b32 s7, 0x20000")
        A(f"s_lshl_b32 s3, s2, 2\ns_add_u32 s3, s3, s{S_W}\ns_lshl_b32 s3, s3, 7")
        A("s_mov_b64 exec, 1")
        for i in range(self.nst):
            b = 60 + i*2
            A(f"v_mov_b32 v2, s{b}\nv_mov_b32 v3, s{b}\nv_mov_b32 v4, s3")
            A(f"buffer_store_dwordx2 v[2:3], v4, s[4:7], 0 offen offset:{i*8}")
            A("s_nop 1")
    def vm_issue(self, tag, n=1):
        self.vm += [tag] * n
    def vm_wait_n(self, tags):
        last = max(i for i, t in enumerate(self.vm) if t in tags)
        return min(63, len(self.vm) - 1 - last)

    def setup(self):
        A = self.A
        A("s_cmp_ge_u32 s2, 256")
        A("s_cbranch_scc1 K1_END")
        if self.o.get("badmap"):
            A("s_lshr_b32 s3, s2, 5")
            A("s_and_b32 s14, s2, 31")
        else:
            A("s_and_b32 s3, s2, 7")
            A("s_lshr_b32 s14, s2, 3")
        A(f"s_lshr_b32 s{S_BR}, s3, 2")
        A("s_and_b32 s3, s3, 3")
        A("s_lshl_b32 s3, s3, 2")
        A(f"s_and_b32 s{S_H}, s14, 3")
        A(f"s_add_u32 s{S_H}, s{S_H}, s3")
        A(f"s_lshr_b32 s{S_B}, s14, 2")
        A(f"s_mul_i32 s3, s{S_BR}, 40")
        A("s_add_u32 s14, s0, s3")
        A("s_addc_u32 s15, s1, 0")
        A("s_load_dwordx8 s[4:11], s[14:15], 0")
        A("s_load_dwordx2 s[12:13], s[0:1], 96")
        A("s_load_dwordx2 s[88:89], s[14:15], 32")
        A("s_load_dwordx2 s[100:101], s[0:1], 88")
        A("s_load_dwordx2 s[58:59], s[0:1], 80")
        A(f"v_and_b32 v{V_LANE}, 63, v0")
        A(f"v_lshrrev_b32 v{V_T}, 6, v0")
        A("s_nop 0")
        A(f"v_readfirstlane_b32 s{S_W}, v{V_T}")
        L = V_LANE
        t0, t1, t2 = V_T, V_T + 1, V_T + 2
        A(f"v_lshrrev_b32 v{t0}, 2, v{L}")
        A(f"v_mul_u32_u24 v{t0}, 1152, v{t0}")
        A(f"v_lshrrev_b32 v{t1}, 4, v{L}")
        A(f"v_sub_u32 v{t1}, 0, v{t1}")
        A(f"v_and_b32 v{t1}, 3, v{t1}")
        A(f"v_and_b32 v{t2}, 3, v{L}")
        A(f"v_xor_b32 v{t1}, v{t1}, v{t2}")
        A(f"v_lshl_add_u32 v{V_XDMA}, v{t1}, 4, v{t0}")
        A(f"v_lshrrev_b32 v{t0}, 5, v{L}")
        A(f"v_lshlrev_b32 v{t0}, 16, v{t0}")
        A(f"v_and_b32 v{t1}, 31, v{L}")
        A(f"v_lshl_add_u32 v{V_WDMA}, v{t1}, 4, v{t0}")
        A("s_waitcnt lgkmcnt(0)")
        if self.o.get("fused") or self.o.get("k2b"):
            A(f"s_or_b32 s14, s2, s{S_W}")
            A("s_cmp_lg_u32 s14, 0")
            A("s_cbranch_scc1 K1_NONON")
            A("s_memrealtime s[44:45]")
            A("s_waitcnt lgkmcnt(0)")
            A("s_or_b32 s44, s44, 1")
            A(f"v_mov_b32 v{V_T}, 0\nv_mov_b32 v{V_T+1}, s44")
            A(f"global_store_dword v{V_T}, v{V_T+1}, s[100:101] sc1")
            A("K1_NONON:")
        if self.o.get("fused") and self.o.get("xccfast", False):
            A(f"s_cmp_lg_u32 s{S_W}, 0")
            A("s_cbranch_scc1 K1_NOXCC")
            A("s_getreg_b32 s44, hwreg(HW_REG_XCC_ID, 0, 3)")
            A(f"s_lshl_b32 s45, s{S_BR}, 3\ns_add_u32 s45, s45, s{S_B}\ns_lshl_b32 s45, s45, 4\ns_add_u32 s45, s45, s{S_H}")
            A("s_or_b32 s44, s44, 8")
            A("s_and_b32 s46, s45, 7\ns_lshl_b32 s46, s46, 2\ns_lshl_b32 s44, s44, s46")
            A("s_lshr_b32 s45, s45, 3\ns_lshl_b32 s45, s45, 2\ns_add_u32 s45, s45, 16")
            A(f"v_mov_b32 v{V_T}, s45\nv_mov_b32 v{V_T+1}, s44")
            A("s_mov_b64 s[44:45], exec\ns_mov_b64 exec, 1")
            A(f"global_atomic_or v{V_T}, v{V_T+1}, s[100:101] sc1")
            A("s_mov_b64 exec, s[44:45]")
            A("K1_NOXCC:")
        w, b, h, br = S_W, S_B, S_H, S_BR
        A(f"s_mul_i32 s3, s{b}, 184320")
        A(f"s_add_u32 s{S_X}, s4, s3\ns_addc_u32 s{S_X+1}, s5, 0\ns_mov_b32 s{S_X+2}, 184320\ns_mov_b32 s{S_X+3}, 0x20000")
        A(f"s_lshl_b32 s3, s{h}, 9")
        A(f"s_add_u32 s{S_WQ}, s10, s3\ns_addc_u32 s{S_WQ+1}, s11, 0")
        A(f"s_sub_u32 s{S_WQ+2}, {576*8192}, s3\ns_mov_b32 s{S_WQ+3}, 0x20000")
        A(f"s_lshl_b32 s3, s{b}, 4\ns_add_u32 s3, s3, s{h}")
        A("s_lshr_b32 s14, s3, 14\ns_lshl_b32 s3, s3, 18")
        for (srd, lo) in ((S_K, 6), (S_V, 8)):
            A(f"s_add_u32 s{srd}, s{lo}, s3\ns_addc_u32 s{srd+1}, s{lo+1}, s14")
            A(f"s_sub_u32 s{srd}, s{srd}, {BIAS}\ns_subb_u32 s{srd+1}, s{srd+1}, 0")
            A(f"s_mov_b32 s{srd+2}, {262144+BIAS}\ns_mov_b32 s{srd+3}, 0x20000")
        A(f"s_lshl_b32 s3, s{br}, 3\ns_add_u32 s3, s3, s{b}")
        A(f"s_mul_i32 s3, s3, {10*self.QS}")
        A(f"s_lshl_b32 s14, s{h}, 1\ns_lshr_b32 s15, s{w}, 1\ns_add_u32 s14, s14, s15")
        A("s_lshl_b32 s14, s14, 12")
        A("s_add_u32 s3, s3, s14")
        A(f"s_and_b32 s15, s{w}, 1\ns_mul_i32 s15, s15, {5*self.QS}")
        A("s_add_u32 s3, s3, s15")
        A(f"s_add_u32 s{S_O}, s12, s3\ns_addc_u32 s{S_O+1}, s13, 0")
        A(f"s_mov_b32 s{S_O+2}, {4*self.QS+4096}\ns_mov_b32 s{S_O+3}, 0x20000")
        A(f"s_mul_i32 s3, s{w}, 3\ns_lshl_b32 s14, s{w}, 1\ns_add_u32 s14, s14, 1")
        A(f"s_cmp_lt_u32 s{w}, 2\ns_cselect_b32 s3, s3, s14")
        A(f"s_mul_i32 s{S_XSO}, s3, 18432\ns_lshl_b32 s{S_XM0}, s3, 10")
        A(f"s_and_b32 s3, s{w}, 1\ns_lshl_b32 s3, s3, 2\ns_lshr_b32 s14, s{w}, 1\ns_lshl_b32 s14, s14, 4\ns_add_u32 s3, s3, s14")
        A(f"s_lshl_b32 s{S_WSO}, s3, 13")
        A(f"s_mul_i32 s{S_WM0}, s{w}, {4*WBLK}\ns_add_u32 s{S_WM0}, s{S_WM0}, {WOFF}")
        A(f"s_mul_i32 s{S_KM0W}, s{w}, {4*BLK}")

    def dma_chunk(self, cc, inter=None):
        st = STAGE[cc % 3]
        G = []
        for i in range(3):
            g = [f"s_add_u32 s{S_T0}, s{S_XSO}, {i*18432 + cc*64}",
                 f"s_add_u32 m0, s{S_XM0}, {st + XOFF + i*1024}",
                 "s_nop 0",
                 f"buffer_load_dwordx4 v{V_XDMA}, s[{S_X}:{S_X+3}], s{S_T0} offen{self.o.get('ntq','')} lds"]
            G.append(("x", i, g))
        for i in range(4):
            g = [f"s_add_u32 s{S_T1}, s{S_WSO}, {(32*cc + i)*8192}",
                 f"s_add_u32 m0, s{S_WM0}, {st + i*WBLK}",
                 "s_nop 0",
                 f"buffer_load_dwordx4 v{V_WDMA}, s[{S_WQ}:{S_WQ+3}], s{S_T1} offen{self.o.get('ntq','')} lds"]
            G.append(("w", i, g))
        return G

    def emit_chunk_dma_group(self, kind, i, g, cc, uid):
        A = self.A
        if kind == "x" and i == 2:
            A(f"s_cmp_ge_u32 s{S_W}, 2")
            A(f"s_cbranch_scc1 K1_SKX_{uid}")
            for l in g: A(l)
            A(f"K1_SKX_{uid}:")
        else:
            for l in g: A(l)
            self.vm_issue(("c", cc))

    def kv_dma(self, kind, tile_imm=None, slot_imm=None):
        nt = " nt" if self.o.get("nt", True) else ""
        srd = S_K if kind == "K" else S_V
        vd = V_KDMA if kind == "K" else V_VDMA
        ring = KRING if kind == "K" else VRING
        L = []
        L.append(f"s_add_u32 m0, s{S_KM0W}, {ring + slot_imm*TILE}")
        L.append(f"s_mov_b32 s{S_T2}, {tile_imm*16384}")
        for i in range(4):
            L.append(f"buffer_load_dwordx4 v{vd+i}, s[{srd}:{srd+3}], s{S_T2} offen offset:{i*BLK}{nt} lds")
        return L

    def setup2(self):
        A = self.A
        L = V_LANE
        t0, t1, t2, t3 = V_T, V_T + 1, V_T + 2, V_T + 3
        w = S_W
        A(f"v_and_b32 v{t0}, 15, v{L}")
        A(f"v_lshrrev_b32 v{t1}, 2, v{t0}")
        A(f"v_sub_u32 v{t1}, 0, v{t1}")
        A(f"v_and_b32 v{t1}, 3, v{t1}")
        A(f"v_lshrrev_b32 v{t2}, 4, v{L}")
        A(f"v_xor_b32 v{t1}, v{t1}, v{t2}")
        A(f"v_lshlrev_b32 v{t1}, 4, v{t1}")
        A(f"v_lshl_add_u32 v{t1}, v{t0}, 6, v{t1}")
        A(f"s_and_b32 s3, s{w}, 1\ns_mul_i32 s3, s3, 5120")
        A(f"v_add_u32 v{t1}, s3, v{t1}")
        for st in range(3): A(f"v_add_u32 v{V_XRD+st}, {STAGE[st]+XOFF}, v{t1}")
        A(f"v_lshrrev_b32 v{t0}, 2, v{L}\nv_and_b32 v{t0}, 3, v{t0}")
        A(f"v_lshrrev_b32 v{t1}, 5, v{L}")
        A(f"v_lshl_add_u32 v{t0}, v{t1}, 3, v{t0}")
        A(f"v_mul_u32_u24 v{t0}, {WBLK}, v{t0}")
        A(f"v_lshrrev_b32 v{t1}, 4, v{L}\nv_and_b32 v{t1}, 1, v{t1}")
        A(f"v_lshl_add_u32 v{t0}, v{t1}, 9, v{t0}")
        A(f"v_and_b32 v{t1}, 3, v{L}")
        A(f"v_lshl_add_u32 v{t0}, v{t1}, 4, v{t0}")
        A(f"s_lshr_b32 s3, s{w}, 1\ns_lshl_b32 s3, s3, 8")
        A(f"v_add_u32 v{t0}, s3, v{t0}")
        for st in range(3): A(f"v_add_u32 v{V_WRD+st}, {STAGE[st]+WOFF}, v{t0}")

    def setup_kv(self):
        A = self.A
        L = V_LANE
        t0, t1, t2, t3 = V_T, V_T + 1, V_T + 2, V_T + 3
        w = S_W
        A(f"v_lshrrev_b32 v{t0}, 4, v{L}\nv_and_b32 v{t1}, 15, v{L}\nv_lshlrev_b32 v{t1}, 4, v{t1}")
        A(f"v_lshl_add_u32 v{t2}, v{t0}, 12, v{t1}")
        A(f"s_lshl_b32 s3, s{w}, 10")
        A(f"v_add_u32 v{t2}, s3, v{t2}")
        for i in range(4):
            A(f"v_add_u32 v{V_KDMA+i}, {BIAS - 800*i}, v{t2}")
        A(f"v_lshl_add_u32 v{t2}, v{t0}, 11, v{t1}")
        A(f"s_lshr_b32 s3, s{w}, 1\ns_lshl_b32 s3, s3, 13\ns_and_b32 s14, s{w}, 1\ns_lshl_b32 s14, s14, 10\ns_add_u32 s3, s3, s14")
        A(f"v_add_u32 v{t2}, s3, v{t2}")
        for i in range(4):
            A(f"v_add_u32 v{V_VDMA+i}, {BIAS - 800*i}, v{t2}")
        A(f"v_and_b32 v{t1}, 15, v{L}\nv_mul_u32_u24 v{t1}, {BLK}, v{t1}")
        A(f"v_lshl_add_u32 v{V_KLANE}, v{t0}, 4, v{t1}")
        A(f"v_lshrrev_b32 v{t1}, 2, v{L}\nv_and_b32 v{t1}, 7, v{t1}")
        A(f"v_mul_u32_u24 v{t1}, {BLK}, v{t1}")
        A(f"v_lshrrev_b32 v{t2}, 5, v{L}")
        A(f"v_lshl_add_u32 v{t1}, v{t2}, 8, v{t1}")
        A(f"v_and_b32 v{t2}, 3, v{L}")
        A(f"v_lshl_add_u32 v{V_VLANE}, v{t2}, 3, v{t1}")

    def warm(self):
        mode = self.o.get("warm", None)
        if mode is None: return
        A = self.A
        gran = self.o.get("wgran", 128)
        pol = mode
        A(f"s_mov_b32 s84, s4\ns_mov_b32 s85, s5\ns_mov_b32 s86, {8*184320}\ns_mov_b32 s87, 0x20000")
        A(f"s_and_b32 s3, s2, 3\ns_lshl_b32 s3, s3, 11")
        A(f"s_add_u32 s88, s10, s3\ns_addc_u32 s89, s11, 0\ns_sub_u32 s90, {576*8192}, s3\ns_mov_b32 s91, 0x20000")
        A(f"s_lshr_b32 s3, s2, 3\ns_lshl_b32 s3, s3, 8")
        t0, t1, t2 = 72, 73, 74
        A(f"v_add_u32 v{t0}, s3, v0")
        nx = (8*184320 // gran + 8191) // 8192
        nw = (576*2048 // gran + 8191) // 8192
        lg = {128: 7, 64: 6}[gran]
        per_row = 2048 // gran
        lgr = {16: 4, 32: 5}[per_row]
        d = 76
        for i in range(max(nx, nw)):
            if i < nw:
                A(f"v_add_u32 v{t1}, {8192*i}, v{t0}")
                A(f"v_lshrrev_b32 v{t2}, {lgr}, v{t1}\nv_lshlrev_b32 v{t2}, 13, v{t2}")
                A(f"v_and_b32 v{t1}, {per_row-1}, v{t1}\nv_lshl_add_u32 v{t1}, v{t1}, {lg}, v{t2}")
                A(f"buffer_load_dword v{d}, v{t1}, s[88:91], 0 offen{pol}"); d += 1
                self.vm_issue(("warm",))
            if i < nx:
                A(f"v_add_u32 v{t1}, {8192*i}, v{t0}\nv_lshlrev_b32 v{t1}, {lg}, v{t1}")
                A(f"buffer_load_dword v{d}, v{t1}, s[84:87], 0 offen{pol}"); d += 1
                self.vm_issue(("warm",))

    def frag_reads(self, cc):
        st = cc % 3
        buf = cc & 1
        R = []
        for t in range(5):
            R.append(f"ds_read_b128 {vr(V_XF[buf]+4*t,4)}, v{V_XRD+st} offset:{t*1024}")
        for T in range(8):
            for hh in range(2):
                off = hh * 4 * WBLK + 64 * (T >> 1) + 8 * (T & 1)
                R.append(f"ds_read_b64_tr_b16 {ar(A_WF[buf]+4*T+2*hh,2)}, v{V_WRD+st} offset:{off}")
        return R

    def qproj(self):
        A = self.A
        NC = 18
        XS, WS, RC = 96, 97, 98
        XA = [V_XRD, V_XRD + 1, V_XRD + 2]
        WA = [V_WRD, V_WRD + 1, V_WRD + 2]
        XD = [V_XDMA, 62, 63]
        WD = [V_WDMA, 64, 65, 66]
        ntq = self.o.get('ntq', '')
        for n in (1, 2): A(f"v_add_u32 v{XD[n]}, {n*(18432-1024)}, v{V_XDMA}")
        for n in (1, 2, 3): A(f"v_add_u32 v{WD[n]}, {n*(8192-WBLK)}, v{V_WDMA}")
        def xdma(): return [f"buffer_load_dwordx4 v{XD[n]}, s[{S_X}:{S_X+3}], s{XS} offen offset:{n*1024}{ntq} lds" for n in range(3)]
        def wdma(): return [f"buffer_load_dwordx4 v{WD[n]}, s[{S_WQ}:{S_WQ+3}], s{WS} offen offset:{n*WBLK}{ntq} lds" for n in range(4)]
        if self.o.get("rot", True):
            A(f"s_and_b32 s3, s{S_H}, 3\ns_mul_i32 s3, s3, 5\ns_lshl_b32 s{RC}, s{S_B}, 1\ns_add_u32 s{RC}, s{RC}, s3")
            A(f"s_cmp_ge_u32 s{RC}, 18\ns_cselect_b32 s3, 18, 0\ns_sub_u32 s{RC}, s{RC}, s3")
        else:
            A(f"s_mov_b32 s{RC}, 0")
        def adv():
            return [f"s_add_u32 s{RC}, s{RC}, 1", f"s_cmp_ge_u32 s{RC}, 18", f"s_cselect_b32 s{RC}, 0, s{RC}",
                    f"s_lshl_b32 s{XS}, s{RC}, 6", f"s_add_u32 s{XS}, s{XS}, s{S_XSO}",
                    f"s_lshl_b32 s{WS}, s{RC}, 18", f"s_add_u32 s{WS}, s{WS}, s{S_WSO}"]
        for l in adv()[3:]: A(l)
        def chunk_dma_static(cc):
            A(f"s_add_u32 m0, s{S_XM0}, {STAGE[cc % 3]+XOFF}")
            A(f"s_nop 0")
            for l in xdma(): A(l)
            A(f"s_add_u32 m0, s{S_WM0}, {STAGE[cc % 3]}")
            A(f"s_nop 0")
            for l in wdma(): A(l)
            for l in adv(): A(l)
            self.vm_issue(("c", cc), 7)
        chunk_dma_static(0)
        if self.o.get("codewarm", True):
            A("s_getpc_b64 s[14:15]")
            A("K1_PC:")
            A("s_sub_u32 s14, s14, K1_PC-K1_START\ns_subb_u32 s15, s15, 0")
            A(f"s_lshr_b32 s3, s2, 3\ns_lshl_b32 s3, s3, 2\ns_add_u32 s3, s3, s{S_W}\ns_lshl_b32 s3, s3, 6")
            A(f"v_add_u32 v72, s3, v{V_LANE}\nv_lshlrev_b32 v72, 7, v72")
            A("v_min_u32 v72, K1_END-K1_START, v72")
            A("global_load_dword v73, v72, s[14:15]")
            self.vm_issue(("code",), 1)
        self.setup2()
        self.setup_kv()
        if self.o.get("fused"):
            P2M.P2(A, self.o, self.QS, fused=True).lane_consts(V_T)
        z = 68
        for i in range(4): A(f"v_mov_b32 v{z+i}, 0")
        A("s_nop 1")
        for i in range(10):
            A(f"v_mfma_f32_32x32x16_bf16 {vr(V_QACC+16*i,16)}, {vr(z,4)}, {vr(z,4)}, 0")
        for i in range(10):
            A(f"v_mfma_f32_32x32x16_bf16 {ar(A_O+16*i,16)}, {vr(z,4)}, {vr(z,4)}, 0")
        chunk_dma_static(1)
        A(f"s_waitcnt vmcnt({self.vm_wait_n({('c',0)})})")
        A("s_barrier")
        self.stamp()
        def reads(cc):
            buf, st = cc & 1, cc % 3
            R = []
            for t in range(5):
                R.append(f"ds_read_b128 {vr(V_XF[buf]+4*t,4)}, v{XA[st]} offset:{t*1024}")
            for T in range(8):
                for hh in range(2):
                    off = hh * 4 * WBLK + 64 * (T >> 1) + 8 * (T & 1)
                    R.append(f"ds_read_b64_tr_b16 {ar(A_WF[buf]+4*T+2*hh,2)}, v{WA[st]} offset:{off}")
            return R
        for r in reads(0): A(r)
        chunk_dma_static(2)
        nt = " nt" if self.o.get("nt", True) else ""
        def kv_one(kind, tile, slot, i):
            srd = S_K if kind == "K" else S_V
            vd = V_KDMA if kind == "K" else V_VDMA
            ring = KRING if kind == "K" else VRING
            return ([f"s_add_u32 m0, s{S_KM0W}, {ring + slot*TILE}", f"s_mov_b32 s{S_T2}, {tile*16384}"],
                    f"buffer_load_dwordx4 v{vd+i}, s[{srd}:{srd+3}], s{S_T2} offen offset:{i*BLK}{nt} lds")
        k0 = self.o.get("kvstart", 2)
        early = [("K", 0, 0), ("V", 0, 0), ("K", 1, 1), ("V", 1, 1)]
        kvplan = {}
        for n in range(8):
            k, tile, slot = early[n >> 1]
            kvplan[k0 + n] = [(k, tile, slot, 2*(n & 1)), (k, tile, slot, 2*(n & 1) + 1)]
        kvplan[17] = [("K", 2, 2, i) for i in range(4)]
        self.late_kv = [("K", 3, 3), ("V", 2, 2)]
        if not self.o.get("kvearly"):
            if self.o.get("kvplan2", False):
                kvplan = {16: [("K", 0, 0, i) for i in range(4)] + [("K", 1, 1, i) for i in range(4)],
                          17: [("V", 0, 0, i) for i in range(4)] + [("K", 2, 2, i) for i in range(4)]}
                self.late_kv = [("V", 1, 1), ("K", 3, 3), ("V", 2, 2)]
            else:
                kvplan = {15: [("K", 0, 0, i) for i in range(4)], 16: [("K", 1, 1, i) for i in range(4)],
                          17: [("V", 0, 0, i) for i in range(4)]}
                self.late_kv = [("K", 2, 2), ("V", 1, 1), ("K", 3, 3), ("V", 2, 2)]
        dpos = self.o.get("qdpos", [2, 7, 12, 17, 22, 27, 32])
        m0pos = (dpos[0] - 1, dpos[3] - 1)
        for c in range(NC):
            A.c(f"---- Q-proj chunk {c}")
            if c + 1 < NC and (not self.o.get("q_nodma") or c + 1 < 3):
                A(f"s_waitcnt vmcnt({self.vm_wait_n({('c',c+1)})}) lgkmcnt(0)")
            else:
                A("s_waitcnt lgkmcnt(0)")
            if not self.o.get("q_nobar"): A("s_barrier")
            buf = c & 1
            M = []
            for T in range(8):
                for t in range(5):
                    d = vr(V_QACC + (T*5 + t)*4, 4)
                    M.append(mfma(d, ar(A_WF[buf]+4*T, 4), vr(V_XF[buf]+4*t, 4), d))
            fill = [[] for _ in range(40)]
            dma = c + 3 < NC and not self.o.get("q_nodma")
            kv = kvplan.get(c, [])
            kpos = [35, 38] if len(kv) == 2 else ([5, 14, 23, 32] if len(kv) == 4 else [2, 7, 12, 17, 22, 27, 32, 37])
            busy = set(kpos[:len(kv)]) | {g - 1 for g in kpos[:len(kv)]}
            if dma: busy |= set(dpos) | set(m0pos)
            R = reads(c + 1) if (c + 1 < NC and not self.o.get("q_nods")) else []
            slots = [g for g in range(0, 34) if g not in busy]
            for i, r in enumerate(R):
                fill[slots[(i * len(slots)) // len(R)]].append(r)
            if dma:
                st = STAGE[c % 3]
                fill[m0pos[0]].append(f"s_add_u32 m0, s{S_XM0}, {st + XOFF}")
                xd, wd = xdma(), wdma()
                for n in range(3): fill[dpos[n]].append(xd[n])
                fill[m0pos[1]].append(f"s_add_u32 m0, s{S_WM0}, {st}")
                for n in range(4): fill[dpos[3+n]].append(wd[n])
                self.vm_issue(("c", c + 3), 7)
                sal = adv()
                fill[33] += sal[0:3]; fill[36] += sal[3:5]; fill[39] += sal[5:7]
            for n, (k, tile, slot, i) in enumerate(kv):
                pre, l = kv_one(k, tile, slot, i)
                fill[kpos[n] - 1] += pre
                fill[kpos[n]].append(l)
                self.vm_issue((k, tile), 1)
            for m in range(40):
                A(M[m])
                for l in fill[m]: A(l)
        self.qloop_lines = []

    def qconvert(self):
        A = self.A
        S0 = V_S[0]
        A(f"s_mov_b32 s{S_SCALE+1}, 0x3e0293ee\ns_mov_b32 s{S_SCALE+2}, 0x3e0293ee")
        A(f"s_waitcnt vmcnt({self.vm_wait_n({('K',0)})})")
        A("s_barrier")
        self.kslot = 0; self.vslot = 0
        for n in range(8): A(self.k_read(n, 0))
        late = list(self.late_kv)
        def conv(s):
            L = []
            for t in range(5):
                for half in range(2):
                    T = 2*s + half
                    src = V_QACC + (T*5 + t)*4
                    if s == 0:
                        L.append(f"v_pk_mul_f32 v[{src}:{src+1}], v[{src}:{src+1}], s[{S_SCALE+1}:{S_SCALE+2}]")
                        L.append(f"v_pk_mul_f32 v[{src+2}:{src+3}], v[{src+2}:{src+3}], s[{S_SCALE+1}:{S_SCALE+2}]")
                    else:
                        for r in range(4): L.append(f"v_mul_f32 v{src+r}, s{S_SCALE+1}, v{src+r}")
                    dst = V_Q + 16*t + 4*s + 2*half
                    L.append(f"v_cvt_pk_bf16_f32 v{dst}, v{src}, v{src+1}")
                    L.append(f"v_cvt_pk_bf16_f32 v{dst+1}, v{src+2}, v{src+3}")
            return L
        def qk(s):
            M = []
            for ktl in range(2):
                for t in range(5):
                    d = vr(S0 + 8*t + 4*ktl, 4)
                    M.append(mfma(d, ar(A_KF + 4*(ktl*4+s), 4), vr(V_Q + 16*t + 4*s, 4), "0" if s == 0 else d))
            return M
        def kvd(n):
            k, tile, slot = late[n]
            self.vm_issue((k, tile), 4)
            return self.kv_dma(k, tile, slot)
        for l in conv(0): A(l)
        for l in kvd(0): A(l)
        A("s_waitcnt lgkmcnt(0)")
        for s in range(4):
            M = qk(s)
            C = conv(s + 1) if s < 3 else []
            for i, m in enumerate(M):
                A(m)
                for l in C[6*i:6*i+6]: A(l)
            if s + 1 < len(late):
                for l in kvd(s + 1): A(l)

    def k_read(self, n, half, slot=0):
        kt = 2*half + (n >> 2); s = n & 3
        return f"ds_read_b128 {ar(A_KF+4*n,4)}, v{V_KLANE} offset:{KRING + slot*TILE + kt*256 + s*64}"
    def v_read(self, n, mb, slot=0):
        dt = n >> 1; hh = n & 1
        return f"ds_read_b64_tr_b16 {ar(A_VF+4*dt+2*hh,2)}, v{V_VAD} offset:{slot*TILE + mb*8*BLK + hh*512 + dt*32}"
    def qk_mfmas(self, sb, first_c=None):
        M = []
        for ktl in range(2):
            for s in range(4):
                for t in range(5):
                    d = vr(sb + 8*t + 4*ktl, 4)
                    if s == 0:
                        c = vr(V_CI + 4*t, 4) if first_c is None else first_c
                    else:
                        c = d
                    M.append(mfma(d, ar(A_KF + 4*(ktl*4+s), 4), vr(V_Q + 16*t + 4*s, 4), c))
        return M
    def ones_mfma(self, sb):
        return mfma(ar(A_LACC, 4), ar(A_ONES, 4), vr(sb + 8*4, 4), ar(A_LACC, 4))
    def pv_mfmas(self, sb, ones=False):
        M = []
        for dt in range(8):
            for t in range(5):
                d = ar(A_O + (dt*5 + t)*4, 4)
                M.append(mfma(d, ar(A_VF + 4*dt, 4), vr(sb + 8*t, 4), d))
        if ones: M.append(self.ones_mfma(sb))
        return M
    def item(self, it, sb, khalf, vmb, dma):
        k = it[0]
        if k == 'exp':
            r = sb + 8*it[1] + it[2]
            return [f"v_exp_f32 v{r}, v{r}"]
        if k == 'add':
            r = sb + 8*it[1] + it[2]
            return [f"v_add_f32 v{V_L+it[1]}, v{V_L+it[1]}, v{r}"]
        if k == 'cvt':
            r = sb + 8*it[1]
            p = it[2]
            return [f"v_cvt_pk_bf16_f32 v{r+p}, v{r+2*p}, v{r+2*p+1}"]
        if k == 'K':
            return [self.k_read(it[1], khalf, self.kslot)] if khalf is not None else []
        if k == 'V':
            return [self.v_read(it[1], vmb, self.vslot)] if vmb is not None else []
        if k == 'DMA':
            if not dma: return []
            n = len(dma) // it[2]
            return dma[it[1]*n:(it[1]+1)*n]
    def phase(self, M, gaps, sb, khalf=None, vmb=None, dma=None, pre=None, head=None):
        A = self.A
        n = len(gaps) if gaps is not None else len(M)
        for i in range(n):
            if M is not None:
                A(M[i])
            elif gaps is not None and A.lines[-1].startswith("v_exp_f32") and gaps[i] and gaps[i][0][0] != 'exp':
                A("s_nop 0")
            if head and i in head:
                for l in head[i]: A(l)
            if gaps is not None:
                for it in gaps[i]:
                    for l in self.item(it, sb, khalf, vmb, dma): A(l)

    def loop_dma(self, kind):
        if self.o.get("loop_nodma"): return []
        nt = " nt" if self.o.get("nt", True) else ""
        srd = S_K if kind == "K" else S_V
        vd = V_KDMA if kind == "K" else V_VDMA
        so = S_KSOFF if kind == "K" else S_VSOFF
        return [f"buffer_load_dwordx4 v{vd+i}, s[{srd}:{srd+3}], s{so} offen offset:{i*BLK}{nt} lds" for i in range(4)]

    def slot_adv(self, s, base):
        return [f"s_add_u32 s{s}, s{s}, {TILE}",
                f"s_cmp_ge_u32 s{s}, s{S_T0}" if False else None]

    def warmwo(self):
        A = self.A
        if self.o.get("warmwo") is not None:
            pol = self.o.get("warmwo")
            if self.o.get("fused"):
                A(f"s_lshr_b32 s3, s{S_H}, 2\ns_lshl_b32 s3, s3, 5\ns_lshl_b32 s14, s{S_B}, 2\ns_add_u32 s3, s3, s14\ns_and_b32 s14, s{S_H}, 3\ns_add_u32 s3, s3, s14\ns_mul_i32 s3, s3, {288*128}")
            else:
                A(f"s_lshl_b32 s3, s{S_B}, 4\ns_add_u32 s3, s3, s{S_H}\ns_mul_i32 s3, s3, {288*128}")
            g = self.o.get("wogran", 128)
            sh = {128: 7, 64: 6}[g]
            A(f"v_lshlrev_b32 v{V_T+12}, {sh}, v0\nv_add_u32 v{V_T+12}, s3, v{V_T+12}")
            A(f"s_add_u32 s14, s3, {288*128}")
            A(f"s_mov_b32 s90, s14\ns_mov_b32 s91, 0x20000")
            n = (288*128 + 256*g - 1) // (256*g)
            for i in range(n):
                if i: A(f"v_add_u32 v{V_T+12}, {256*g}, v{V_T+12}")
                A(f"buffer_load_dword v{V_T+14}, v{V_T+12}, s[88:91], 0 offen{pol}")

    def attention(self):
        A = self.A
        self.ones = self.o.get("ones", True)
        NA = 41 if self.ones else 40
        W = best_schedule(tuple(g + NA - 40 for g in self.o.get("dmagaps", (41,51,61,71))), NA, (4,) if self.ones else ())[1]
        GA, GB = W[:NA], W[NA:]
        if self.ones:
            A(f"v_mov_b32 v{V_T}, 0x3f803f80\nv_mov_b32 v{V_T+1}, 0")
            for i in range(4): A(f"v_accvgpr_write_b32 a{A_ONES+i}, v{V_T}\nv_accvgpr_write_b32 a{A_LACC+i}, v{V_T+1}")
        S0, S1 = V_S
        A.c("---- attention prologue")
        A(f"v_add_u32 v{V_VAD}, {VRING}, v{V_VLANE}")
        for n in range(8): A(self.k_read(n, 1))
        for t in range(5): A(f"v_mov_b32 v{V_L+t}, 0")
        A("s_nop 4")
        T = V_T
        for t in range(5):
            r = S0 + 8*t
            A(f"v_max3_f32 v{T+t}, v{r}, v{r+1}, v{r+2}")
            A(f"v_max3_f32 v{T+t}, v{T+t}, v{r+3}, v{r+4}")
            A(f"v_max3_f32 v{T+t}, v{T+t}, v{r+5}, v{r+6}")
            A(f"v_max_f32 v{T+t}, v{T+t}, v{r+7}")
        for sw in ("v_permlane32_swap_b32", "v_permlane16_swap_b32"):
            for t in range(5): A(f"v_mov_b32 v{T+5+t}, v{T+t}")
            A("s_nop 1")
            for t in range(5): A(f"{sw} v{T+t}, v{T+5+t}")
            A("s_nop 1")
            for t in range(5): A(f"v_max_f32 v{T+t}, v{T+t}, v{T+5+t}")
        for t in range(5):
            for i in range(4):
                A(f"v_sub_f32 v{V_CI+4*t+i}, 0, v{T+t}")
            for i in range(0, 8, 2):
                A(f"v_pk_add_f32 v[{S0+8*t+i}:{S0+8*t+i+1}], v[{S0+8*t+i}:{S0+8*t+i+1}], v[{V_CI+4*t}:{V_CI+4*t+1}]")
        self.phase(None, GA, S0, khalf=None)
        if not self.o.get("latewarm", True): self.warmwo()
        if self.o.get("fused"):
            A(f"v_mov_b32 v219, 0")
            A(f"global_load_dword v218, v219, s[100:101] sc1")
        A(f"s_mov_b32 s{S_KSOFF}, {4*16384}")
        A(f"s_mov_b32 s{S_VSOFF}, {3*16384}")
        A(f"s_mov_b32 s{S_LOOP}, 4")
        WL = "s_waitcnt lgkmcnt(0)"
        def ph1(jm):
            self.vslot = jm
            head = {0: [f"s_add_u32 m0, s{S_KM0W}, {KRING + jm*TILE}"], 36: [f"s_add_u32 s{S_KSOFF}, s{S_KSOFF}, {0 if self.o.get('loop_l2') else 16384}"], 38: [WL]}
            self.phase(self.qk_mfmas(S1), GB, S0, vmb=0, dma=self.loop_dma("K"), head=head)
        def ph2(jm, head_extra=None):
            self.kslot = (jm + 1) % 4
            head = {len(GA) - 2: [WL]}
            head.update(head_extra or {})
            self.phase(self.pv_mfmas(S0, self.ones), GA, S1, khalf=0, head=head)
        def ph3(jm):
            self.vslot = jm
            head = {0: [f"s_add_u32 m0, s{S_KM0W}, {VRING + ((jm+3)%4)*TILE}"], 36: [f"s_add_u32 s{S_VSOFF}, s{S_VSOFF}, {0 if self.o.get('loop_l2') else 16384}"], 38: [WL]}
            self.phase(self.qk_mfmas(S0), GB, S1, vmb=1, dma=self.loop_dma("V"), head=head)
        def ph4(jm, head_extra=None):
            self.kslot = (jm + 1) % 4
            head = {len(GA) - 2: ["s_waitcnt vmcnt(16) lgkmcnt(0)" if not self.o.get("loop_novm") else "s_waitcnt lgkmcnt(0)"], len(GA) - 1: ["s_barrier"] if not self.o.get("loop_nobar") else []}
            for k, v in (head_extra or {}).items(): head[k] = v + head.get(k, [])
            self.phase(self.pv_mfmas(S1, self.ones), GA, S0, khalf=1, head=head)
        A("s_waitcnt vmcnt(16) lgkmcnt(0)")
        A("s_barrier")
        self.stamp()
        A(".p2align 6")
        A("K1_LOOP:")
        start = len(A.lines)
        for jm in range(4):
            if jm == self.o.get("latewarm_jm", 1) and self.o.get("latewarm", True) and self.o.get("warmwo") is not None:
                A(f"s_cmp_eq_u32 s{S_LOOP}, 1")
                A("s_cbranch_scc1 K1_WARM")
                A("K1_WARMRET:")
            ph1(jm)
            if jm == 3:
                ph2(jm, {30: [f"s_cmp_eq_u32 s{S_LOOP}, 1"]})
                A("s_cbranch_scc1 K1_TAIL")
            else:
                ph2(jm)
            ph3(jm)
            if jm == 3:
                ph4(jm, {30: [f"s_sub_u32 s{S_LOOP}, s{S_LOOP}, 1"]})
            else:
                ph4(jm)
        A("s_branch K1_LOOP")
        self.loop_lines = A.lines[start:]
        if self.o.get("latewarm", True) and self.o.get("warmwo") is not None:
            A("K1_WARM:")
            self.warmwo()
            A("s_branch K1_WARMRET")
        A("K1_TAIL:")
        if self.o.get("fused") and self.o.get("xccfast", False):
            A(f"s_lshl_b32 s3, s{S_BR}, 3\ns_add_u32 s3, s3, s{S_B}\ns_lshl_b32 s3, s3, 4\ns_add_u32 s3, s3, s{S_H}\ns_lshr_b32 s3, s3, 3\ns_lshl_b32 s3, s3, 2\ns_add_u32 s3, s3, 16")
            A("v_mov_b32 v219, s3")
            A("global_load_dword v217, v219, s[100:101] sc1") if False else A("global_load_dword v220, v219, s[100:101] sc1")
        self.vslot = 3
        self.phase(None, GB, S1, vmb=1, dma=None)
        fused = self.o.get("fused")
        T = V_T
        nl = 4 if self.ones else 5
        if self.ones:
            A("s_nop 1")
            A(self.ones_mfma(S1))
        for sw in ("v_permlane32_swap_b32", "v_permlane16_swap_b32"):
            for t in range(nl): A(f"v_mov_b32 v{T+t}, v{V_L+t}")
            A("s_nop 1")
            for t in range(nl): A(f"{sw} v{V_L+t}, v{T+t}")
            A("s_nop 1")
            for t in range(nl): A(f"v_add_f32 v{V_L+t}, v{V_L+t}, v{T+t}")
        if self.ones:
            A(f"v_accvgpr_read_b32 v{V_L+4}, a{A_LACC}")
        RC, LO, OWN = 24, 29, 176
        A("s_mov_b32 s14, 0x4e800000")
        A(f"v_cmp_nle_f32 s[44:45], v{V_L}, s14")
        for t in range(1, 5):
            A(f"v_cmp_nle_f32 vcc, v{V_L+t}, s14" if False else f"v_cmp_nle_f32 s[48:49], v{V_L+t}, s14")
            A("s_nop 1")
            A("s_or_b64 s[44:45], s[44:45], s[48:49]")
        A("s_cmp_lg_u64 s[44:45], 0\ns_cselect_b32 s14, 1, 0")
        if self.o.get("forceslow"): A("s_mov_b32 s14, 1")
        A(f"s_lshl_b32 s15, s{S_W}, 2\ns_add_u32 s15, s15, {SPARE}")
        A(f"v_mov_b32 v{T}, s15\nv_mov_b32 v{T+1}, s14")
        A(f"ds_write_b32 v{T}, v{T+1}")
        A("s_waitcnt vmcnt(0) lgkmcnt(0)")
        A("s_barrier")
        A(f"v_mov_b32 v{T}, {SPARE}")
        A(f"ds_read_b128 v[{T+3}:{T+6}], v{T}")
        A("s_waitcnt lgkmcnt(0)")
        A(f"v_or3_b32 v{T+3}, v{T+3}, v{T+4}, v{T+5}\nv_or_b32 v{T+3}, v{T+3}, v{T+6}")
        A("s_nop 0")
        A(f"v_readfirstlane_b32 s14, v{T+3}")
        A("s_nop 3")
        A("s_cmp_lg_u32 s14, 0")
        A("s_cbranch_scc1 K1_SLOW")
        A("K1_SLOWRET:")
        for t in range(5): A(f"v_rcp_f32 v{RC+t}, v{V_L+t}")
        A(f"v_lshlrev_b32 v{LO}, 4, v{V_LANE}")
        if fused:
            self.p2 = P2M.P2(A, self.o, self.QS, fused=True)
            A(f"v_readfirstlane_b32 s{P2M.S_NONCE}, v218")
            A("s_nop 3")
            A(f"s_cmp_lg_u32 s{P2M.S_NONCE}, 0")
            A("s_cbranch_scc1 K1_HAVENONCE")
            self.p2.get_nonce("f")
            A("K1_HAVENONCE:")
            if self.o.get("xccfast", False):
                A(f"v_readfirstlane_b32 s14, v220")
                A("s_nop 3")
                A(f"s_and_b32 s15, s{S_H}, 4\ns_lshl_b32 s15, s15, 2\ns_lshr_b32 s14, s14, s15\ns_and_b32 s14, s14, 0xffff")
                A("s_and_b32 s15, s14, 15\ns_mul_i32 s15, s15, 0x1111")
                A("s_cmp_eq_u32 s14, s15\ns_cselect_b32 s3, 1, 0")
                A("s_and_b32 s15, s14, 8\ns_lshr_b32 s15, s15, 3\ns_and_b32 s3, s3, s15")
                A(f"s_mov_b32 s{P2M.S_FAST}, s3")
            self.p2.setup()
            self.p2.prefetch_w()
        self.stamp()
        pol = ' sc1' if fused else self.o.get('nto', '')
        M = self.pv_mfmas(S1)
        def norm(t, s, n):
            b = 32 + (n % 3) * 8
            d = OWN + 16*t + 4*s
            L = []
            for half in range(2):
                a0 = A_O + ((2*s+half)*5 + t)*4
                for r in range(4): L.append(f"v_accvgpr_read_b32 v{b+4*half+r}, a{a0+r}")
            for r in range(8): L.append(f"v_mul_f32 v{b+r}, v{RC+t}, v{b+r}")
            for p in range(4): L.append(f"v_cvt_pk_bf16_f32 v{d+p}, v{b+2*p}, v{b+2*p+1}")
            st = [f"s_mov_b32 s14, {t*self.QS + s*1024}",
                  f"buffer_store_dwordx4 {vr(d,4)}, v{LO}, s[{S_O}:{S_O+3}], s14 offen{pol}"]
            return L, st
        stores = []
        work = []
        n = 0
        for s in range(4):
            for t in range(5):
                L, st = norm(t, s, n); n += 1
                work.append((s, L if (fused and self.o.get("xccfast", False)) else L + st))
                stores.append(st)
        wi = 0
        pend = []
        for m in range(40):
            A(M[m])
            while wi < len(work) and m >= 10*work[wi][0] + 9 + 4 and len(pend) < 8:
                pend += work[wi][1]; wi += 1
            for l in pend[:6]: A(l)
            pend = pend[6:]
        A("s_nop 7")
        for l in pend: A(l)
        while wi < len(work):
            for l in work[wi][1]: A(l)
            wi += 1
        if fused:
            if self.o.get("xccfast", False):
                A(f"s_cmp_lg_u32 s{P2M.S_FAST}, 0")
                A("s_cbranch_scc1 K1_OFAST")
                for st in stores:
                    for l in st: A(l)
                A("s_branch K1_ODONE")
                A("K1_OFAST:")
                for st in stores:
                    for l in st: A(l.replace(" sc1", ""))
                A("K1_ODONE:")


    def slow_path(self):
        A = self.A
        S0, S1 = V_S
        T = V_T
        M = V_CI
        KA, VA = V_CI + 8, V_CI + 9
        SU = 44
        nt = " nt" if self.o.get("nt", True) else ""
        A("K1_SLOW:")
        for i in range(4): A(f"v_mov_b32 v{S0+i}, 0")
        for t in range(5): A(f"v_mov_b32 v{V_L+t}, 0\nv_mov_b32 v{M+t}, 0xff7fffff")
        for i in range(10):
            A(f"v_mfma_f32_32x32x16_bf16 {ar(A_O+16*i,16)}, {vr(S0,4)}, {vr(S0,4)}, 0")
        A(f"s_mov_b32 s{SU}, 0")
        A("K1_SLOOP:")
        A(f"s_and_b32 s45, s{SU}, 1")
        A("s_cmp_lg_u32 s45, 0")
        A("s_cbranch_scc1 K1_SNODMA")
        A("s_barrier")
        A(f"s_lshr_b32 s46, s{SU}, 1\ns_lshl_b32 s46, s46, 14")
        A(f"s_add_u32 m0, s{S_KM0W}, {KRING}")
        A("s_nop 0")
        for i in range(4): A(f"buffer_load_dwordx4 v{V_KDMA+i}, s[{S_K}:{S_K+3}], s46 offen offset:{i*BLK}{nt} lds")
        A(f"s_add_u32 m0, s{S_KM0W}, {VRING}")
        A("s_nop 0")
        for i in range(4): A(f"buffer_load_dwordx4 v{V_VDMA+i}, s[{S_V}:{S_V+3}], s46 offen offset:{i*BLK}{nt} lds")
        A("s_waitcnt vmcnt(0)")
        A("s_barrier")
        A("K1_SNODMA:")
        A(f"s_lshl_b32 s46, s45, 9\ns_mul_i32 s48, s45, {8*BLK}")
        A(f"v_add_u32 v{KA}, s46, v{V_KLANE}\nv_add_u32 v{VA}, s48, v{V_VAD}")
        for n in range(8):
            A(f"ds_read_b128 {ar(A_KF+4*n,4)}, v{KA} offset:{KRING + (n >> 2)*256 + (n & 3)*64}")
        A("s_waitcnt lgkmcnt(0)")
        for n in range(16):
            A(f"ds_read_b64_tr_b16 {ar(A_VF+4*(n >> 1)+2*(n & 1),2)}, v{VA} offset:{(n & 1)*512 + (n >> 1)*32}")
        for m in self.qk_mfmas(S0, first_c="0"): A(m)
        A("s_nop 7\ns_nop 3")
        for t in range(5):
            r = S0 + 8*t
            A(f"v_max3_f32 v{T+t}, v{r}, v{r+1}, v{r+2}\nv_max3_f32 v{T+t}, v{T+t}, v{r+3}, v{r+4}")
            A(f"v_max3_f32 v{T+t}, v{T+t}, v{r+5}, v{r+6}\nv_max_f32 v{T+t}, v{T+t}, v{r+7}")
        for sw in ("v_permlane32_swap_b32", "v_permlane16_swap_b32"):
            for t in range(5): A(f"v_mov_b32 v{T+5+t}, v{T+t}")
            A("s_nop 1")
            for t in range(5): A(f"{sw} v{T+t}, v{T+5+t}")
            A("s_nop 1")
            for t in range(5): A(f"v_max_f32 v{T+t}, v{T+t}, v{T+5+t}")
        for t in range(5):
            A(f"v_max_f32 v{T+t}, v{T+t}, v{M+t}")
            A(f"v_sub_f32 v{T+5+t}, v{M+t}, v{T+t}")
            A(f"v_mov_b32 v{M+t}, v{T+t}")
        for t in range(5): A(f"v_exp_f32 v{T+5+t}, v{T+5+t}")
        A("s_nop 0")
        for t in range(5): A(f"v_mul_f32 v{V_L+t}, v{V_L+t}, v{T+5+t}")
        for dt in range(8):
            for t in range(5):
                a0 = A_O + (dt*5 + t)*4
                for r in range(4): A(f"v_accvgpr_read_b32 v{S1+r}, a{a0+r}")
                for r in range(4): A(f"v_mul_f32 v{S1+r}, v{S1+r}, v{T+5+t}")
                for r in range(4): A(f"v_accvgpr_write_b32 a{a0+r}, v{S1+r}")
        for t in range(5):
            r = S0 + 8*t
            for i in range(8): A(f"v_sub_f32 v{r+i}, v{r+i}, v{M+t}")
            for i in range(8): A(f"v_exp_f32 v{r+i}, v{r+i}")
            A("s_nop 0")
            for i in range(8): A(f"v_add_f32 v{V_L+t}, v{V_L+t}, v{r+i}")
            for p in range(4): A(f"v_cvt_pk_bf16_f32 v{r+p}, v{r+2*p}, v{r+2*p+1}")
        A("s_waitcnt lgkmcnt(0)")
        A("s_nop 1")
        for m in self.pv_mfmas(S0): A(m)
        A(f"s_add_u32 s{SU}, s{SU}, 1\ns_cmp_lt_u32 s{SU}, 32")
        A("s_cbranch_scc1 K1_SLOOP")
        for sw in ("v_permlane32_swap_b32", "v_permlane16_swap_b32"):
            for t in range(5): A(f"v_mov_b32 v{T+t}, v{V_L+t}")
            A("s_nop 1")
            for t in range(5): A(f"{sw} v{V_L+t}, v{T+t}")
            A("s_nop 1")
            for t in range(5): A(f"v_add_f32 v{V_L+t}, v{V_L+t}, v{T+t}")
        for t in range(5):
            for i in range(4): A(f"v_mov_b32 v{S1+8*t+i}, 0")
        A("s_barrier")
        A("s_branch K1_SLOWRET")

    def epilogue(self):
        pass

    def build(self):
        A = self.A
        A(".p2align 8\n.type k1_kernel,@function\nk1_kernel:")
        A("K1_START:")
        self.stamp()
        self.setup()
        self.qproj()
        self.stamp()
        self.qconvert()
        self.attention()
        self.stamp()
        self.epilogue()
        self.stamp()
        if self.o.get("fused"):
            p = self.p2
            self.in_p2 = True
            p.main(self.stamp)
            p.reduce(self.stamp)
            self.stamp()
        self.dump_stamps()
        A("s_endpgm")
        self.slow_path()
        A("K1_END:")
        A("s_endpgm")
        return A
```

```python
from asmlib import *

S_W, S_BR, S_B, S_H = 36, 37, 38, 39
S_OF, S_WO, S_PT, S_OUT, S_DBG = 16, 20, 24, 28, 32
S_I, S_J, S_RH, S_KH = 40, 41, 42, 43
S_IT = 44
S_OSO, S_WSO = 45, 46
S_M0 = 47
S_T0, S_T1, S_T2, S_T3 = 48, 49, 50, 51
S_CNT = 52
S_CNT2 = 53
V_LANE = 1
V_WD = 2
V_OB = 12
V_CA, V_CB = 13, 14
V_NA, V_NB = 15, 16
V_LA, V_LB = 17, 18
V_T = 19
V_B = 56
V_OWN = 176
A_ACC = 0
A_A = [180, 216]
CH = 10240
NW = 10
STG = 4 * CH
NST = 3
PART_OFF = 32 << 20
FLAG_OFF = 60 << 20
S_FLG = 92
S_NONCE = 99
S_FAST = 98

def mfma(d, a, b, c):
    return f"v_mfma_f32_16x16x32_bf16 {d}, {a}, {b}, {c}"

class P2:
    def __init__(self, A, opts, QS, fused):
        self.A, self.o, self.QS, self.fused = A, opts, QS, fused
        self.ostores = None

    PARK = 224
    def lane_consts(self, T):
        A = self.A
        L = V_LANE
        t0, t1, t2 = T, T+1, T+2
        for i in range(NW):
            A(f"v_add_u32 v{t0}, {64*i}, v{L}")
            A(f"v_mul_u32_u24 v{t1}, 52429, v{t0}\nv_lshrrev_b32 v{t1}, 20, v{t1}")
            A(f"v_mul_u32_u24 v{t2}, 20, v{t1}\nv_sub_u32 v{t2}, v{t0}, v{t2}")
            A(f"v_lshrrev_b32 v{t0}, 1, v{t1}\nv_and_b32 v{t0}, 2, v{t0}\nv_xor_b32 v{t2}, v{t2}, v{t0}")
            A(f"v_mul_u32_u24 v{t1}, 1152, v{t1}")
            A(f"v_lshl_add_u32 v{t1}, v{t2}, 4, v{t1}")
            A(f"v_add_u32 v{t1}, {8192 - 1024*(i % 4)}, v{t1}")
            A(f"v_accvgpr_write_b32 a{self.PARK+i}, v{t1}")
        A(f"v_lshrrev_b32 v{t0}, 2, v{L}\nv_mul_u32_u24 v{t0}, 320, v{t0}")
        A(f"v_and_b32 v{t1}, 3, v{L}\nv_lshl_add_u32 v{t0}, v{t1}, 3, v{t0}")
        A(f"s_lshr_b32 s3, s{S_W}, 1\ns_mul_i32 s3, s3, {2*CH}\ns_and_b32 s14, s{S_H}, 1\ns_lshl_b32 s15, s14, 5\ns_add_u32 s3, s3, s15")
        A(f"v_add_u32 v{t0}, s3, v{t0}")
        A(f"v_lshrrev_b32 v{t1}, 4, v{L}\nv_and_b32 v{t1}, 1, v{t1}\nv_lshlrev_b32 v{t1}, 5, v{t1}")
        A(f"v_add_u32 v{t2}, v{t0}, v{t1}\nv_sub_u32 v{t0}, v{t0}, v{t1}")
        A(f"s_cmp_eq_u32 s14, 0\ns_cselect_b64 vcc, -1, 0")
        A(f"v_cndmask_b32 v{t1}, v{t0}, v{t2}, vcc")
        A(f"v_accvgpr_write_b32 a{self.PARK+NW}, v{t1}")
        A(f"v_cndmask_b32 v{t1}, v{t2}, v{t0}, vcc")
        A(f"v_accvgpr_write_b32 a{self.PARK+NW+1}, v{t1}")

    def setup(self):
        A = self.A
        if not self.fused:
            A(f"s_mul_i32 s3, s{S_BR}, 40\ns_add_u32 s14, s0, s3\ns_addc_u32 s15, s1, 0")
            A("s_load_dwordx2 s[88:89], s[14:15], 32")
            A("s_load_dwordx2 s[58:59], s[0:1], 80")
            A("s_load_dwordx2 s[12:13], s[0:1], 96")
            A(f"v_and_b32 v{V_LANE}, 63, v0")
            self.lane_consts(V_T)
            A("s_waitcnt lgkmcnt(0)")
        A(f"s_and_b32 s{S_I}, s{S_H}, 3\ns_lshr_b32 s{S_J}, s{S_H}, 2")
        A(f"s_and_b32 s{S_RH}, s{S_W}, 1\ns_lshr_b32 s{S_KH}, s{S_W}, 1")
        for i in range(NW): A(f"v_accvgpr_read_b32 v{V_WD+i}, a{self.PARK+i}")
        A(f"v_accvgpr_read_b32 v{V_LA}, a{self.PARK+NW}\nv_accvgpr_read_b32 v{V_LB}, a{self.PARK+NW+1}")
        A(f"v_lshlrev_b32 v{V_OB}, 4, v{V_LANE}")
        A(f"s_lshl_b32 s3, s{S_BR}, 3\ns_add_u32 s3, s3, s{S_B}\ns_mul_i32 s14, s3, 10\ns_mul_i32 s15, s{S_RH}, 5\ns_add_u32 s14, s14, s15")
        A(f"s_mul_i32 s14, s14, {self.QS}")
        A(f"s_add_u32 s{S_OF}, s12, s14\ns_addc_u32 s{S_OF+1}, s13, 0\ns_mov_b32 s{S_OF+2}, {4*self.QS+131072}\ns_mov_b32 s{S_OF+3}, 0x20000")
        A(f"s_mul_i32 s14, s{S_I}, 288\ns_and_b32 s15, s{S_I}, 1\ns_lshl_b32 s15, s15, 5\ns_sub_u32 s14, s14, s15")
        A(f"s_add_u32 s{S_WO}, s88, s14\ns_addc_u32 s{S_WO+1}, s89, 0\ns_sub_u32 s{S_WO}, s{S_WO}, 8192\ns_subb_u32 s{S_WO+1}, s{S_WO+1}, 0")
        A(f"s_sub_u32 s{S_WO+2}, {4096*1152+8192}, s14\ns_mov_b32 s{S_WO+3}, 0x20000")
        A(f"s_lshl_b32 s14, s3, 2\ns_add_u32 s14, s14, s{S_I}\ns_mul_i32 s14, s14, {16*12*1024}\ns_add_u32 s14, s14, {PART_OFF}")
        A(f"s_add_u32 s{S_PT}, s12, s14\ns_addc_u32 s{S_PT+1}, s13, 0\ns_mov_b32 s{S_PT+2}, {16*12*1024}\ns_mov_b32 s{S_PT+3}, 0x20000")
        A(f"s_mul_i32 s14, s{S_B}, {160*2304}\ns_mul_i32 s15, s{S_BR}, 1152\ns_add_u32 s14, s14, s15\ns_mul_i32 s15, s{S_I}, 288\ns_add_u32 s14, s14, s15")
        A(f"s_add_u32 s{S_OUT}, s58, s14\ns_addc_u32 s{S_OUT+1}, s59, 0\ns_sub_u32 s{S_OUT+2}, {1280*2304}, s14\ns_mov_b32 s{S_OUT+3}, 0x20000")
        A(f"s_add_u32 s{S_FLG}, s12, {FLAG_OFF}\ns_addc_u32 s{S_FLG+1}, s13, 0\ns_mov_b32 s{S_FLG+2}, {2*256*128}\ns_mov_b32 s{S_FLG+3}, 0x20000")
        A(f"s_lshl_b32 s3, s3, 4")
        A(f"s_add_u32 s14, s3, s{S_H}\ns_lshl_b32 s{S_CNT}, s14, 7")
        A(f"s_lshl_b32 s{S_CNT2}, s3, 7")
        A(f"s_mov_b32 s{S_IT}, 0")
        A(f"s_mul_i32 s{S_M0}, s{S_W}, 0")
        A(f"s_lshl_b32 s{S_CNT+5}, s{S_J}, 5\ns_lshl_b32 s14, s{S_KH}, 2\ns_add_u32 s{S_CNT+5}, s{S_CNT+5}, s14")
        A(f"s_lshl_b32 s14, s{S_KH}, 1\ns_add_u32 s14, s14, s{S_RH}\ns_mul_i32 s{S_M0}, s14, {CH}")

    def offs(self):
        return [f"s_lshr_b32 s{S_T0}, s{S_IT}, 1", f"s_add_u32 s{S_T0}, s{S_T0}, s{S_I}",
                f"s_and_b32 s{S_T0}, s{S_T0}, 3", f"s_lshl_b32 s{S_T0}, s{S_T0}, 3",
                f"s_add_u32 s{S_T0}, s{S_T0}, s{S_CNT+5}", f"s_and_b32 s{S_T1}, s{S_IT}, 1",
                f"s_lshl_b32 s{S_T1}, s{S_T1}, 1", f"s_add_u32 s{S_T0}, s{S_T0}, s{S_T1}",
                f"s_lshl_b32 s{S_OSO}, s{S_T0}, 10", f"s_add_u32 s{S_T0}, s{S_T0}, s{S_RH}",
                f"s_mul_i32 s{S_WSO}, s{S_T0}, {32*1152}", f"s_add_u32 s{S_IT}, s{S_IT}, 1"]
    def wdma(self, stage):
        pol = self.o.get("p2w", "")
        G = []
        for grp, idx in enumerate(([0,1,2,3], [4,5,6,7], [8,9])):
            g = [f"s_add_u32 m0, s{S_M0}, {stage*STG + grp*4096}"]
            for n, i in enumerate(idx):
                g.append(f"buffer_load_dwordx4 v{V_WD+i}, s[{S_WO}:{S_WO+3}], s{S_WSO} offen offset:{n*1024}{pol} lds")
            G.append(g)
        return G
    def bloads(self, stage):
        pol = self.o.get("p2o", " sc1")
        L = []
        for st in range(2):
            for qi in range(5):
                L.append([f"s_add_u32 s{S_T2}, s{S_OSO}, {qi*self.QS + st*1024}",
                          f"buffer_load_dwordx4 {vr(V_B+40*stage+20*st+4*qi,4)}, v{V_OB}, s[{S_OF}:{S_OF+3}], s{S_T2} offen{pol}"])
        return L
    def a_reads(self, st, buf, nxt=False):
        R = []
        ra, rb = (V_NA, V_NB) if nxt else (V_CA, V_CB)
        for nt in range(9):
            for hh in range(2):
                R.append(f"ds_read_b64_tr_b16 {ar(A_A[buf]+4*nt+2*hh,2)}, v{ra if nt % 2 == 0 else rb} offset:{st*CH + hh*16*320 + nt*32}")
        return R

    def issue_w(self, stage):
        for g in self.wdma(stage):
            self.A(g[0]); self.A("s_nop 0")
            for l in g[1:]: self.A(l)
    def issue_b(self, stage):
        for g in self.bloads(stage):
            for l in g: self.A(l)

    def get_nonce(self, uid):
        A = self.A
        A(f"s_load_dwordx2 s[14:15], s[0:1], 88")
        A("s_waitcnt lgkmcnt(0)")
        A(f"v_mov_b32 v{V_T}, 0")
        A(f"s_mov_b32 s{S_T3}, 0x40000")
        A(f"P2_NON_{uid}:")
        A(f"global_load_dword v{V_T+1}, v{V_T}, s[14:15] sc1")
        A("s_waitcnt vmcnt(0)")
        A(f"v_readfirstlane_b32 s{S_NONCE}, v{V_T+1}")
        A("s_nop 3")
        A(f"s_cmp_lg_u32 s{S_NONCE}, 0")
        A(f"s_cbranch_scc1 P2_NOND_{uid}")
        A(f"s_sub_u32 s{S_T3}, s{S_T3}, 1\ns_cmp_eq_u32 s{S_T3}, 0")
        A(f"s_cbranch_scc1 P2_NOND_{uid}")
        A("s_sleep 1")
        A(f"s_branch P2_NON_{uid}")
        A(f"P2_NOND_{uid}:")
    def poll(self, kind, uid):
        A = self.A
        A(f"s_cmp_lg_u32 s{S_W}, 0")
        A(f"s_cbranch_scc1 P2_POLLED_{uid}")
        A(f"v_and_b32 v{V_T}, 3, v{V_LANE}")
        if kind == 0:
            A(f"s_lshl_b32 s{S_T0}, s{S_J}, 9\ns_add_u32 s{S_T0}, s{S_T0}, s{S_CNT2}")
            A(f"v_lshlrev_b32 v{V_T}, 7, v{V_T}")
        else:
            A(f"s_lshl_b32 s{S_T0}, s{S_I}, 7\ns_add_u32 s{S_T0}, s{S_T0}, s{S_CNT2}\ns_add_u32 s{S_T0}, s{S_T0}, {256*128}")
            A(f"v_lshlrev_b32 v{V_T}, 9, v{V_T}")
        A(f"s_mov_b32 s{S_T3}, 0x40000")
        A(f"P2_POLL_{uid}:")
        A(f"buffer_load_dword v{V_T+1}, v{V_T}, s[{S_FLG}:{S_FLG+3}], s{S_T0} offen sc1")
        A("s_waitcnt vmcnt(0)")
        A(f"v_cmp_ne_u32 vcc, s{S_NONCE}, v{V_T+1}")
        A("s_nop 4")
        A(f"s_cbranch_vccz P2_POLLED_{uid}")
        A(f"s_sub_u32 s{S_T3}, s{S_T3}, 1")
        A(f"s_cmp_eq_u32 s{S_T3}, 0")
        A(f"s_cbranch_scc1 P2_TMO_{uid}" if self.o.get("diag") else f"s_cbranch_scc1 P2_POLLED_{uid}")
        if not self.o.get("nosleep"): A("s_sleep 1")
        A(f"s_branch P2_POLL_{uid}")
        if self.o.get("diag"):
            A(f"P2_TMO_{uid}:")
            A(f"v_mov_b32 v{V_T}, {4*(1+kind)}\nv_mov_b32 v{V_T+1}, 1")
            A("s_mov_b64 s[14:15], exec\ns_mov_b64 exec, 1")
            A(f"global_atomic_add v{V_T}, v{V_T+1}, s[100:101] sc1")
            A("s_mov_b64 exec, s[14:15]")
        A(f"P2_POLLED_{uid}:")
        A("s_barrier")
    def signal(self, kind, uid, drain=True):
        A = self.A
        if drain:
            A("s_waitcnt vmcnt(0)")
            A("s_barrier")
        A(f"s_cmp_lg_u32 s{S_W}, 0")
        A(f"s_cbranch_scc1 P2_SIG_{uid}")
        A(f"s_add_u32 s{S_T0}, s{S_CNT}, {kind*256*128}")
        A(f"v_mov_b32 v{V_T}, 0\nv_mov_b32 v{V_T+1}, s{S_NONCE}")
        A("s_mov_b64 s[14:15], exec\ns_mov_b64 exec, 1")
        if kind == 0 and self.fused and self.o.get("xccfast", False):
            A(f"s_cmp_lg_u32 s{S_FAST}, 0")
            A(f"s_cbranch_scc1 P2_SIGF_{uid}")
            A(f"buffer_store_dword v{V_T+1}, v{V_T}, s[{S_FLG}:{S_FLG+3}], s{S_T0} offen sc1")
            A(f"s_branch P2_SIGE_{uid}")
            A(f"P2_SIGF_{uid}:")
            A(f"buffer_store_dword v{V_T+1}, v{V_T}, s[{S_FLG}:{S_FLG+3}], s{S_T0} offen")
            A(f"P2_SIGE_{uid}:")
        else:
            A(f"buffer_store_dword v{V_T+1}, v{V_T}, s[{S_FLG}:{S_FLG+3}], s{S_T0} offen sc1")
        A("s_mov_b64 exec, s[14:15]")
        A(f"P2_SIG_{uid}:")

    def prefetch_w(self):
        A = self.A
        self.vm = []
        for it in range(2):
            for l in self.offs(): A(l)
            A(f"s_mov_b32 s{54+it}, s{S_OSO}")
            self.issue_w(it); self.vm += [("w", it)] * NW

    def main(self, stamp=None):
        A = self.A
        NIT = 8
        fused = self.fused
        if not fused:
            self.prefetch_w()
        vm = self.vm
        def wait_n(tags):
            last = max(i for i, t in enumerate(vm) if t in tags)
            return len(vm) - 1 - last
        if fused and not self.ostores:
            vm += [("o",)] * 20
        else:
            for it in range(2):
                A(f"s_mov_b32 s{S_OSO}, s{54+it}")
                self.issue_b(it); vm += [("b", it)] * 10
        z = V_T + 1
        for i in range(4): A(f"v_mov_b32 v{z+i}, 0")
        A("s_nop 1")
        for i in range(11):
            A(f"v_mfma_f32_32x32x16_bf16 {ar(16*i,16)}, {vr(z,4)}, {vr(z,4)}, 0")
        for i in range(176, 180): A(f"v_accvgpr_write_b32 a{i}, 0")
        A(f"s_waitcnt vmcnt({wait_n({('w',0)})})")
        A("s_barrier")
        if stamp: stamp()
        A(f"v_mov_b32 v{V_CA}, v{V_LA}\nv_mov_b32 v{V_CB}, v{V_LB}")
        for r in self.a_reads(0, 0): A(r)
        for it in range(NIT):
            stg = it % NST
            nstg = (it + 1) % NST
            own = fused and it < 2
            for st in range(2):
                buf = st
                M = []
                for nt in range(9):
                    for qi in range(5):
                        d = ar(A_ACC + (nt*5+qi)*4, 4)
                        bsrc = vr(V_OWN + 16*qi + 4*(2*it + st), 4) if own else vr(V_B+40*stg+20*st+4*qi, 4)
                        M.append(mfma(d, ar(A_A[buf]+4*nt, 4), bsrc, d))
                fill = [[] for _ in range(45)]
                if st == 0:
                    if own:
                        A("s_waitcnt lgkmcnt(0)")
                    else:
                        A(f"s_waitcnt vmcnt({wait_n({('b',it)})}) lgkmcnt(0)")
                    R = self.a_reads(1, 1)
                    for n, r in enumerate(R): fill[1 + 2*n].append(r)
                    if own and it == 0 and self.ostores:
                        for n in range(10): fill[3 + 4*n] += self.ostores[n]
                        vm += [("o",)] * 10
                    if it + 2 < NIT and self.o.get("p2_now"):
                        vm += [("w", it + 2)] * 0 + [("w", it + 2)]
                        vm.pop(); vm.append(("w", it + 2))
                    if it + 2 < NIT and not self.o.get("p2_now"):
                        o = self.offs()
                        for n in range(6): fill[2*n] += o[2*n:2*n+2]
                        G = self.wdma((it + 2) % NST)
                        pos = [13, 16, 19, 22, 25, 28, 31, 34, 37, 40]
                        k = 0
                        for g in G:
                            fill[pos[k] - 1].append(g[0])
                            for l in g[1:]:
                                fill[pos[k]].append(l); k += 1
                        vm += [("w", it + 2)] * NW
                        fill[42].append(f"s_mov_b32 s{54 + (it & 1)}, s{S_OSO}")
                else:
                    if it + 1 < NIT:
                        if self.o.get("proffine") and stamp and it in (1, 2): stamp()
                        early = fused and it == 0 and self.o.get("earlysig", True)
                        tags = {('w', it+1)}
                        if early: tags.add(('o',))
                        A(f"s_waitcnt vmcnt({wait_n(tags)}) lgkmcnt(0)")
                        A("s_barrier")
                        if early: self.signal(0, "a", drain=False)
                        if self.o.get("proffine") and stamp and it in (1, 2): stamp()
                        R = self.a_reads(0, 0, nxt=True)
                        A(f"v_add_u32 v{V_NA}, {nstg*STG}, v{V_LA}\nv_add_u32 v{V_NB}, {nstg*STG}, v{V_LB}")
                        for n, r in enumerate(R): fill[1 + 2*n].append(r)
                    else:
                        A("s_waitcnt lgkmcnt(0)")
                    if own and it == 0 and self.ostores:
                        for n in range(10): fill[3 + 4*n] += self.ostores[10 + n]
                        vm += [("o",)] * 10
                    if it + 2 < NIT and not (fused and it < 2):
                        B = self.bloads((it + 2) % NST)
                        if not self.o.get("p2_nob"):
                            for n, g in enumerate(B): fill[2 + 4*n] += g
                        vm += [("b", it + 2)] * 10
                for m in range(45):
                    A(M[m])
                    for l in fill[m]: A(l)
                if st == 1 and it + 1 < NIT:
                    A(f"v_mov_b32 v{V_CA}, v{V_NA}\nv_mov_b32 v{V_CB}, v{V_NB}")
            if self.o.get("profp2") and stamp and it >= 1 and it <= self.o.get("profit", 7): stamp()
            if fused and it == 0:
                if not self.o.get("earlysig", True):
                    A(f"s_waitcnt vmcnt({wait_n({('o',)})})")
                    A("s_barrier")
                    self.signal(0, "a", drain=False)
                if stamp: stamp()
                self.poll(0, "a")
                if stamp: stamp()
                A(f"s_mov_b32 s{S_OSO}, s54")
                self.issue_b(2 % NST); vm += [("b", 2)] * 10
                if self.o.get("proffine") and stamp: stamp()
            if fused and it == 1:
                A(f"s_mov_b32 s{S_OSO}, s55")
                self.issue_b(3 % NST); vm += [("b", 3)] * 10
        if stamp and not self.o.get("profp2"): stamp()

    def reduce(self, stamp=None):
        A = self.A
        T = V_T
        PK = V_B + 192 - 48
        A("s_barrier")
        A(f"s_mul_i32 s{S_T0}, s{S_RH}, {46*1024}")
        A(f"v_add_u32 v{T}, s{S_T0}, v{V_OB}")
        A("s_nop 4")
        def red(send, keep):
            for tl in send:
                A(f"ds_write_b128 v{T}, {ar(A_ACC+4*tl,4)} offset:{tl*1024}")
            for n, tl in enumerate(keep):
                for r in range(4): A(f"v_accvgpr_read_b32 v{V_B+4*n+r}, a{A_ACC+4*tl+r}")
            A("s_waitcnt lgkmcnt(0)")
            A("s_barrier")
            RB = V_B + 92
            for base in (0, 12):
                batch = list(enumerate(keep))[base:base+12]
                for m, (n, tl) in enumerate(batch):
                    A(f"ds_read_b128 {vr(RB+4*m,4)}, v{T} offset:{tl*1024}")
                A("s_waitcnt lgkmcnt(0)")
                for m, (n, tl) in enumerate(batch):
                    for r in range(0, 4, 2):
                        A(f"v_pk_add_f32 v[{V_B+4*n+r}:{V_B+4*n+r+1}], v[{V_B+4*n+r}:{V_B+4*n+r+1}], v[{RB+4*m+r}:{RB+4*m+r+1}]")
                    pr, hf = n // 2, n % 2
                    A(f"v_cvt_pk_bf16_f32 v{PK+4*pr+2*hf}, v{V_B+4*n}, v{V_B+4*n+1}")
                    A(f"v_cvt_pk_bf16_f32 v{PK+4*pr+2*hf+1}, v{V_B+4*n+2}, v{V_B+4*n+3}")
                for pr in range(base // 2, base // 2 + 6):
                    A(f"s_add_u32 s{S_T1}, s{S_T0}, {pr*1024}")
                    A(f"buffer_store_dwordx4 {vr(PK+4*pr,4)}, v{V_OB}, s[{S_PT}:{S_PT+3}], s{S_T1} offen sc1")
        A(f"s_lshl_b32 s{S_T0}, s{S_J}, 2\ns_add_u32 s{S_T0}, s{S_T0}, s{S_W}\ns_mul_i32 s{S_T0}, s{S_T0}, {12*1024}")
        A(f"s_cmp_eq_u32 s{S_KH}, 0")
        A("s_cbranch_scc0 P2_RED1")
        red(list(range(23, 45)), list(range(0, 23)))
        A("s_branch P2_RED2")
        A("P2_RED1:")
        red(list(range(0, 23)), list(range(23, 45)))
        A("P2_RED2:")
        self.signal(1, "b")
        if stamp: stamp()
        self.poll(1, "b")
        if stamp and not self.o.get("profp2"): stamp()
        A(f"v_and_b32 v{T+2}, 15, v{V_LANE}\nv_mul_u32_u24 v{T+2}, 2304, v{T+2}")
        A(f"v_lshrrev_b32 v{T+3}, 4, v{V_LANE}\nv_lshl_add_u32 v{T+2}, v{T+3}, 3, v{T+2}")
        for m in range(3):
            A(f"s_add_u32 s{S_T0}, s{S_J}, {4*m}\ns_mul_i32 s{S_T1}, s{S_W}, 12\ns_add_u32 s{S_T0}, s{S_T0}, s{S_T1}\ns_lshl_b32 s{S_T0}, s{S_T0}, 10")
            for src in range(4):
                A(f"s_add_u32 s{S_T1}, s{S_T0}, {src*4*12*1024}")
                A(f"buffer_load_dwordx4 {vr(V_B+16*m+4*src,4)}, v{V_OB}, s[{S_PT}:{S_PT+3}], s{S_T1} offen sc1")
        F = V_B + 64
        nst = 0
        for m in range(3):
            b = V_B + 16*m
            A(f"s_waitcnt vmcnt({(2-m)*4 + nst})")
            for hf in range(2):
                f = F + 8*hf
                for src in range(4):
                    for d in range(2):
                        x = b + 4*src + 2*hf + d
                        if src == 0:
                            A(f"v_lshlrev_b32 v{f+2*d}, 16, v{x}\nv_and_b32 v{f+2*d+1}, 0xffff0000, v{x}")
                        else:
                            A(f"v_lshlrev_b32 v{f+4}, 16, v{x}\nv_and_b32 v{f+5}, 0xffff0000, v{x}")
                            A(f"v_add_f32 v{f+2*d}, v{f+2*d}, v{f+4}\nv_add_f32 v{f+2*d+1}, v{f+2*d+1}, v{f+5}")
                A(f"v_cvt_pk_bf16_f32 v{f+6}, v{f}, v{f+1}\nv_cvt_pk_bf16_f32 v{f+7}, v{f+2}, v{f+3}")
                A(f"s_add_u32 s{S_T0}, s{S_J}, {4*m}\ns_lshl_b32 s{S_T0}, s{S_T0}, 1\ns_add_u32 s{S_T0}, s{S_T0}, {hf}")
                A(f"s_mul_i32 s{S_T1}, s{S_KH}, 23\ns_add_u32 s{S_T1}, s{S_T1}, s{S_T0}")
                A(f"s_mul_i32 s{S_T2}, s{S_T1}, 52\ns_lshr_b32 s{S_T2}, s{S_T2}, 8")
                A(f"s_mul_i32 s{S_T3}, s{S_T2}, 5\ns_sub_u32 s{S_T3}, s{S_T1}, s{S_T3}")
                A(f"s_lshl_b32 s{S_T3}, s{S_T3}, 4\ns_mul_i32 s56, s{S_RH}, 80\ns_add_u32 s{S_T3}, s{S_T3}, s56\ns_mul_i32 s{S_T3}, s{S_T3}, 2304")
                A(f"s_lshl_b32 s{S_T2}, s{S_T2}, 5\ns_add_u32 s{S_T3}, s{S_T3}, s{S_T2}")
                A(f"s_sub_u32 s56, 23, s{S_KH}\ns_cmp_ge_u32 s{S_T0}, s56\ns_cselect_b32 s{S_T3}, {1<<30}, s{S_T3}")
                A(f"buffer_store_dwordx2 {vr(f+6,2)}, v{T+2}, s[{S_OUT}:{S_OUT+3}], s{S_T3} offen{self.o.get('outpol', '')}")
                nst += 1


class K2B:
    def __init__(self, opts=None):
        self.o = opts or {}
        self.A = Asm()
        self.QS = 131072 + self.o.get("qpad", 0)
        self.LDS = NST * STG
        self.nst = 0
    def stamp(self):
        if not self.o.get("prof"): return
        i = self.nst = self.nst + 1
        b = 64 + (i-1)*4
        self.A(f"s_memtime s[{b}:{b+1}]")
        self.A(f"s_memrealtime s[{b+2}:{b+3}]")
    def dump_stamps(self):
        if not self.o.get("prof"): return
        A = self.A
        A("s_waitcnt lgkmcnt(0) vmcnt(0)")
        A("s_load_dwordx2 s[4:5], s[0:1], 96")
        A("s_waitcnt lgkmcnt(0)")
        A(f"s_add_u32 s4, s4, {(129<<20)}\ns_addc_u32 s5, s5, 0\ns_mov_b32 s6, 0x100000\ns_mov_b32 s7, 0x20000")
        A(f"s_lshl_b32 s3, s2, 2\ns_add_u32 s3, s3, s{S_W}\ns_lshl_b32 s3, s3, 7")
        A("s_mov_b64 exec, 1")
        for i in range(self.nst):
            b = 64 + i*4
            A(f"v_mov_b32 v2, s{b}\nv_mov_b32 v3, s{b+2}\nv_mov_b32 v4, s3")
            A(f"buffer_store_dwordx2 v[2:3], v4, s[4:7], 0 offen offset:{i*8}")
            A("s_nop 1")
    def build(self):
        A = self.A
        A(".p2align 8\n.type k2_kernel,@function\nk2_kernel:")
        A("s_cmp_ge_u32 s2, 256")
        A("s_cbranch_scc1 K2_END")
        self.stamp()
        A("s_and_b32 s3, s2, 7\ns_lshr_b32 s14, s2, 3")
        A(f"s_lshr_b32 s{S_BR}, s3, 2\ns_and_b32 s3, s3, 3\ns_lshl_b32 s3, s3, 2")
        A(f"s_and_b32 s{S_H}, s14, 3\ns_add_u32 s{S_H}, s{S_H}, s3\ns_lshr_b32 s{S_B}, s14, 2")
        A(f"v_lshrrev_b32 v{V_T}, 6, v0\ns_nop 0\nv_readfirstlane_b32 s{S_W}, v{V_T}\ns_nop 3")
        p = P2(A, self.o, self.QS, fused=False)
        p.get_nonce("k")
        p.setup()
        p.main(self.stamp)
        p.reduce(self.stamp)
        self.stamp()
        self.dump_stamps()
        A("K2_END:")
        A("s_endpgm")
        self.loop_lines = []
        return A
```

```python
def window_schedule(NT=5, nK=8, nV=16, dma_gaps=(41,), exp_end=75, ds_end_a=32, ds_end_b=72, verbose=False, extra_first=6, NA=40, noadd=()):
    exps = [(t, i) for i0 in (0, 4) for t in range(NT) for i in range(i0, i0 + 4)]
    exp_gap = {}
    add_gap = {}
    cvt_gap = {}
    G = NA + 40
    gaps = [[] for _ in range(G)]
    ne = 0
    adds_pending = []
    cvt_done = set()
    kdone = vdone = 0
    def cvt_ready(g):
        out = []
        for t in range(NT):
            for p in range(4):
                if (t, p) in cvt_gap: continue
                if p > 0 and (t, p - 1) not in cvt_gap: break
                a, b = (t, 2 * p), (t, 2 * p + 1)
                if a in exp_gap and b in exp_gap and exp_gap[a] < g and exp_gap[b] < g:
                    if (t, p) in add_gap or t in noadd:
                        out.append((t, p))
                break
        return out
    for g in range(G):
        if g in dma_gaps:
            gaps[g].append(('DMA', list(dma_gaps).index(g), len(dma_gaps)))
            continue
        phaseA = g < NA
        if phaseA:
            ds_left = nK - kdone
            ds_target = min(nK, int((g + 1) * nK / ds_end_a + 0.999))
            ds_due = kdone < ds_target
        else:
            ds_left = nV - vdone
            ds_target = min(nV, int((g - NA + 1) * nV / (ds_end_b - NA + 1) + 0.999))
            ds_due = vdone < ds_target
        exp_target = min(len(exps), int((g + 1) * len(exps) / exp_end + 0.999))
        exp_avail = ne < len(exps) and (exps[ne][1] < 4 or g >= extra_first)
        ready4 = [('cvt',) + c for c in cvt_ready(g)] + [('add',) + a for a in adds_pending if exp_gap[a] < g]
        nslots_fill = len(ready4) + (1 if ds_due else 0)
        do_exp = exp_avail and (ne < exp_target or nslots_fill < 2)
        if do_exp:
            if ds_due and ((phaseA and kdone + 1 < ds_target) or ((not phaseA) and vdone + 1 < ds_target)):
                if phaseA: gaps[g].append(('K', kdone)); kdone += 1
                else: gaps[g].append(('V', vdone)); vdone += 1
            e = exps[ne]; ne += 1
            exp_gap[e] = g
            if e[0] not in noadd: adds_pending.append(e)
            gaps[g].append(('exp',) + e)
        else:
            slots = 2
            if ds_due:
                if phaseA: gaps[g].append(('K', kdone)); kdone += 1
                else: gaps[g].append(('V', vdone)); vdone += 1
                slots -= 1
            while slots > 0:
                ready4 = [('cvt',) + c for c in cvt_ready(g)] + [('add',) + a for a in adds_pending if exp_gap[a] < g]
                if not ready4: break
                it = ready4[0]
                gaps[g].append(it)
                if it[0] == 'cvt': cvt_gap[(it[1], it[2])] = g
                else:
                    add_gap[(it[1], it[2])] = g; adds_pending.remove((it[1], it[2]))
                slots -= 1
    g = 79
    left = True
    tail_g = 76
    while True:
        ready4 = [('cvt',) + c for c in cvt_ready(G)] + [('add',) + a for a in adds_pending]
        if not ready4: break
        it = ready4[0]
        gaps[G-2].append(it)
        if it[0] == 'cvt': cvt_gap[(it[1], it[2])] = G-2
        else:
            add_gap[(it[1], it[2])] = G-2; adds_pending.remove((it[1], it[2]))
    assert ne == len(exps) and kdone == nK and vdone == nV, (ne, kdone, vdone)
    assert len(cvt_gap) == NT * 4 and len(add_gap) == (NT - len(noadd)) * 8
    if verbose:
        tot = 0
        for g in range(G):
            c = gap_cost(gaps[g]); tot += c
            print(g, c, gaps[g])
        print("total", tot)
    return gaps

def gap_cost(items):
    t = 4
    vfree = 8
    cur = 4
    for it in items:
        k = it[0]
        if k in ('K', 'V'):
            vfree = max(vfree, cur + 8); mf = cur + 12; cur += 4
        elif k == 'DMA':
            return 16 + (18 if it[2] == 1 else (10 if it[2] == 2 else 5))
        else:
            st = max(cur, vfree)
            d = 8 if k == 'exp' else 4
            vfree = st + d; cur = st + 4
    end = max(16, vfree)
    ds = [i for i, it in enumerate(items) if it[0] in ('K', 'V')]
    if ds:
        end = max(end, 4 + 4 * ds[-1] + 12)
    return end

def best_schedule(dma_gaps, NA=40, noadd=()):
    best = None
    G = NA + 40
    for exp_end in range(60, 80):
        for ds_end_a in (24, 28, 32, 36):
            for ds_end_b in (64, 68, 72, 74):
                try:
                    gs = window_schedule(exp_end=exp_end, ds_end_a=ds_end_a, ds_end_b=ds_end_b, dma_gaps=dma_gaps, NA=NA, noadd=noadd)
                except AssertionError:
                    continue
                tot = sum(gap_cost(x) for x in gs)
                lastcvt = max(g for g in range(G) for it in gs[g] if it[0] == 'cvt')
                lastk = max(g for g in range(G) for it in gs[g] if it[0] == 'K')
                lastv = max(g for g in range(G) for it in gs[g] if it[0] == 'V')
                if lastcvt > G - 3 or lastk > NA - 6 or lastv > G - 6: continue
                if best is None or tot < best[0]:
                    best = (tot, gs, exp_end, ds_end_a, ds_end_b)
    return best

if __name__ == "__main__":
    for dg, NA, na in (((41,51,61,71), 40, ()), ((42,52,62,72), 41, (4,)), ((43,53,63,73), 42, (3, 4))):
        b = best_schedule(dg, NA, na)
        print(dg, NA, na, b[0], b[2:])
```
